```python
import torch

def _softmax(x, axis=-1):
    return torch.softmax(x, dim=axis)
def _gelu(x):
    return torch.nn.functional.gelu(x, approximate="tanh")
def _silu(x):
    return torch.nn.functional.silu(x)
def _sigmoid(x):
    return torch.sigmoid(x)
def _layernorm(x, axis=-1, eps=1e-5):
    m = x.mean(dim=axis, keepdim=True)
    v = x.var(dim=axis, keepdim=True, unbiased=False)
    return (x - m) / torch.sqrt(v + eps)
def _scatter_add(tgt, idx, src, axis=0):
    return tgt.clone().index_add_(axis, idx, src)
def _segment_sum(src, seg, n):
    out = torch.zeros((n,) + src.shape[1:], dtype=src.dtype)
    return out.index_add_(0, seg, src)
def _pad(x, pw):
    flat = tuple(v for pair in reversed(pw) for v in pair)
    return torch.nn.functional.pad(x, flat)

kernel_name = 'interleave_layers__sliding_block__moe_arch_mod__prompt'

def setup_inputs():

    _w = (lambda a: (lambda t: t.to(torch.bfloat16) if t.is_floating_point() else t)(torch.as_tensor(a)))
    def _A_setup():
        B, S, D = 1, 2048, 512
        return {
            "x": _w((lambda *s: torch.randn(*s, dtype=torch.bfloat16) * 0.05)(B, S, D)),
            "wqkv": _w((lambda *s: torch.randn(*s, dtype=torch.bfloat16) * 0.05)(D, 3 * D)),
            "wo": _w((lambda *s: torch.randn(*s, dtype=torch.bfloat16) * 0.05)(D, D)),
        }
    _A_in = _A_setup()

    def _B_setup():
        B, S, D, F, C = 1, 2048, 512, 1792, 1
        return {
            "x": _w((lambda *s: torch.randn(*s, dtype=torch.bfloat16) * 0.05)(B, S, D)),
            "w_r": _w((lambda *s: torch.randn(*s, dtype=torch.bfloat16) * 0.05)(D)),
            "w_gate": _w((lambda *s: torch.randn(*s, dtype=torch.bfloat16) * 0.05)(D, F)),
            "w_up": _w((lambda *s: torch.randn(*s, dtype=torch.bfloat16) * 0.05)(D, F)),
            "w_down": _w((lambda *s: torch.randn(*s, dtype=torch.bfloat16) * 0.05)(F, D)),
        }
    _B_in = _B_setup()

    return {
        "A_x": _A_in["x"],
        "A_wqkv": _A_in["wqkv"],
        "A_wo": _A_in["wo"],
        "B_x": _B_in["x"],
        "B_w_r": _B_in["w_r"],
        "B_w_gate": _B_in["w_gate"],
        "B_w_up": _B_in["w_up"],
        "B_w_down": _B_in["w_down"],
    }

def reference(A_x, A_wqkv, A_wo, B_x, B_w_r, B_w_gate, B_w_up, B_w_down):
    def _A_ref(x, wqkv, wo):
        B, S, D = x.shape
        H = 32; Dh = D // H; W = 256
        qkv = (lambda x, *d: x.permute(*d))((x @ wqkv).reshape(B, S, 3, H, Dh), 2, 0, 3, 1, 4)
        q, k, v = qkv[0], qkv[1], qkv[2]
        scores = torch.einsum("bhqd,bhkd->bhqk", q, k) * (Dh ** -0.5)
        idx = torch.arange(S)
        mask = (idx[:, None] - idx[None, :] >= 0) & (idx[:, None] - idx[None, :] < W)
        scores = torch.where(mask[None, None], scores, -1e9)
        p = _softmax(scores, axis=-1)
        o = torch.einsum("bhqk,bhkd->bhqd", p, v)
        return (lambda x, *d: x.permute(*d))(o, 0, 2, 1, 3).reshape(B, S, D) @ wo

    def _B_ref(x, w_r, w_gate, w_up, w_down):
        B, S, D = x.shape
        C = 1
        r = x @ w_r
        idx = torch.argsort(-r, axis=-1)[:, :C]
        idx_e = (lambda x, n, axis: torch.repeat_interleave(x, n, dim=axis))(idx.reshape(B, C, 1), D, axis=2)
        x_sel = (lambda x, i, axis: torch.take_along_dim(x, i, dim=axis))(x, idx_e, axis=1)
        g = _silu(x_sel @ w_gate)
        u = x_sel @ w_up
        y = (g * u) @ w_down
        r_sel = _sigmoid((lambda x, i, axis: torch.take_along_dim(x, i, dim=axis))(r, idx, axis=1))
        y = y * r_sel.reshape(B, C, 1)
        b_off = (torch.arange(B) * S).reshape(B, 1)
        flat_idx = (idx + b_off).reshape(B * C)
        zero = (x * 0.0).reshape(B * S, D)
        upd = _scatter_add(zero, flat_idx, y.reshape(B * C, D), axis=0)
        return x + upd.reshape(B, S, D)

    x = A_x
    x = x + _A_ref(_layernorm(x, axis=-1), A_wqkv, A_wo)
    x = x + _B_ref(_layernorm(x, axis=-1), B_w_r, B_w_gate, B_w_up, B_w_down)
    x = x + _A_ref(_layernorm(x, axis=-1), A_wqkv, A_wo)
    x = x + _B_ref(_layernorm(x, axis=-1), B_w_r, B_w_gate, B_w_up, B_w_down)
    return x
```

```python
import re

REG_RE = re.compile(r'^(-?)(?:abs\()?([vas])(\d+)\)?$')
RNG_RE = re.compile(r'^(-?)([vas])\[(\d+):(\d+)\]$')

def parse_regs(tok):
    tok = tok.strip()
    m = RNG_RE.match(tok)
    if m:
        return [(m.group(2), i) for i in range(int(m.group(3)), int(m.group(4)) + 1)]
    m = REG_RE.match(tok)
    if m:
        return [(m.group(2), int(m.group(3)))]
    if tok == 'vcc':
        return [('s', 'vcc')]
    if tok == 'exec':
        return [('s', 'exec')]
    if tok == 'm0':
        return [('s', 'm0')]
    return []

TRANS = ('v_exp_f32', 'v_log_f32', 'v_rcp_f32', 'v_rsq_f32', 'v_sqrt_f32', 'v_sin_f32', 'v_cos_f32')

class Ins:
    __slots__ = ('text', 'mn', 'cls', 'rd', 'wr', 'srcC', 'srcAB', 'passes', 'dpp', 'label', 'target', 'states', 'storedata')
    def __init__(self, text):
        self.text = text
        self.label = None; self.target = None
        self.rd = set(); self.wr = set(); self.srcC = []; self.srcAB = set(); self.passes = 0
        self.dpp = False; self.states = 1; self.storedata = set()
        t = text.split(';')[0].strip()
        if t.endswith(':'):
            self.cls = 'label'; self.label = t[:-1]; self.mn = ''; self.states = 0
            return
        if t == '' or t.startswith('.'):
            self.cls = 'dir'; self.mn = ''; self.states = 0
            return
        parts = t.split(None, 1)
        mn = parts[0]; self.mn = mn
        rest = parts[1] if len(parts) > 1 else ''
        ops = [o.strip() for o in rest.split(',')] if rest else []
        mods = ''
        clean = []
        for o in ops:
            w = o.split()
            if not w:
                continue
            clean.append(w[0])
            mods += ' ' + ' '.join(w[1:])
        if 'quad_perm' in rest:
            idx = rest.index('quad_perm')
            head = rest[:idx]
            clean = [x.strip().split()[0] for x in head.split(',') if x.strip()]
            mods = rest[idx:]
        if 'op_sel' in rest or 'neg_lo' in rest or 'neg_hi' in rest:
            idx = min(rest.index(k) for k in ('op_sel', 'neg_lo', 'neg_hi') if k in rest)
            head = rest[:idx]
            clean = [x.strip().split()[0] for x in head.split(',') if x.strip()]
            mods = rest[idx:]
        R = [parse_regs(c) for c in clean]
        def rd(*idx):
            for i in idx:
                if i < len(R): self.rd.update(R[i])
        def wr(*idx):
            for i in idx:
                if i < len(R): self.wr.update(R[i])
        allsrc = range(1, len(R))
        if mn == 's_nop':
            self.cls = 'nop'; self.states = int(clean[0], 0) + 1
        elif mn in ('s_waitcnt', 's_barrier', 's_sleep', 's_setprio', 's_endpgm'):
            self.cls = 'sctl'
        elif mn.startswith('s_cbranch') or mn == 's_branch':
            self.cls = 'branch'; self.target = clean[0]
            if 'vcc' in mn: self.rd.add(('s', 'vcc'))
            if 'exec' in mn: self.rd.add(('s', 'exec'))
        elif mn.startswith('s_cmp') or mn.startswith('s_bitcmp'):
            self.cls = 'salu'; rd(0, 1)
        elif mn.startswith('s_load') or mn.startswith('s_memtime') or mn.startswith('s_memrealtime'):
            self.cls = 'smem'; wr(0); rd(*allsrc)
        elif mn.startswith('s_'):
            self.cls = 'salu'; wr(0); rd(*allsrc)
            if 'saveexec' in mn:
                self.wr.add(('s', 'exec')); self.rd.add(('s', 'exec'))
            if mn in ('s_addk_i32', 's_mulk_i32'): rd(0)
        elif mn.startswith('v_mfma'):
            self.cls = 'mfma'
            self.passes = 8 if '32x32' in mn else 4
            wr(0); rd(1, 2, 3)
            self.srcAB = set(R[1]) | set(R[2]); self.srcC = R[3] if len(R) > 3 else []
        elif mn.startswith('v_cmp'):
            self.cls = 'valu'; wr(0); rd(*allsrc)
        elif mn in ('v_readfirstlane_b32', 'v_readlane_b32'):
            self.cls = 'readlane'; wr(0); rd(*allsrc)
        elif mn.startswith('v_permlane'):
            self.cls = 'permlane'; wr(0, 1); rd(0, 1)
        elif mn.startswith('v_'):
            self.cls = 'trans' if mn in TRANS else 'valu'
            wr(0); rd(*allsrc)
            if mn.startswith('v_fmac') or mn.startswith('v_dot2c') or mn == 'v_writelane_b32': rd(0)
            if 'row_' in mods or 'quad_perm' in mods:
                self.dpp = True; rd(0)
            if mn.startswith('v_cndmask') and len(clean) == 3:
                self.rd.add(('s', 'vcc'))
        elif mn.startswith('ds_read') or mn.startswith('ds_bpermute') or mn.startswith('ds_swizzle'):
            self.cls = 'ds'; wr(0); rd(*allsrc)
        elif mn.startswith('ds_write') or mn.startswith('ds_add') or mn.startswith('ds_max'):
            self.cls = 'ds'; rd(*range(len(R)))
        elif mn.startswith('buffer_load') or mn.startswith('global_load'):
            if ' lds' in (' ' + mods) or '_lds_' in mn:
                self.cls = 'dma'; rd(*range(len(R))); self.rd.add(('s', 'm0'))
            else:
                self.cls = 'vload'; wr(0); rd(*allsrc)
        elif mn.startswith('buffer_store') or mn.startswith('global_store'):
            self.cls = 'vstore'; rd(*range(len(R)))
            if mn.endswith('x4') or mn.endswith('x3'):
                self.storedata = set(R[0]) if mn.startswith('buffer') else set(R[1])
        elif mn.startswith('buffer_atomic') or mn.startswith('global_atomic'):
            self.cls = 'vstore'; rd(*range(len(R)))
            if 'sc0' in mods: wr(0)
        elif mn.startswith('buffer_inv') or mn.startswith('buffer_wbl2'):
            self.cls = 'sctl'
        else:
            raise ValueError('unknown instruction: ' + text)

def isv(r): return r[0] in ('v', 'a')
def iss(r): return r[0] == 's'

VALUISH = ('valu', 'trans', 'readlane', 'permlane')

def need(prod, cons):
    n = 0
    pw = prod.wr;
    if prod.cls in VALUISH or (prod.cls == 'mfma'):
        pass
    if prod.cls in ('valu', 'trans', 'permlane'):
        vw = {r for r in pw if isv(r)}
        if vw:
            if cons.cls == 'mfma' and vw & cons.rd: n = max(n, 2)
            if cons.dpp and vw & cons.rd: n = max(n, 2)
            if cons.cls == 'permlane' and vw & cons.rd: n = max(n, 2)
            if cons.cls == 'readlane' and vw & cons.rd: n = max(n, 1)
            if prod.cls == 'trans' and cons.cls in ('valu', 'readlane', 'permlane') and vw & cons.rd: n = max(n, 1)
            if prod.cls == 'trans' and cons.cls in ('ds', 'vstore', 'vload', 'dma', 'mfma') and vw & cons.rd: n = max(n, 2)
    if prod.cls in ('valu', 'readlane', 'trans', 'permlane'):
        sw = {r for r in pw if iss(r)}
        if sw:
            if cons.cls in ('valu', 'trans', 'permlane') and sw & cons.rd: n = max(n, 2)
            if cons.cls == 'readlane' and sw & cons.rd: n = max(n, 4)
            if cons.cls in ('vload', 'vstore', 'dma') and sw & cons.rd: n = max(n, 5)
            if cons.cls in ('salu', 'smem', 'branch') and sw & cons.rd: n = max(n, 2)
            if cons.cls == 'mfma' and ('s', 'exec') in sw: n = max(n, 4)
    if prod.cls == 'salu' and ('s', 'm0') in pw and cons.cls == 'dma': n = max(n, 1)
    if prod.cls == 'mfma':
        P = prod.passes
        D = pw
        if cons.cls == 'mfma':
            if D & cons.srcAB: n = max(n, 8 if P == 4 else 12)
            cset = set(cons.srcC)
            if D & cset:
                if not (cset == D and cons.passes == P): n = max(n, 6 if P == 4 else 10)
            if D & cons.wr and not (cons.wr == D and cons.passes == P): n = max(n, 8 if P == 4 else 12)
        elif cons.cls in VALUISH or cons.cls in ('ds', 'vload', 'vstore', 'dma'):
            if D & (cons.rd | cons.wr): n = max(n, 8 if P == 4 else 12)
        if cons.cls in VALUISH and set(prod.srcC) & cons.wr: n = max(n, 3 if P == 4 else 7)
    if prod.storedata and (prod.storedata & cons.wr):
        n = max(n, 2 if cons.cls in VALUISH else 1)
    return n

class Asm:
    def __init__(self):
        self.ins = []
        self.uid = 0
    def __call__(self, text):
        for line in text.split('\n'):
            line = line.strip()
            if line == '' or line.startswith(';'):
                continue
            self.ins.append(Ins(line))
    def label(self, name): self.ins.append(Ins(name + ':'))
    def newlabel(self, base='L'):
        self.uid += 1
        return '%s_%d' % (base, self.uid)
    def fix_hazards(self, maxdist=21):
        total = 0
        while True:
            ins = self.ins
            labels = {x.label: i for i, x in enumerate(ins) if x.cls == 'label'}
            preds = [[] for _ in ins]
            for i, x in enumerate(ins):
                if x.cls == 'branch':
                    t = labels[x.target]; preds[t].append(i)
                    if x.mn != 's_branch' and i + 1 < len(ins): preds[i + 1].append(i)
                elif x.mn == 's_endpgm':
                    pass
                elif i + 1 < len(ins):
                    preds[i + 1].append(i)
            todo = []
            last = -1000
            for i, c in enumerate(ins):
                if c.cls in ('label', 'dir', 'nop', 'sctl'): continue
                if i - last < maxdist + 4: continue
                worst = 0
                stack = [(p, 0) for p in preds[i]]
                seen = {}
                while stack:
                    p, d = stack.pop()
                    if p in seen and seen[p] <= d: continue
                    seen[p] = d
                    x = ins[p]
                    if x.cls not in ('label', 'dir', 'nop', 'sctl', 'branch'):
                        r = need(x, c)
                        if r > d: worst = max(worst, r - d)
                    d2 = d + x.states
                    if d2 < maxdist:
                        for q in preds[p]: stack.append((q, d2))
                if worst > 0:
                    todo.append((i, worst)); last = i
            if not todo:
                return total
            for i, worst in reversed(todo):
                k = worst; new = []
                while k > 0:
                    m = min(k, 16); new.append(Ins('s_nop %d' % (m - 1))); k -= m
                self.ins[i:i] = new
                total += worst
    def text(self):
        out = []
        for x in self.ins:
            out.append(x.text if x.cls == 'label' else '    ' + x.text)
        return '\n'.join(out)
```

```python
C = None

NEGBIG = 0xF149F2CA

def flag_store(g, setno_base, layered=True):
    a = g.a; c = C
    a('s_lshl_b32 s25, %s, 7' % c.sB); a('s_lshl_b32 s26, %s, 2' % c.sW); a('s_add_u32 s25, s25, s26')
    if layered:
        a('s_lshl_b32 s26, %s, 15' % c.sL); a('s_add_u32 s25, s25, s26')
    a('s_add_u32 s25, s25, 0x%x' % c.FL(setno_base))
    a('v_mov_b32 v220, %s' % c.sT)
    a('s_mov_b64 exec, 1')
    a('buffer_store_dword v220, off, %s, s25 sc1' % c.SRD_WS)
    a('s_mov_b64 exec, -1')

def poll(g, voff, soff, code, width=1, dst=216):
    a = g.a; c = C
    L = a.newlabel('POLL'); D = a.newlabel('POLD')
    a('s_mov_b32 s76, 0'); a.label(L)
    if width == 1:
        a('buffer_load_dword v%d, %s, %s, %s offen sc1' % (dst, voff, c.SRD_WS, soff)); a('s_waitcnt vmcnt(0)')
        a('v_cmp_ne_u32 vcc, %s, v%d' % (c.sT, dst))
    else:
        a('buffer_load_dwordx4 v[%d:%d], %s, %s, %s offen sc1' % (dst, dst + 3, voff, c.SRD_WS, soff)); a('s_waitcnt vmcnt(0)')
        if width == 4:
            a('v_xor_b32 v%d, %s, v%d' % (dst, c.sT, dst)); a('v_xor_b32 v%d, %s, v%d' % (dst + 1, c.sT, dst + 1))
            a('v_xor_b32 v%d, %s, v%d' % (dst + 2, c.sT, dst + 2)); a('v_xor_b32 v%d, %s, v%d' % (dst + 3, c.sT, dst + 3))
            a('v_or_b32 v%d, v%d, v%d' % (dst, dst, dst + 1)); a('v_or3_b32 v%d, v%d, v%d, v%d' % (dst, dst, dst + 2, dst + 3))
            a('v_cmp_ne_u32 vcc, 0, v%d' % dst)
        else:
            a('v_cmp_ne_u32 vcc, %s, v%d' % (c.sT, dst + 3))
    a('s_cmp_eq_u64 vcc, 0'); a('s_cbranch_scc1 %s' % D)
    a('s_add_u32 s76, s76, 1'); a('s_cmp_lt_u32 s76, 0x40000'); a('s_cbranch_scc1 %s' % L)
    g.srd(12, c.P_DBG, 256)
    a('v_mov_b32 v221, %d' % code)
    a('buffer_store_dword v221, off, %s, 0' % c.SRD_T); a('s_waitcnt vmcnt(0)')
    a.label(D)

def attention(ctx):
    g, a, opt = ctx['g'], ctx['a'], ctx['opt']; c = C
    QA, QB, K0, K1 = 40, 44, 48, 52
    VB = [(56, 60), (64, 68)]
    S = [72, 88]; P = 104; OA, OB = 112, 128; MBD, MBA = 144, 160
    VA0, VA1, VKA = 176, 180, 184
    a('v_add_u32 v186, %d, %s' % (c.IMG_K, c.vT16))
    for i in range(4): a('ds_read_b128 v[%d:%d], v186 offset:%d' % (188 + 4 * i, 191 + 4 * i, i * 4096))
    a('s_lshl_b32 s25, %s, 5' % c.sJ); a('s_add_u32 s25, s25, %s' % c.sH); a('s_lshl_b32 s25, s25, 14')
    a('s_lshl_b32 s26, %s, 22' % c.sL); a('s_add_u32 s25, s25, s26'); a('s_add_u32 s25, s25, 0x%x' % c.WS_KV[0])
    a('s_waitcnt lgkmcnt(0)')
    for i in range(4):
        a('s_add_u32 s26, s25, %d' % (i * 4096))
        g.vmi('buffer_store_dwordx4 v[%d:%d], %s, %s, s26 offen sc1' % (188 + 4 * i, 191 + 4 * i, c.vT16, c.SRD_WS), 'kv')
    a('''
    v_and_b32 v186, 31, v1
    v_lshrrev_b32 v187, 5, v1
    v_lshlrev_b32 v204, 12, v187
    v_lshl_add_u32 v204, v186, 4, v204
    v_add_u32 v%d, %d, v204
    ''' % (VKA, c.IMG_K))
    a('s_lshl_b32 s25, %s, 9' % c.sW); a('s_add_u32 s26, s25, %d' % c.IMG_Q); a('v_add_u32 v205, s26, v204')
    a('s_sub_u32 s26, %d, s25' % (c.IMG_Q + 7 * 512)); a('v_add_u32 v206, s26, v204')
    a('ds_read_b128 v[%d:%d], v205' % (QA, QA + 3)); a('ds_read_b128 v[%d:%d], v206' % (QB, QB + 3))
    a('v_and_b32 v205, 15, v186')
    a('v_xor_b32 v206, v187, v205'); a('v_lshlrev_b32 v206, 4, v206'); a('v_lshl_add_u32 v206, v205, 9, v206'); a('v_add_u32 v206, %d, v206' % c.IMG_V)
    a('v_xor_b32 v207, 32, v206')
    a('v_cmp_gt_u32 vcc, 16, v186')
    a('v_mov_b32 v208, %d' % c.ONES)
    a('v_cndmask_b32 v206, v208, v206, vcc'); a('v_cndmask_b32 v207, v208, v207, vcc')
    for t in range(4):
        a('v_xor_b32 v%d, %d, v206' % (VA0 + t, 64 * t)); a('v_xor_b32 v%d, %d, v207' % (VA1 + t, 64 * t))
    a('v_lshlrev_b32 v205, 2, v187'); a('v_sub_u32 v205, v186, v205')
    a('v_mov_b32 v208, 0x%x' % NEGBIG); a('v_mov_b32 v209, 0')
    for r0 in range(0, 16, 4):
        for k in range(4):
            r = r0 + k; key = (r & 3) + 8 * (r >> 2)
            a('v_cmp_le_i32 s[%d:%d], %d, v205' % (28 + 2 * k, 29 + 2 * k, key))
        for k in range(4):
            r = r0 + k
            a('v_cndmask_b32 v%d, v208, v209, s[%d:%d]' % (MBD + r, 28 + 2 * k, 29 + 2 * k))
            a('v_cndmask_b32 v%d, v209, v208, s[%d:%d]' % (MBA + r, 28 + 2 * k, 29 + 2 * k))
    for r in range(16):
        a('v_mov_b32 v%d, 0' % (OA + r)); a('v_mov_b32 v%d, 0' % (OB + r))

    def steps_code(steps, halo, hook=None):
        koff = (c.IMG_KH - c.IMG_K) if halo else 0
        voff = 16384 if halo else 0
        def kread(n):
            blk, t, mk = steps[n]
            b = K0 if n % 2 == 0 else K1
            a('ds_read_b128 v[%d:%d], v%d offset:%d' % (b, b + 3, VKA, koff + t * 512))
        def vread(n):
            blk, t, mk = steps[n]
            lo, hi = VB[n % 2]
            a('ds_read_b128 v[%d:%d], v%d offset:%d' % (lo, lo + 3, VA0 + (t & 3), voff + (t >> 2) * 256))
            a('ds_read_b128 v[%d:%d], v%d offset:%d' % (hi, hi + 3, VA1 + (t & 3), voff + (t >> 2) * 256))
        def smfma(n):
            blk, t, mk = steps[n]
            b = K0 if n % 2 == 0 else K1; q = QA if blk == 0 else QB; s = S[n % 2]
            cc = '0' if not mk else ('v[%d:%d]' % ((MBA, MBA + 15) if halo else (MBD, MBD + 15)))
            a('v_mfma_f32_32x32x16_bf16 v[%d:%d], v[%d:%d], v[%d:%d], %s' % (s, s + 15, b, b + 3, q, q + 3, cc))
        N = len(steps)
        kread(0); kread(1); vread(0)
        a('s_waitcnt lgkmcnt(3)')
        smfma(0)
        for n in range(N):
            blk = steps[n][0]; o = OA if blk == 0 else OB; s = S[n % 2]; lo, hi = VB[n % 2]
            more = n + 1 < N
            if more:
                a('s_waitcnt lgkmcnt(2)')
                smfma(n + 1)
                if n + 2 < N: kread(n + 2)
                vread(n + 1)
                newer = (1 if n + 2 < N else 0) + 2
            else:
                newer = 0
            for r in range(8): a('v_exp_f32 v%d, v%d' % (s + r, s + r))
            for r in range(4): a('v_cvt_pk_bf16_f32 v%d, v%d, v%d' % (P + r, s + 2 * r, s + 2 * r + 1))
            a('v_exp_f32 v%d, v%d' % (s + 8, s + 8)); a('v_exp_f32 v%d, v%d' % (s + 9, s + 9))
            a('s_waitcnt lgkmcnt(%d)' % (newer + 1))
            a('v_mfma_f32_32x32x16_bf16 v[%d:%d], v[%d:%d], v[%d:%d], v[%d:%d]' % (o, o + 15, lo, lo + 3, P, P + 3, o, o + 15))
            for r in range(10, 16): a('v_exp_f32 v%d, v%d' % (s + r, s + r))
            for r in range(4, 8): a('v_cvt_pk_bf16_f32 v%d, v%d, v%d' % (P + r, s + 2 * r, s + 2 * r + 1))
            a('s_waitcnt lgkmcnt(%d)' % newer)
            a('v_mfma_f32_32x32x16_bf16 v[%d:%d], v[%d:%d], v[%d:%d], v[%d:%d]' % (o, o + 15, hi, hi + 3, P + 4, P + 7, o, o + 15))
            if hook: hook(n)

    def kv_flag_hook(n):
        if n == 1:
            a('s_waitcnt vmcnt(0)')
            flag_store(g, c.FL_KV)
            ffn_stage(g)
    Ljoin = a.newlabel('OWNJ')
    labs = [a.newlabel('OWN') for _ in range(4)]
    a('s_waitcnt lgkmcnt(0)')
    for w in range(1, 4):
        a('s_cmp_eq_u32 %s, %d' % (c.sW, w)); a('s_cbranch_scc1 %s' % labs[w])
    for w in range(4):
        a.label(labs[w])
        st = [(0, t, t == w) for t in range(w + 1)] + [(1, t, t == 7 - w) for t in range(8 - w)]
        steps_code(st, False, kv_flag_hook)
        if w < 3: a('s_branch %s' % Ljoin)
    a.label(Ljoin)
    g.vm = []
    g.ts(4)
    a('s_waitcnt vmcnt(0)')
    ffn_frags(g)
    g.srd(12, c.P_WO, 512 * 1024)
    a('v_lshl_add_u32 v205, %s, 10, %s' % (c.vWROW, c.vWH))
    a('s_and_b32 s25, %s, 7' % c.sH); a('s_lshl_b32 s25, s25, 7'); a('s_lshl_b32 s26, %s, 5' % c.sW); a('s_add_u32 s25, s25, s26')
    Lnoh = a.newlabel('NOHALO')
    def wo_dma():
        for s in range(16):
            a('s_add_u32 m0, %s, %d' % (c.sRING, s * 1024)); a('s_add_u32 s26, s25, %d' % (s * 32768))
            a('buffer_load_dwordx4 v205, %s, s26 offen lds' % c.SRD_T)
    Lj0 = a.newlabel('J0')
    a('s_cmp_eq_u32 %s, 0' % c.sJ); a('s_cbranch_scc1 %s' % Lj0)
    a('s_sub_u32 s27, %s, 1' % c.sB); a('s_lshl_b32 s27, s27, 7'); a('s_lshl_b32 s26, %s, 15' % c.sL); a('s_add_u32 s27, s27, s26'); a('s_add_u32 s27, s27, 0x%x' % c.FL(c.FL_KV))
    a('v_and_b32 v206, 3, v1'); a('v_lshlrev_b32 v206, 2, v206')
    poll(g, 'v206', 's27', 2)
    g.srd(12, c.P_WO, 512 * 1024)
    a('s_lshl_b32 s27, %s, 5' % c.sJ); a('s_add_u32 s27, s27, %s' % c.sH); a('s_sub_u32 s27, s27, 32'); a('s_lshl_b32 s27, s27, 14')
    a('s_lshl_b32 s26, %s, 22' % c.sL); a('s_add_u32 s27, s27, s26'); a('s_lshl_b32 s26, %s, 12' % c.sW); a('s_add_u32 s27, s27, s26'); a('s_add_u32 s27, s27, 0x%x' % c.WS_KV[0])
    a('s_add_u32 m0, s26, %d' % c.IMG_KH)
    for i in range(4): a('buffer_load_dwordx4 %s, %s, s27 offen offset:%d sc1 lds' % (c.vL16, c.SRD_WS, i * 1024))
    wo_dma()
    a('s_waitcnt vmcnt(16)'); a('s_barrier')
    Lhj = a.newlabel('HALJ'); labs = [a.newlabel('HAL') for _ in range(4)]
    for w in range(1, 4):
        a('s_cmp_eq_u32 %s, %d' % (c.sW, w)); a('s_cbranch_scc1 %s' % labs[w])
    for w in range(4):
        a.label(labs[w])
        st = [(0, t, t == w) for t in range(w, 8)] + [(1, t, t == 7 - w) for t in range(7 - w, 8)]
        steps_code(st, True)
        a('s_branch %s' % Lhj)
    a.label(Lj0)
    wo_dma()
    a.label(Lhj)
    g.ts(5)
    for blk, o in ((0, OA), (1, OB)):
        Lok = a.newlabel('SMOK')
        a('s_mov_b32 s25, 0x21800000'); a('s_mov_b32 s26, 0x5d800000')
        a('s_nop 4')
        a('v_cmp_nle_f32 vcc, s25, v%d' % (o + 8)); a('v_cmp_nge_f32 s[28:29], s26, v%d' % (o + 8))
        a('s_or_b64 vcc, vcc, s[28:29]')
        if opt.force_slow: a('s_mov_b64 vcc, 1')
        a('s_cmp_eq_u64 vcc, 0'); a('s_cbranch_scc1 %s' % Lok)
        slow_softmax(g, blk, o, QA if blk == 0 else QB, MBD, MBA, VA0, VA1, VKA)
        a.label(Lok)
    a('s_lshl_b32 s25, %s, 5' % c.sJ); a('s_add_u32 s25, s25, %s' % c.sH); a('s_lshl_b32 s25, s25, 13')
    a('s_lshl_b32 s26, %s, 21' % c.sL); a('s_add_u32 s25, s25, s26'); a('s_add_u32 s25, s25, 0x%x' % c.WS_O[0])
    a('s_lshl_b32 s26, %s, 10' % c.sW); a('s_add_u32 s27, s25, s26'); a('s_sub_u32 s28, s25, s26'); a('s_add_u32 s28, s28, %d' % (7 * 1024))
    a('v_and_b32 v186, 31, v1'); a('v_lshrrev_b32 v187, 5, v1'); a('v_lshlrev_b32 v186, 5, v186'); a('v_lshl_add_u32 v186, v187, 4, v186')
    for blk, o, so, d in ((0, OA, 's27', 188), (1, OB, 's28', 192)):
        a('v_rcp_f32 v187, v%d' % (o + 8)); a('s_nop 0')
        for r in range(8): a('v_mul_f32 v%d, v187, v%d' % (o + r, o + r))
        for r in range(4): a('v_cvt_pk_bf16_f32 v%d, v%d, v%d' % (d + r, o + 2 * r, o + 2 * r + 1))
        a('v_permlane32_swap_b32 v%d, v%d' % (d, d + 2)); a('v_permlane32_swap_b32 v%d, v%d' % (d + 1, d + 3))
        a('buffer_store_dwordx4 v[%d:%d], v186, %s, %s offen sc1' % (d, d + 3, c.SRD_WS, so))
    a('s_waitcnt vmcnt(0)')
    flag_store(g, c.FL_O)
    g.ts(6)

def slow_softmax(g, blk, o, q, MBD, MBA, VA0, VA1, VKA):
    a = g.a; c = C
    S = 72; CM = 88; P = 104; K = 48; VL = 56; VH = 60; MX = 208
    if blk == 0: a('s_mov_b32 s28, %s' % c.sW)
    else: a('s_sub_u32 s28, 7, %s' % c.sW)
    a('s_add_u32 s29, s28, 1'); a('s_cmp_eq_u32 %s, 0' % c.sJ); a('s_cselect_b32 s29, s29, 9')
    a('v_mov_b32 v%d, 0x%x' % (MX, NEGBIG))
    def tile_setup(n):
        La = a.newlabel('SLH'); Lb = a.newlabel('SLB'); Lm = a.newlabel('SLM'); Lz = a.newlabel('SLZ'); Ld = a.newlabel('SLD')
        a('s_cmp_gt_u32 s30, s28'); a('s_cbranch_scc1 %s' % La)
        a('s_mov_b32 s32, s30'); a('s_mov_b32 s33, 0'); a('s_branch %s' % Lb)
        a.label(La); a('s_sub_u32 s32, s30, 1'); a('s_mov_b32 s33, 16384')
        a.label(Lb)
        a('s_lshl_b32 s31, s32, 9'); a('s_add_u32 s31, s31, s33')
        a('v_add_u32 v209, s31, v%d' % VKA); a('ds_read_b128 v[%d:%d], v209' % (K, K + 3))
        a('s_cmp_eq_u32 s32, s28'); a('s_cbranch_scc0 %s' % Lz)
        a('s_cmp_eq_u32 s33, 0'); a('s_cbranch_scc0 %s' % Lm)
        for r in range(16): a('v_mov_b32 v%d, v%d' % (CM + r, MBD + r))
        a('s_branch %s' % Ld)
        a.label(Lm)
        for r in range(16): a('v_mov_b32 v%d, v%d' % (CM + r, MBA + r))
        a('s_branch %s' % Ld)
        a.label(Lz)
        for r in range(16): a('v_mov_b32 v%d, 0' % (CM + r))
        a.label(Ld)
    L1 = a.newlabel('SLP1'); a('s_mov_b32 s30, 0'); a.label(L1)
    tile_setup(1)
    a('s_waitcnt lgkmcnt(0)')
    a('v_mfma_f32_32x32x16_bf16 v[%d:%d], v[%d:%d], v[%d:%d], v[%d:%d]' % (S, S + 15, K, K + 3, q, q + 3, CM, CM + 15))
    a('s_nop 15')
    for r in range(0, 16, 2): a('v_max3_f32 v%d, v%d, v%d, v%d' % (MX, MX, S + r, S + r + 1))
    a('s_add_u32 s30, s30, 1'); a('s_cmp_lt_u32 s30, s29'); a('s_cbranch_scc1 %s' % L1)
    a('v_mov_b32 v209, v%d' % MX); a('s_nop 1'); a('v_permlane32_swap_b32 v%d, v209' % MX); a('v_max_f32 v%d, v%d, v209' % (MX, MX))
    for r in range(16): a('v_mov_b32 v%d, 0' % (o + r))
    L2 = a.newlabel('SLP2'); a('s_mov_b32 s30, 0'); a.label(L2)
    tile_setup(2)
    for r in range(16): a('v_sub_f32 v%d, v%d, v%d' % (CM + r, CM + r, MX))
    a('s_lshl_b32 s31, s32, 6')
    a('v_xor_b32 v209, s31, v%d' % VA0); a('v_add_u32 v209, s33, v209'); a('ds_read_b128 v[%d:%d], v209' % (VL, VL + 3))
    a('v_xor_b32 v209, s31, v%d' % VA1); a('v_add_u32 v209, s33, v209'); a('ds_read_b128 v[%d:%d], v209' % (VH, VH + 3))
    a('s_waitcnt lgkmcnt(0)')
    a('v_mfma_f32_32x32x16_bf16 v[%d:%d], v[%d:%d], v[%d:%d], v[%d:%d]' % (S, S + 15, K, K + 3, q, q + 3, CM, CM + 15))
    a('s_nop 15')
    for r in range(16): a('v_exp_f32 v%d, v%d' % (S + r, S + r))
    a('s_nop 0')
    for r in range(8): a('v_cvt_pk_bf16_f32 v%d, v%d, v%d' % (P + r, S + 2 * r, S + 2 * r + 1))
    a('s_nop 1')
    a('v_mfma_f32_32x32x16_bf16 v[%d:%d], v[%d:%d], v[%d:%d], v[%d:%d]' % (o, o + 15, VL, VL + 3, P, P + 3, o, o + 15))
    a('v_mfma_f32_32x32x16_bf16 v[%d:%d], v[%d:%d], v[%d:%d], v[%d:%d]' % (o, o + 15, VH, VH + 3, P + 4, P + 7, o, o + 15))
    a('s_add_u32 s30, s30, 1'); a('s_cmp_lt_u32 s30, s29'); a('s_cbranch_scc1 %s' % L2)
    a('s_nop 15')

def ffn_stage(g):
    a = g.a; c = C
    L = a.newlabel('NOFST')
    a('s_cmp_lg_u32 %s, 0' % c.sL); a('s_cbranch_scc1 %s' % L)
    a('s_cmp_ge_u32 %s, 56' % c.sB); a('s_cbranch_scc1 %s' % L)
    a('s_cmp_ge_u32 %s, 2' % c.sW)
    a('s_cselect_b32 s12, s%d, s%d' % (c.P_WU, c.P_WG)); a('s_cselect_b32 s13, s%d, s%d' % (c.P_WU + 1, c.P_WG + 1))
    a('s_and_b32 s13, s13, 0xffff'); a('s_mov_b32 s14, 0x%x' % (512 * 3584)); a('s_mov_b32 s15, 0x20000')
    a('s_mov_b32 s28, 3584'); a('v_mul_lo_u32 v205, %s, s28' % c.vWROW); a('v_add_u32 v205, v205, %s' % c.vWH)
    a('s_lshl_b32 s27, %s, 6' % c.sB); a('s_and_b32 s28, %s, 1' % c.sW); a('s_lshl_b32 s28, s28, 5'); a('s_add_u32 s27, s27, s28')
    for s in range(16):
        a('s_add_u32 m0, %s, %d' % (c.sRING, s * 1024)); a('s_add_u32 s28, s27, %d' % (s * 32 * 3584))
        a('buffer_load_dwordx4 v205, %s, s28 offen lds' % c.SRD_T)
    g.srd(12, c.P_WD, 1792 * 1024)
    a('v_lshl_add_u32 v205, %s, 10, %s' % (c.vWROW, c.vWH))
    a('s_lshl_b32 s27, %s, 15' % c.sB); a('s_lshl_b32 s28, %s, 8' % c.sW); a('s_add_u32 s27, s27, s28')
    for t in range(8):
        a('s_add_u32 m0, %s, %d' % (c.sRING, 16384 + t * 1024)); a('s_add_u32 s28, s27, %d' % (t * 32))
        a('buffer_load_dwordx4 v205, %s, s28 offen lds' % c.SRD_T)
    a.label(L)

def ffn_frags(g):
    a = g.a; c = C
    L = a.newlabel('NOFFR')
    a('s_cmp_lg_u32 %s, 0' % c.sL); a('s_cbranch_scc1 %s' % L)
    a('s_cmp_ge_u32 %s, 56' % c.sB); a('s_cbranch_scc1 %s' % L)
    a('v_add_u32 v205, %s, %s' % (c.sRING, c.vTR))
    for s in range(16):
        a('ds_read_b64_tr_b16 a[%d:%d], v205 offset:%d' % (192 + 4 * s, 193 + 4 * s, s * 1024))
        a('ds_read_b64_tr_b16 a[%d:%d], v205 offset:%d' % (194 + 4 * s, 195 + 4 * s, s * 1024 + 256))
    for t in range(8):
        a('ds_read_b64_tr_b16 v[%d:%d], v205 offset:%d' % (c.FDW + 4 * t, c.FDW + 4 * t + 1, 16384 + t * 1024))
        a('ds_read_b64_tr_b16 v[%d:%d], v205 offset:%d' % (c.FDW + 4 * t + 2, c.FDW + 4 * t + 3, 16384 + t * 1024 + 256))
    a('s_waitcnt lgkmcnt(0)')
    a.label(L)


sSW = 's44'

def poll_yflags(g, layer_expr_sreg, code):
    a = g.a; c = C
    a('v_min_u32 v206, 55, v1'); a('v_lshlrev_b32 v206, 7, v206')
    poll(g, 'v206', layer_expr_sreg, code, width=4)

def blayer(g, dst, ylayer, code):
    a = g.a; c = C
    a('v_lshlrev_b32 v186, 4, %s' % c.vTOK); a('v_add_u32 v186, %d, v186' % c.LT)
    for tt in range(4): a('ds_read_b64 v[%d:%d], v186 offset:%d' % (188 + 2 * tt, 189 + 2 * tt, tt * 256))
    for tt in range(4):
        for k in range(2):
            a('v_lshlrev_b32 v%d, 16, v%d' % (dst + 4 * tt + 2 * k, c.XT + 2 * tt + k))
            a('v_and_b32 v%d, 0xffff0000, v%d' % (dst + 4 * tt + 2 * k + 1, c.XT + 2 * tt + k))
    a('s_waitcnt lgkmcnt(0)')
    for tt in range(4):
        m, s = 188 + 2 * tt, 189 + 2 * tt
        a('v_mul_f32 v%d, v%d, v%d' % (m, m, s)); a('v_add_f32 v%d, 1.0, v%d' % (s, s))
        for r in range(4): a('v_fma_f32 v%d, v%d, v%d, -v%d' % (dst + 4 * tt + r, dst + 4 * tt + r, s, m))
    L = a.newlabel('NOY')
    a('s_lshr_b32 s25, %s, 8' % c.sSEL); a('s_cmp_lg_u32 s25, %s' % c.sJ); a('s_cbranch_scc1 %s' % L)
    a('s_lshr_b32 s25, %s, 6' % c.sSEL); a('s_and_b32 s25, s25, 3'); a('s_lshr_b32 s26, %s, 3' % c.sH); a('s_cmp_lg_u32 s25, s26'); a('s_cbranch_scc1 %s' % L)
    a('s_mov_b32 s27, 0x%x' % c.FL(c.FL_Y + ylayer))
    poll_yflags(g, 's27', code)
    a('s_and_b32 s25, %s, 7' % c.sH); a('s_lshl_b32 s25, s25, 8'); a('s_lshl_b32 s26, %s, 6' % c.sW); a('s_add_u32 s25, s25, s26'); a('s_add_u32 s25, s25, 0x%x' % c.WS_Y[ylayer])
    a('v_lshlrev_b32 v186, 4, %s' % c.vG)
    for rep in range(c.YR):
        a('s_add_u32 s26, s25, %d' % (rep * 2048))
        a('buffer_load_dwordx4 v[%d:%d], v186, %s, s26 offen sc1' % (196 + 4 * rep, 199 + 4 * rep, c.SRD_WS))
    a('s_waitcnt vmcnt(0)')
    for rep in range(1, c.YR):
        for r in range(4): a('v_add_f32 v%d, v%d, v%d' % (196 + r, 196 + r, 196 + 4 * rep + r))
    a('s_and_b32 s25, %s, 63' % c.sSEL)
    for tt in range(4):
        a('v_add_u32 v186, %d, %s' % (16 * tt, c.vTOK)); a('v_cmp_eq_u32 vcc, s25, v186')
        a('v_cndmask_b32 v187, 0, 1.0, vcc')
        for r in range(4): a('v_fmac_f32 v%d, v187, v%d' % (dst + 4 * tt + r, 196 + r))
    a.label(L)

def tile_image_write(g, src_packed):
    a = g.a; c = C
    a('v_lshrrev_b32 v186, 1, %s' % c.vG); a('s_lshl_b32 s25, %s, 1' % c.sW); a('v_add_u32 v186, s25, v186')
    a('v_lshrrev_b32 v187, 1, %s' % c.vTOK); a('v_xor_b32 v186, v186, v187'); a('v_lshlrev_b32 v186, 4, v186')
    a('v_lshl_add_u32 v186, %s, 7, v186' % c.vTOK); a('v_and_b32 v187, 1, %s' % c.vG); a('v_lshl_add_u32 v186, v187, 3, v186')
    a('v_add_u32 v186, %d, v186' % c.IMG_Q)
    for tt in range(4): a('ds_write_b64 v186, v[%d:%d] offset:%d' % (src_packed + 2 * tt, src_packed + 2 * tt + 1, tt * 2048))

def outproj(ctx):
    g, a, opt = ctx['g'], ctx['a'], ctx['opt']; c = C
    WO, FR, ACC = 40, 104, 136
    a('v_add_u32 v205, %s, %s' % (c.sRING, c.vTR))
    for s in range(16):
        a('ds_read_b64_tr_b16 v[%d:%d], v205 offset:%d' % (WO + 4 * s, WO + 4 * s + 1, s * 1024))
        a('ds_read_b64_tr_b16 v[%d:%d], v205 offset:%d' % (WO + 4 * s + 2, WO + 4 * s + 3, s * 1024 + 256))
    L0 = a.newlabel('OPL0')
    a('s_cmp_lg_u32 %s, 0' % c.sL); a('s_cbranch_scc1 %s' % L0)
    a('s_lshl_b32 s25, %s, 8' % c.sJ); a('s_lshr_b32 s26, %s, 3' % c.sH); a('s_lshl_b32 s26, s26, 6'); a('s_add_u32 s25, s25, s26'); a('s_lshl_b32 s25, s25, 10')
    a('s_and_b32 s26, %s, 7' % c.sH); a('s_lshl_b32 s26, s26, 7'); a('s_lshl_b32 s27, %s, 5' % c.sW); a('s_add_u32 s26, s26, s27'); a('s_add_u32 s25, s25, s26')
    a('v_lshlrev_b32 v186, 3, %s' % c.vG); a('v_lshl_add_u32 v187, %s, 10, v186' % c.vTOK)
    for tt in range(4):
        a('s_add_u32 s27, s25, %d' % (tt * 16384))
        a('buffer_load_dwordx2 v[%d:%d], v187, %s, s27 offen' % (c.XT + 2 * tt, c.XT + 2 * tt + 1, c.SRD_X0))
    g.srd(12, c.P_WR, 1024)
    a('buffer_load_dwordx2 v[188:189], v186, %s, s26 offen' % c.SRD_T)
    a('buffer_load_dwordx4 v[192:195], %s, %s, 0 offen' % (c.vL16, c.SRD_T))
    a('s_waitcnt vmcnt(0)')
    for k in range(2):
        a('v_lshlrev_b32 v%d, 16, v%d' % (c.WRS + 2 * k, 188 + k)); a('v_and_b32 v%d, 0xffff0000, v%d' % (c.WRS + 2 * k + 1, 188 + k))
    for k in range(4):
        a('v_lshlrev_b32 v%d, 16, v%d' % (196 + 2 * k, 192 + k)); a('v_and_b32 v%d, 0xffff0000, v%d' % (197 + 2 * k, 192 + k))
    for k in range(1, 8): a('v_add_f32 v196, v196, v%d' % (196 + k))
    ctx['allreduce']([196], 197)
    a('v_readfirstlane_b32 %s, v196' % sSW)
    a.label(L0)
    a('s_waitcnt lgkmcnt(0)'); a('s_barrier')
    a('s_lshr_b32 s25, %s, 3' % c.sH)
    a('s_add_u32 s26, s25, 1'); a('s_and_b32 s26, s26, 2')
    a('v_and_b32 v186, 1, v1'); a('v_add_u32 v186, s26, v186'); a('v_lshlrev_b32 v186, 2, v186')
    a('v_lshrrev_b32 v187, 1, v1'); a('v_lshl_add_u32 v186, v187, 10, v186')
    a('s_lshl_b32 s27, %s, 7' % c.sJ); a('s_lshl_b32 s26, %s, 15' % c.sL); a('s_add_u32 s27, s27, s26'); a('s_add_u32 s27, s27, 0x%x' % c.FL(c.FL_O))
    poll(g, 'v186', 's27', 3)
    g.ts(7)
    a('s_lshl_b32 s26, %s, 18' % c.sJ); a('s_lshl_b32 s27, %s, 21' % c.sL); a('s_add_u32 s26, s26, s27')
    a('s_lshl_b32 s27, s25, 11'); a('s_add_u32 s26, s26, s27')
    a('s_lshr_b32 s27, %s, 1' % c.sW); a('s_lshl_b32 s28, s27, 13'); a('s_add_u32 s26, s26, s28'); a('s_lshl_b32 s27, s27, 11')
    a('s_and_b32 s28, %s, 1' % c.sW); a('s_lshl_b32 s28, s28, 10'); a('s_add_u32 s26, s26, s28'); a('s_add_u32 s27, s27, s28')
    a('s_add_u32 s26, s26, 0x%x' % c.WS_O[0])
    for n in range(16):
        a('s_add_u32 m0, s27, %d' % (n * 4096)); a('s_add_u32 s28, s26, %d' % (n * 16384))
        a('buffer_load_dwordx4 %s, %s, s28 offen sc1 lds' % (c.vL16, c.SRD_WS))
    a('v_lshrrev_b32 v186, 1, %s' % c.vG); a('v_lshlrev_b32 v186, 11, v186'); a('v_lshl_add_u32 v186, %s, 5, v186' % c.vTOK)
    a('v_and_b32 v187, 1, %s' % c.vG); a('v_lshl_add_u32 v186, v187, 4, v186')
    def reads(s):
        for tt in range(4):
            b = FR + 16 * (s & 1) + 4 * tt
            a('ds_read_b128 v[%d:%d], v186 offset:%d' % (b, b + 3, s * 4096 + tt * 512))
    def mf(s):
        for tt in range(4):
            b = FR + 16 * (s & 1) + 4 * tt; o = ACC + 4 * tt
            a('v_mfma_f32_16x16x32_bf16 v[%d:%d], v[%d:%d], v[%d:%d], %s' % (o, o + 3, WO + 4 * s, WO + 4 * s + 3, b, b + 3, '0' if s == 0 else 'v[%d:%d]' % (o, o + 3)))
    for st in range(4):
        a('s_waitcnt vmcnt(%d)' % (12 - 4 * st)); a('s_barrier')
        for s in range(4 * st, 4 * st + 4):
            reads(s)
            if s > 0:
                a('s_waitcnt lgkmcnt(4)'); mf(s - 1)
    a('s_waitcnt lgkmcnt(0)'); mf(15)
    g.ts(8)
    BASE = 152
    Lb1 = a.newlabel('OPB1'); Lb2 = a.newlabel('OPB2')
    a('s_cmp_lg_u32 %s, 0' % c.sL); a('s_cbranch_scc1 %s' % Lb1)
    for tt in range(4):
        for k in range(2):
            a('v_lshlrev_b32 v%d, 16, v%d' % (BASE + 4 * tt + 2 * k, c.XT + 2 * tt + k))
            a('v_and_b32 v%d, 0xffff0000, v%d' % (BASE + 4 * tt + 2 * k + 1, c.XT + 2 * tt + k))
    a('s_branch %s' % Lb2)
    a.label(Lb1)
    blayer(g, BASE, 0, 4)
    a.label(Lb2)
    for i in range(16): a('v_add_f32 v%d, v%d, v%d' % (BASE + i, BASE + i, ACC + i))
    for tt in range(4):
        for k in range(2): a('v_cvt_pk_bf16_f32 v%d, v%d, v%d' % (c.XT + 2 * tt + k, BASE + 4 * tt + 2 * k, BASE + 4 * tt + 2 * k + 1))
    tile_image_write(g, c.XT)
    for tt in range(4):
        for k in range(2):
            a('v_lshlrev_b32 v%d, 16, v%d' % (BASE + 4 * tt + 2 * k, c.XT + 2 * tt + k))
            a('v_and_b32 v%d, 0xffff0000, v%d' % (BASE + 4 * tt + 2 * k + 1, c.XT + 2 * tt + k))
    for tt in range(4):
        x = BASE + 4 * tt
        a('v_add_f32 v%d, v%d, v%d' % (168 + tt, x, x + 1)); a('v_mul_f32 v%d, v%d, v%d' % (172 + tt, x, x)); a('v_mul_f32 v%d, v%d, v%d' % (176 + tt, x, c.WRS))
        a('v_add_f32 v%d, v%d, v%d' % (168 + tt, 168 + tt, x + 2)); a('v_fmac_f32 v%d, v%d, v%d' % (172 + tt, x + 1, x + 1)); a('v_fmac_f32 v%d, v%d, v%d' % (176 + tt, x + 1, c.WRS + 1))
        a('v_add_f32 v%d, v%d, v%d' % (168 + tt, 168 + tt, x + 3)); a('v_fmac_f32 v%d, v%d, v%d' % (172 + tt, x + 2, x + 2)); a('v_fmac_f32 v%d, v%d, v%d' % (176 + tt, x + 2, c.WRS + 2))
        a('v_fmac_f32 v%d, v%d, v%d' % (172 + tt, x + 3, x + 3)); a('v_fmac_f32 v%d, v%d, v%d' % (176 + tt, x + 3, c.WRS + 3))
    qs = (168, 172, 176)
    for q in qs:
        a('v_permlane32_swap_b32 v%d, v%d' % (q, q + 2)); a('v_permlane32_swap_b32 v%d, v%d' % (q + 1, q + 3))
    for q in qs:
        a('v_add_f32 v%d, v%d, v%d' % (q, q, q + 2)); a('v_add_f32 v%d, v%d, v%d' % (q + 1, q + 1, q + 3))
    for q in qs: a('v_permlane16_swap_b32 v%d, v%d' % (q, q + 1))
    for k, q in enumerate(qs): a('v_add_f32 v%d, v%d, v%d' % (180 + k, q, q + 1))
    a('v_mov_b32 v183, %s' % c.sT)
    a('s_lshl_b32 s25, %s, 10' % c.sW); a('s_add_u32 s25, s25, %d' % c.PART); a('v_add_u32 v186, s25, %s' % c.vL16)
    a('ds_write_b128 v186, v[180:183]')
    a('s_waitcnt lgkmcnt(0)'); a('s_barrier')
    a('v_add_u32 v186, %d, %s' % (c.IMG_Q, c.vT16))
    a('ds_read_b128 v[188:191], v186'); a('ds_read_b128 v[192:195], v186 offset:4096')
    a('s_lshl_b32 s25, %s, 3' % c.sJ); a('s_and_b32 s26, %s, 7' % c.sH); a('s_add_u32 s25, s25, s26'); a('s_lshl_b32 s25, s25, 15')
    a('s_lshr_b32 s27, %s, 3' % c.sH); a('s_lshl_b32 s27, s27, 13'); a('s_add_u32 s25, s25, s27')
    a('s_lshl_b32 s27, %s, 21' % c.sL); a('s_add_u32 s25, s25, s27'); a('s_add_u32 s25, s25, 0x%x' % c.WS_X[0]); a('s_add_u32 s28, s25, 4096')
    Lw = a.newlabel('OPW0')
    a('s_cmp_lg_u32 %s, 0' % c.sW); a('s_cbranch_scc1 %s' % Lw)
    a('v_add_u32 v187, %d, %s' % (c.PART, c.vL16))
    for k in range(4): a('ds_read_b128 v[%d:%d], v187 offset:%d' % (196 + 4 * k, 199 + 4 * k, k * 1024))
    a('s_waitcnt lgkmcnt(0)')
    for k in range(1, 4):
        for r in range(3): a('v_add_f32 v%d, v%d, v%d' % (196 + r, 196 + r, 196 + 4 * k + r))
    a('s_lshl_b32 s29, %s, 8' % c.sJ); a('s_lshr_b32 s27, %s, 3' % c.sH); a('s_lshl_b32 s27, s27, 6'); a('s_add_u32 s29, s29, s27'); a('s_lshl_b32 s29, s29, 7')
    a('s_lshl_b32 s27, s26, 4'); a('s_add_u32 s29, s29, s27'); a('s_lshl_b32 s27, %s, 18' % c.sL); a('s_add_u32 s29, s29, s27'); a('s_add_u32 s29, s29, 0x%x' % c.WS_P[0])
    a('v_lshlrev_b32 v187, 7, v1')
    a('buffer_store_dwordx4 v[196:199], v187, %s, s29 offen sc1' % c.SRD_WS)
    a.label(Lw)
    a('s_waitcnt lgkmcnt(0)')
    a('buffer_store_dwordx4 v[188:191], %s, %s, s25 offen sc1' % (c.vT16, c.SRD_WS))
    a('buffer_store_dwordx4 v[192:195], %s, %s, s28 offen sc1' % (c.vT16, c.SRD_WS))
    a('s_waitcnt vmcnt(0)')
    flag_store(g, c.FL_X)
    g.ts(9)
    a('s_lshl_b32 s29, %s, 8' % c.sJ); a('s_lshr_b32 s27, %s, 3' % c.sH); a('s_lshl_b32 s27, s27, 6'); a('s_add_u32 s29, s29, s27'); a('s_lshl_b32 s29, s29, 7')
    a('s_lshl_b32 s27, %s, 18' % c.sL); a('s_add_u32 s29, s29, s27'); a('s_add_u32 s29, s29, 0x%x' % c.WS_P[0]); a('s_add_u32 s30, s29, 4096')
    poll(g, c.vT16, 's29', 5, width='g', dst=188)
    poll(g, c.vT16, 's30', 6, width='g', dst=192)
    regs = [188, 189, 190, 192, 193, 194]
    for pat in ('quad_perm:[1,0,3,2]', 'quad_perm:[2,3,0,1]', 'row_half_mirror'):
        for r in regs: a('v_add_f32_dpp v%d, v%d, v%d %s row_mask:0xf bank_mask:0xf' % (r, r, r, pat))
    a('s_mov_b32 s25, 0x3b000000'); a('s_mov_b32 s26, 0x3727c5ac')
    for b in (188, 192):
        a('v_mul_f32 v%d, s25, v%d' % (b, b))
        a('v_mul_f32 v%d, s25, v%d' % (b + 1, b + 1))
        a('v_fma_f32 v%d, -v%d, v%d, v%d' % (b + 1, b, b, b + 1))
        a('v_fma_f32 v%d, -v%d, %s, v%d' % (b + 3, b, sSW, b + 2))
        a('v_add_f32 v196, s26, v%d' % (b + 1)); a('v_rsq_f32 v197, v196')
        a('s_nop 0')
        a('v_mul_f32 v%d, v197, v%d' % (b + 3, b + 3))
        a('v_add_f32 v198, 1.0, v197'); a('v_mul_f32 v199, v198, v198'); a('v_fma_f32 v199, v199, v%d, s26' % (b + 1))
        a('v_rsq_f32 v199, v199'); a('s_nop 0')
        a('v_mul_f32 v%d, v198, v199' % (b + 2))
        a('v_mov_b32 v%d, v197' % (b + 1))
    a('v_lshrrev_b32 v186, 3, v0'); a('v_lshlrev_b32 v186, 4, v186'); a('v_add_u32 v186, %d, v186' % c.LT)
    a('s_mov_b32 s28, 0x01010101'); a('s_mov_b32 s29, 0x01010101'); a('s_mov_b64 exec, s[28:29]')
    a('ds_write_b128 v186, v[188:191]'); a('ds_write_b128 v186, v[192:195] offset:512')
    a('s_mov_b64 exec, -1')
    a('s_waitcnt lgkmcnt(0)'); a('s_barrier')
    Lp = a.newlabel('OPFS')
    a('s_and_b32 s25, %s, 7' % c.sH); a('s_or_b32 s25, s25, %s' % c.sW); a('s_cmp_lg_u32 s25, 0'); a('s_cbranch_scc1 %s' % Lp)
    a('v_add_u32 v186, %d, %s' % (c.LT, c.vL16)); a('ds_read_b128 v[188:191], v186'); a('s_waitcnt lgkmcnt(0)')
    a('v_mov_b32 v192, v191'); a('v_mov_b32 v193, v191'); a('v_mov_b32 v191, %s' % c.sT)
    a('s_lshl_b32 s29, %s, 8' % c.sJ); a('s_lshr_b32 s27, %s, 3' % c.sH); a('s_lshl_b32 s27, s27, 6'); a('s_add_u32 s29, s29, s27')
    Lq = a.newlabel('OPFS1')
    a('s_cmp_lg_u32 %s, 0' % c.sL); a('s_cbranch_scc1 %s' % Lq)
    a('s_lshl_b32 s28, s29, 4'); a('s_add_u32 s28, s28, 0x%x' % c.WS_FS[1])
    a('buffer_store_dwordx4 v[188:191], %s, %s, s28 offen sc1' % (c.vL16, c.SRD_WS))
    a.label(Lq)
    ctx['allreduce']([192], 194, op='v_max_f32')
    a('v_cmp_eq_f32 vcc, v192, v193'); a('s_ff1_i32_b64 s28, vcc'); a('s_add_u32 s28, s28, s29')
    a('v_mov_b32 v193, s28'); a('v_mov_b32 v194, %s' % c.sT); a('v_mov_b32 v195, %s' % c.sT)
    a('s_lshl_b32 s28, %s, 2' % c.sJ); a('s_lshr_b32 s27, %s, 3' % c.sH); a('s_add_u32 s28, s28, s27'); a('s_lshl_b32 s28, s28, 4')
    a('s_lshl_b32 s27, %s, 12' % c.sL); a('s_add_u32 s28, s28, s27'); a('s_add_u32 s28, s28, 0x%x' % c.WS_BM[0])
    a('s_mov_b64 exec, 1')
    a('buffer_store_dwordx4 v[192:195], off, %s, s28 sc1' % c.SRD_WS)
    a('s_mov_b64 exec, -1')
    a.label(Lp)
    g.ts(10)

def get_sel(ctx, layer, code):
    g, a = ctx['g'], ctx['a']; c = C
    a('v_and_b32 v186, 31, v1'); a('v_lshlrev_b32 v186, 4, v186'); a('s_mov_b32 s27, 0x%x' % c.WS_BM[layer])
    poll(g, 'v186', 's27', code, width='g', dst=188)
    a('v_mov_b32 v192, v188')
    ctx['allreduce']([192], 194, op='v_max_f32')
    a('v_cmp_eq_f32 vcc, v192, v188'); a('s_ff1_i32_b64 s28, vcc')
    a('s_nop 3')
    a('v_readlane_b32 %s, v189, s28' % c.sSEL); a('v_readlane_b32 %s, v188, s28' % c.sRSEL)

def load_row(ctx, layer, code):
    g, a = ctx['g'], ctx['a']; c = C
    a('s_lshr_b32 s25, %s, 8' % c.sSEL)
    a('s_lshr_b32 s26, %s, 6' % c.sSEL); a('s_and_b32 s26, s26, 3')
    a('s_lshl_b32 s27, s26, 13'); a('s_lshl_b32 s28, s25, 7'); a('s_add_u32 s27, s27, s28'); a('s_add_u32 s27, s27, 0x%x' % c.FL(c.FL_X + layer))
    a('v_and_b32 v186, 31, v1'); a('v_lshrrev_b32 v187, 2, v186'); a('v_and_b32 v186, 3, v186'); a('v_lshlrev_b32 v186, 2, v186'); a('v_lshl_add_u32 v186, v187, 10, v186')
    poll(g, 'v186', 's27', code)
    a('s_and_b32 s26, %s, 255' % c.sSEL); a('s_lshl_b32 s27, s25, 18'); a('s_lshl_b32 s28, s26, 7'); a('s_add_u32 s27, s27, s28'); a('s_add_u32 s27, s27, 0x%x' % c.WS_X[layer])
    a('s_and_b32 s26, s26, 15'); a('s_lshr_b32 s26, s26, 1')
    a('v_and_b32 v186, 7, v1'); a('v_xor_b32 v186, s26, v186'); a('v_lshlrev_b32 v186, 4, v186'); a('v_lshrrev_b32 v187, 3, v1'); a('v_lshl_add_u32 v186, v187, 15, v186')
    a('buffer_load_dwordx4 v[200:203], v186, %s, s27 offen sc1' % c.SRD_WS); a('s_waitcnt vmcnt(0)')
    for k in range(4):
        a('v_lshlrev_b32 v%d, 16, v%d' % (188 + 2 * k, 200 + k)); a('v_and_b32 v%d, 0xffff0000, v%d' % (189 + 2 * k, 200 + k))
    row_stats(ctx)

def row_stats(ctx):
    g, a = ctx['g'], ctx['a']
    a('v_add_f32 v196, v188, v189'); a('v_mul_f32 v197, v188, v188'); a('v_fmac_f32 v197, v189, v189')
    for k in range(2, 8):
        a('v_add_f32 v196, v196, v%d' % (188 + k)); a('v_fmac_f32 v197, v%d, v%d' % (188 + k, 188 + k))
    ctx['allreduce']([196, 197], 198)
    a('s_mov_b32 s25, 0x3b000000'); a('s_mov_b32 s26, 0x3727c5ac')
    a('v_mul_f32 v196, s25, v196'); a('v_mul_f32 v197, s25, v197'); a('v_fma_f32 v197, -v196, v196, v197'); a('v_add_f32 v197, s26, v197'); a('v_rsq_f32 v197, v197'); a('s_nop 0')

def norm_row_to_frags(ctx, F):
    g, a = ctx['g'], ctx['a']; c = C
    for k in range(8):
        a('v_sub_f32 v%d, v%d, v196' % (188 + k, 188 + k)); a('v_mul_f32 v%d, v%d, v197' % (188 + k, 188 + k))
    for k in range(4): a('v_cvt_pk_bf16_f32 v%d, v%d, v%d' % (200 + k, 188 + 2 * k, 189 + 2 * k))
    a('s_lshl_b32 s25, %s, 10' % c.sW); a('s_add_u32 s25, s25, %d' % c.XROW)
    a('v_add_u32 v186, s25, %s' % c.vL16); a('ds_write_b128 v186, v[200:203]')
    a('v_lshlrev_b32 v186, 4, %s' % c.vG); a('v_add_u32 v186, s25, v186')
    a('s_waitcnt lgkmcnt(0)')
    for s in range(16): a('ds_read_b128 v[%d:%d], v186 offset:%d' % (F + 4 * s, F + 4 * s + 3, s * 64))
    a('s_waitcnt lgkmcnt(0)')

def ffn(ctx, layer):
    g, a = ctx['g'], ctx['a']; c = C
    L = a.newlabel('NOFFN')
    a('s_cmp_ge_u32 %s, 56' % c.sB); a('s_cbranch_scc1 %s' % L)
    get_sel(ctx, layer, 7)
    load_row(ctx, layer, 8)
    F = 104
    norm_row_to_frags(ctx, F)
    for s in range(16):
        a('v_mfma_f32_16x16x32_bf16 v[168:171], a[%d:%d], v[%d:%d], %s' % (192 + 4 * s, 195 + 4 * s, F + 4 * s, F + 4 * s + 3, '0' if s == 0 else 'v[168:171]'))
    a('s_lshl_b32 s25, %s, 6' % c.sW); a('s_add_u32 s25, s25, %d' % c.HBUF)
    a('v_lshlrev_b32 v186, 4, %s' % c.vG); a('v_add_u32 v186, s25, v186')
    a('s_mov_b32 s28, 0x00010001'); a('s_mov_b32 s29, 0x00010001'); a('s_mov_b64 exec, s[28:29]')
    a('ds_write_b128 v186, v[168:171]')
    a('s_mov_b64 exec, -1')
    a('s_waitcnt lgkmcnt(0)'); a('s_barrier')
    a('v_lshlrev_b32 v186, 5, %s' % c.vG); a('v_add_u32 v186, %d, v186' % c.HBUF)
    a('ds_read_b128 v[168:171], v186'); a('ds_read_b128 v[172:175], v186 offset:16')
    a('ds_read_b128 v[176:179], v186 offset:128'); a('ds_read_b128 v[180:183], v186 offset:144')
    a('s_waitcnt lgkmcnt(0)')
    a('s_mov_b32 s25, 0xbfb8aa3b')
    for k in range(8): a('v_mul_f32 v%d, s25, v%d' % (188 + k, 168 + k))
    for k in range(8): a('v_exp_f32 v%d, v%d' % (188 + k, 188 + k))
    for k in range(8): a('v_add_f32 v%d, 1.0, v%d' % (188 + k, 188 + k))
    for k in range(8): a('v_rcp_f32 v%d, v%d' % (188 + k, 188 + k))
    for k in range(8): a('v_mul_f32 v%d, v%d, v%d' % (168 + k, 168 + k, 176 + k))
    for k in range(8): a('v_mul_f32 v%d, v%d, v%d' % (168 + k, 168 + k, 188 + k))
    for k in range(4): a('v_cvt_pk_bf16_f32 v%d, v%d, v%d' % (184 + k, 168 + 2 * k, 169 + 2 * k))
    D = 104
    for t in range(8):
        a('v_mfma_f32_16x16x32_bf16 v[%d:%d], v[184:187], v[%d:%d], 0' % (D + 4 * t, D + 4 * t + 3, c.FDW + 4 * t, c.FDW + 4 * t + 3))
    a('v_mov_b32 v188, %s' % c.sRSEL); a('v_mul_f32 v188, s25, v188'); a('v_exp_f32 v188, v188'); a('s_nop 0'); a('v_add_f32 v188, 1.0, v188'); a('v_rcp_f32 v188, v188')
    a('v_cmp_le_u32 s[28:29], 1, %s' % c.vG); a('v_cmp_le_u32 s[30:31], 2, %s' % c.vG); a('v_cmp_le_u32 s[32:33], 3, %s' % c.vG)
    a('s_nop 7')
    for i in range(2):
        d = D + 16 * i
        a('v_cndmask_b32 v%d, v%d, v%d, s[28:29]' % (190 + i, d, d + 4))
        a('v_cndmask_b32 v%d, v%d, v%d, s[30:31]' % (190 + i, 190 + i, d + 8))
        a('v_cndmask_b32 v%d, v%d, v%d, s[32:33]' % (190 + i, 190 + i, d + 12))
        a('v_mul_f32 v%d, v188, v%d' % (190 + i, 190 + i))
    a('s_and_b32 s25, %s, %d' % (c.sB, c.YR - 1)); a('s_lshl_b32 s25, s25, 11'); a('s_lshl_b32 s26, %s, 9' % c.sW); a('s_add_u32 s25, s25, s26'); a('s_add_u32 s25, s25, 0x%x' % c.WS_Y[layer])
    a('v_lshlrev_b32 v186, 2, v1')
    a('buffer_atomic_add_f32 v190, v186, %s, s25 offen' % c.SRD_WS)
    a('buffer_atomic_add_f32 v191, v186, %s, s25 offen offset:256' % c.SRD_WS)
    a('s_waitcnt vmcnt(0)')
    a('s_lshl_b32 s25, %s, 7' % c.sB); a('s_lshl_b32 s26, %s, 2' % c.sW); a('s_add_u32 s25, s25, s26'); a('s_add_u32 s25, s25, 0x%x' % c.FL(c.FL_Y + layer))
    a('v_mov_b32 v220, %s' % c.sT); a('s_mov_b64 exec, 1')
    a('buffer_store_dword v220, off, %s, s25 sc1' % c.SRD_WS)
    a('s_mov_b64 exec, -1')
    a('s_barrier')
    a.label(L)

def fix_row(ctx):
    g, a = ctx['g'], ctx['a']; c = C
    L = a.newlabel('NOFIX'); L2 = a.newlabel('FIXW')
    a('s_cmp_eq_u32 %s, 0' % c.sL); a('s_cbranch_scc1 %s' % L)
    get_sel(ctx, 0, 9)
    a('s_lshr_b32 s25, %s, 8' % c.sSEL); a('s_cmp_lg_u32 s25, %s' % c.sJ); a('s_cbranch_scc1 %s' % L)
    a('s_cmp_lg_u32 %s, 0' % c.sW); a('s_cbranch_scc1 %s' % L2)
    a('s_mov_b32 s27, 0x%x' % c.FL(c.FL_Y))
    poll_yflags(g, 's27', 10)
    a('v_lshlrev_b32 v186, 5, v1')
    for rep in range(c.YR):
        a('s_mov_b32 s26, 0x%x' % (c.WS_Y[0] + rep * 2048))
        a('buffer_load_dwordx4 v[%d:%d], v186, %s, s26 offen sc1' % (104 + 8 * rep, 107 + 8 * rep, c.SRD_WS))
        a('buffer_load_dwordx4 v[%d:%d], v186, %s, s26 offen offset:16 sc1' % (108 + 8 * rep, 111 + 8 * rep, c.SRD_WS))
    load_row(ctx, 0, 11)
    for rep in range(1, c.YR):
        for k in range(8): a('v_add_f32 v%d, v%d, v%d' % (104 + k, 104 + k, 104 + 8 * rep + k))
    a('v_mul_f32 v196, v196, v197'); a('v_add_f32 v197, 1.0, v197')
    for k in range(8):
        a('v_fma_f32 v%d, v%d, v197, -v196' % (188 + k, 188 + k)); a('v_add_f32 v%d, v%d, v%d' % (188 + k, 188 + k, 104 + k))
    for k in range(4): a('v_cvt_pk_bf16_f32 v%d, v%d, v%d' % (200 + k, 188 + 2 * k, 189 + 2 * k))
    for k in range(4):
        a('v_lshlrev_b32 v%d, 16, v%d' % (188 + 2 * k, 200 + k)); a('v_and_b32 v%d, 0xffff0000, v%d' % (189 + 2 * k, 200 + k))
    row_stats(ctx)
    F = 104
    norm_row_to_frags(ctx, F)
    for s in range(16):
        f = 'v[%d:%d]' % (F + 4 * s, F + 4 * s + 3)
        Cc = lambda r: '0' if s == 0 else 'v[%d:%d]' % (r, r + 3)
        a('v_mfma_f32_16x16x32_bf16 v[168:171], a[%d:%d], %s, %s' % (12 * s, 12 * s + 3, f, Cc(168)))
        a('v_mfma_f32_16x16x32_bf16 v[172:175], a[%d:%d], %s, %s' % (12 * s + 4, 12 * s + 7, f, Cc(172)))
        a('v_mfma_f32_16x16x32_bf16 v[176:179], %s, a[%d:%d], %s' % (f, 12 * s + 8, 12 * s + 11, Cc(176)))
    a('s_mov_b32 s25, 0x3eb8aa3b')
    a('s_nop 7')
    for r in range(4): a('v_mul_f32 v%d, s25, v%d' % (168 + r, 168 + r))
    a('v_cvt_pk_bf16_f32 v180, v168, v169'); a('v_cvt_pk_bf16_f32 v181, v170, v171')
    a('v_cvt_pk_bf16_f32 v182, v172, v173'); a('v_cvt_pk_bf16_f32 v183, v174, v175')
    a('v_cvt_pk_bf16_f32 v184, v176, v176')
    a('s_and_b32 s26, %s, 255' % c.sSEL); a('s_lshl_b32 s27, s26, 4'); a('s_add_u32 s27, s27, %d' % c.IMG_Q)
    a('v_lshrrev_b32 v186, 1, %s' % c.vG); a('v_lshlrev_b32 v186, 12, v186'); a('v_and_b32 v187, 1, %s' % c.vG); a('v_lshl_add_u32 v186, v187, 3, v186'); a('v_add_u32 v186, s27, v186')
    a('s_mov_b32 s28, 0x00010001'); a('s_mov_b32 s29, 0x00010001'); a('s_mov_b64 exec, s[28:29]')
    a('ds_write_b64 v186, v[180:181]'); a('ds_write_b64 v186, v[182:183] offset:8192')
    a('s_mov_b64 exec, -1')
    a('s_lshr_b32 s27, s26, 4'); a('s_lshl_b32 s27, s27, 1'); a('s_lshr_b32 s28, s26, 2'); a('s_and_b32 s28, s28, 1'); a('s_add_u32 s27, s27, s28')
    a('s_lshr_b32 s28, s26, 3'); a('s_and_b32 s28, s28, 1'); a('s_lshl_b32 s28, s28, 2'); a('s_and_b32 s29, s26, 3'); a('s_add_u32 s28, s28, s29'); a('s_lshl_b32 s28, s28, 1'); a('s_add_u32 s28, s28, %d' % c.IMG_V)
    a('v_xor_b32 v186, s27, %s' % c.vTOK); a('v_lshlrev_b32 v186, 4, v186'); a('v_lshl_add_u32 v186, %s, 9, v186' % c.vTOK); a('v_add_u32 v186, s28, v186')
    a('s_mov_b64 exec, 0xffff')
    a('ds_write_b16 v186, v184')
    a('s_mov_b64 exec, -1')
    a('s_waitcnt lgkmcnt(0)')
    a.label(L2)
    a('s_barrier')
    a.label(L)

def final_phase(ctx):
    g, a = ctx['g'], ctx['a']; c = C
    ffn(ctx, 1)
    get_sel(ctx, 1, 12)
    Le = a.newlabel('NOE')
    a('s_or_b32 s25, %s, %s' % (c.sB, c.sW)); a('s_cmp_lg_u32 s25, 0'); a('s_cbranch_scc1 %s' % Le)
    a('v_mov_b32 v220, %s' % c.sT); a('s_mov_b64 exec, 1')
    a('buffer_store_dword v220, off, %s, 0 sc1' % c.SRD_WS)
    a('s_mov_b64 exec, -1')
    a.label(Le)
    OUT = 152
    blayer(g, OUT, 1, 13)
    for tt in range(4):
        for k in range(2): a('v_cvt_pk_bf16_f32 v%d, v%d, v%d' % (168 + 2 * tt + k, OUT + 4 * tt + 2 * k, OUT + 4 * tt + 2 * k + 1))
    tile_image_write(g, 168)
    a('s_waitcnt lgkmcnt(0)'); a('s_barrier')
    a('v_lshrrev_b32 v186, 3, v0'); a('v_and_b32 v187, 7, v0')
    a('v_and_b32 v188, 15, v186'); a('v_lshrrev_b32 v188, 1, v188'); a('v_xor_b32 v188, v187, v188'); a('v_lshlrev_b32 v188, 4, v188'); a('v_lshl_add_u32 v188, v186, 7, v188'); a('v_add_u32 v188, %d, v188' % c.IMG_Q)
    a('ds_read_b128 v[192:195], v188'); a('ds_read_b128 v[196:199], v188 offset:4096')
    a('v_lshlrev_b32 v187, 4, v187'); a('v_lshl_add_u32 v187, v186, 10, v187')
    g.srd(12, c.P_OUT, 2048 * 1024)
    a('s_lshl_b32 s25, %s, 8' % c.sJ); a('s_lshr_b32 s26, %s, 3' % c.sH); a('s_lshl_b32 s26, s26, 6'); a('s_add_u32 s25, s25, s26'); a('s_lshl_b32 s25, s25, 10')
    a('s_and_b32 s26, %s, 7' % c.sH); a('s_lshl_b32 s26, s26, 7'); a('s_add_u32 s25, s25, s26'); a('s_add_u32 s26, s25, 32768')
    a('s_waitcnt lgkmcnt(0)')
    a('buffer_store_dwordx4 v[192:195], v187, %s, s25 offen' % c.SRD_T)
    a('buffer_store_dwordx4 v[196:199], v187, %s, s26 offen' % c.SRD_T)
    g.ts(15)

def rest_of_kernel(ctx):
    g, a, opt = ctx['g'], ctx['a'], ctx['opt']; c = C
    fix_row(ctx)
    attention(ctx)
    if opt.stop == 'attn':
        a('s_branch K_END')
    outproj(ctx)
    if opt.stop == 'proj':
        a('s_branch K_END')
    Lfin = a.newlabel('FINAL')
    a('s_cmp_lg_u32 %s, 0' % c.sL); a('s_cbranch_scc1 %s' % Lfin)
    a('s_lshl_b32 s27, %s, 13' % c.sW); a('s_lshl_b32 s28, %s, 7' % c.sJ); a('s_add_u32 s27, s27, s28'); a('s_add_u32 s27, s27, 0x%x' % c.FL(c.FL_X))
    a('v_and_b32 v186, 31, v1'); a('v_lshrrev_b32 v187, 2, v186'); a('v_and_b32 v186, 3, v186'); a('v_lshlrev_b32 v186, 2, v186'); a('v_lshl_add_u32 v186, v187, 10, v186')
    poll(g, 'v186', 's27', 14)
    g.ts(11)
    ctx['xsrc'](1)
    g.vm = []
    for i in range(3):
        for ct in range(4): ctx['slot_dma'](i, ct)
    ffn(ctx, 0)
    g.ts(12)
    a('s_mov_b32 %s, 1' % c.sL)
    a('s_branch LAYER')
    a.label(Lfin)
    final_phase(ctx)
```

```python
import sys, argparse
sys.path.insert(0, 'gen')
from asmlib import Asm
from gen2 import rest_of_kernel
import gen2

NAME = "interleave_layers__sliding_block__moe_arch_mod__prompt"

WS_E      = 0x0
FL_BASE   = 0x1000
FL_KV, FL_O, FL_X, FL_Y = 0, 2, 4, 6
def FL(setno): return FL_BASE + setno * 0x8000
WS_FS     = [0x48000, 0x50000]
WS_P      = [0x60000, 0xA0000]
WS_BM     = [0xE0000, 0xE1000]
WS_Y      = [0xE2000, 0xE4000]
YR        = 4
WS_TS     = 0xF0000
WS_KV     = [0x100000, 0x500000]
WS_O      = [0x900000, 0xB00000]
WS_X      = [0xD00000, 0xF00000]
WS_USED   = 0x1100000
WS_DUMP   = 0x1100000
WS_SIZE_DBG = 0x2000000

RING   = 0
IMG_Q  = 98304
IMG_K  = 106496
IMG_V  = 114688
IMG_KH = 122880
IMG_VH = 131072
ONES   = 139264
STAT   = 139776
LT     = 141824
PART   = 142848
XROW   = 146944
HBUF   = 151040
MISC2  = 151552
ONES2  = ONES + 16384
WST    = IMG_Q
LDS_BYTES = 163840

sB, sJ, sH, sW, sT, sL = 's2', 's20', 's21', 's22', 's23', 's24'
SRD_X0, SRD_WS, SRD_T, SRD_XS = 's[4:7]', 's[8:11]', 's[12:15]', 's[16:19]'
sRING, sXB, sCD, sTS, sOFF = 's36', 's37', 's38', 's39', 's40'
sSEL, sRSEL = 's41', 's42'
P_X0, P_WQKV, P_WO, P_WR, P_WG, P_WU, P_WD, P_OUT, P_DBG, P_WS = 48, 50, 52, 56, 58, 60, 62, 64, 66, 68

vTID, vLANE, vXA, vXB, vFA0, vFA1, vTR, vL16, vT16 = 'v0', 'v1', 'v2', 'v3', 'v4', 'v5', 'v6', 'v7', 'v8'
vWROW, vWH = 'v9', 'v10'
vQW, vVW = 'v11', 'v12'
vTOK, vG = 'v13', 'v25'
CSQ, CSK, CSV = 14, 18, 22
XT = 26
WRS = 34
FDW = 224

class G:
    def __init__(self, opt):
        self.a = Asm(); self.opt = opt
        self.vm = []
    def __call__(self, t): self.a(t)
    def vmi(self, text, tag):
        self.a(text); self.vm.append(tag)
    def vmwait(self, tag):
        last = max(i for i, t in enumerate(self.vm) if t == tag)
        n = len(self.vm) - 1 - last
        assert n <= 63
        self.a('s_waitcnt vmcnt(%d)' % n)
        self.vm = self.vm[last + 1:]
    def vmdrain(self, extra=''):
        self.a('s_waitcnt vmcnt(0)' + extra); self.vm = []
    def srd(self, base, ptr, size):
        self.a('s_mov_b32 s%d, s%d' % (base, ptr))
        self.a('s_and_b32 s%d, s%d, 0xffff' % (base + 1, ptr + 1))
        self.a('s_mov_b32 s%d, 0x%x' % (base + 2, size))
        self.a('s_mov_b32 s%d, 0x20000' % (base + 3))
    def ts(self, idx):
        if not self.opt.ts: return
        a = self.a; L = a.newlabel('TS')
        a('s_cmp_lg_u32 %s, 0' % sW); a('s_cbranch_scc1 %s' % L)
        a('s_memrealtime s[78:79]'); a('s_waitcnt lgkmcnt(0)')
        a('v_mov_b32 v222, s78'); a('v_mov_b32 v223, s79')
        a('s_lshl_b32 s77, %s, 8' % sB); a('s_add_u32 s77, s77, 0x%x' % (WS_TS + idx * 8))
        a('s_mov_b64 s[74:75], exec'); a('s_mov_b64 exec, 1')
        a('buffer_store_dwordx2 v[222:223], off, %s, s77' % SRD_WS)
        a('s_mov_b64 exec, s[74:75]')
        a.label(L)
    def spin_begin(self):
        a = self.a; L = a.newlabel('SPIN'); a('s_mov_b32 s76, 0'); a.label(L); return L
    def spin_end(self, L, code):
        a = self.a; D = a.newlabel('SPD')
        a('s_cbranch_scc1 %s' % D)
        a('s_add_u32 s76, s76, 1'); a('s_cmp_lt_u32 s76, 0x40000'); a('s_cbranch_scc1 %s' % L)
        self.srd(12, P_DBG, 256)
        a('v_mov_b32 v221, %d' % code)
        a('buffer_store_dword v221, off, %s, 0 offset:%d' % (SRD_T, 0))
        a('s_waitcnt vmcnt(0)')
        a.label(D)

def build(opt):
    g = G(opt); a = g.a
    KN = NAME + '_kernel'
    a.label('K_START')
    a('s_cmp_ge_u32 s2, 256'); a('s_cbranch_scc1 K_END')
    a('s_load_dwordx16 s[48:63], s[0:1], 0')
    a('s_load_dwordx4 s[64:67], s[0:1], 64')
    a('s_load_dwordx2 s[68:69], s[0:1], 80')
    a('s_getpc_b64 s[70:71]')
    a.label('K_PC')
    a('''
    v_and_b32 v1, 63, v0
    v_lshrrev_b32 v40, 6, v0
    s_and_b32 s20, s2, 7
    v_readfirstlane_b32 s22, v40
    s_lshr_b32 s21, s2, 3
    v_and_b32 v13, 15, v1
    v_lshrrev_b32 v25, 4, v1
    v_lshlrev_b32 v7, 4, v1
    v_lshlrev_b32 v8, 4, v0
    s_mul_i32 s36, s22, 24576
    v_lshrrev_b32 v40, 3, v1
    v_lshlrev_b32 v40, 10, v40
    v_and_b32 v41, 7, v1
    v_xor_b32 v42, v41, v25
    v_lshl_add_u32 v2, v42, 4, v40
    v_xor_b32 v42, 4, v42
    v_lshl_add_u32 v3, v42, 4, v40
    v_add_u32 v3, 7168, v3
    v_lshrrev_b32 v40, 1, v13
    v_xor_b32 v40, v40, v25
    v_lshlrev_b32 v40, 4, v40
    v_lshl_add_u32 v40, v13, 7, v40
    v_add_u32 v4, s36, v40
    v_xor_b32 v5, 64, v4
    v_lshrrev_b32 v40, 1, v1
    v_and_b32 v41, 0x13, v40
    v_and_b32 v42, 4, v40
    v_lshl_or_b32 v41, v42, 1, v41
    v_and_b32 v42, 8, v40
    v_lshrrev_b32 v42, 1, v42
    v_or_b32 v9, v41, v42
    v_and_b32 v10, 1, v1
    v_lshlrev_b32 v10, 4, v10
    v_lshrrev_b32 v40, 1, v25
    v_lshlrev_b32 v40, 4, v40
    v_and_b32 v41, 1, v25
    v_lshl_add_u32 v40, v41, 2, v40
    v_lshrrev_b32 v41, 2, v13
    v_add_u32 v40, v40, v41
    v_lshlrev_b32 v40, 5, v40
    v_and_b32 v41, 3, v13
    v_lshl_add_u32 v6, v41, 3, v40
    ''')
    a('''
    v_lshrrev_b32 v40, 1, v25
    v_lshlrev_b32 v40, 12, v40
    v_and_b32 v41, 1, v25
    v_lshl_add_u32 v40, v41, 3, v40
    v_lshl_add_u32 v40, v13, 4, v40
    s_lshl_b32 s25, s22, 10
    s_add_u32 s25, s25, %d
    v_add_u32 v11, s25, v40
    ''' % IMG_Q)
    a('''
    s_lshl_b32 s25, s22, 3
    v_and_b32 v41, 1, v25
    v_add_u32 v41, s25, v41
    v_xor_b32 v41, v41, v13
    v_lshlrev_b32 v41, 4, v41
    v_lshl_add_u32 v41, v13, 9, v41
    v_lshrrev_b32 v40, 1, v25
    v_lshl_add_u32 v41, v40, 3, v41
    v_add_u32 v12, %d, v41
    ''' % IMG_V)
    a('s_waitcnt lgkmcnt(0)')
    g.srd(4, P_X0, 2048 * 1024)
    g.srd(8, P_WS, WS_SIZE_DBG if opt.dbg else WS_USED)
    g.srd(12, P_WQKV, 512 * 3072)
    a('''
    s_lshl_b32 s25, s20, 8
    s_lshl_b32 s26, s21, 3
    s_add_u32 s25, s25, s26
    s_lshl_b32 s26, s22, 1
    s_add_u32 s43, s25, s26
    s_lshl_b32 s25, s43, 10
    ''')
    g.vmi('buffer_load_dwordx4 v[40:43], v7, %s, s25 offen' % SRD_X0, 'st')
    g.vmi('buffer_load_dwordx4 v[44:47], v7, %s, s25 offen offset:1024' % SRD_X0, 'st')
    g.vmi('buffer_load_dword v48, off, %s, 0 sc1' % SRD_WS, 'E')
    a('v_lshlrev_b32 v50, 6, v0')
    a('s_mov_b32 s25, K_END-K_PC')
    a('v_min_u32 v51, s25, v50')
    g.vmi('global_load_dword v49, v51, s[70:71]', 'pf')
    for _ in range(2):
        a('v_add_u32 v50, 16384, v50'); a('v_min_u32 v51, s25, v50')
        g.vmi('global_load_dword v49, v51, s[70:71]', 'pf')
    a('''
    s_mov_b32 s25, 3072
    v_mul_lo_u32 v52, v9, s25
    v_add_u32 v52, v52, v10
    s_mul_i32 s26, s22, %d
    s_lshl_b32 s27, s21, 5
    s_add_u32 s26, s26, s27
    s_lshl_b32 s27, s22, 12
    s_add_u32 s27, s27, %d
    ''' % (4 * 32 * 3072, WST))
    for m in range(3):
        for i in range(4):
            a('s_add_u32 m0, s27, %d' % (m * 16384 + i * 1024))
            a('s_add_u32 s28, s26, %d' % (i * 32 * 3072 + m * 1024))
            g.vmi('buffer_load_dwordx4 v52, %s, s28 offen lds' % SRD_T, 'W')
    def xsrc(layer):
        if layer == 0:
            a('s_mov_b32 s16, s4'); a('s_mov_b32 s17, s5'); a('s_mov_b32 s18, s6'); a('s_mov_b32 s19, 0x20000')
            a('s_lshl_b32 s25, %s, 8' % sJ); a('s_lshl_b32 s26, %s, 6' % sW); a('s_add_u32 s25, s25, s26'); a('s_lshl_b32 %s, s25, 10' % sXB)
            a('s_mov_b32 %s, 128' % sTS); a('s_mov_b32 %s, %d' % (sCD, 16 * 1024 - 8 * 128))
        else:
            a('s_mov_b32 s16, s8'); a('s_mov_b32 s17, s9'); a('s_mov_b32 s18, s10'); a('s_mov_b32 s19, 0x20000')
            a('s_lshl_b32 s25, %s, 18' % sJ); a('s_lshl_b32 s26, %s, 13' % sW); a('s_add_u32 s25, s25, s26'); a('s_add_u32 %s, s25, 0x%x' % (sXB, WS_X[0]))
            a('s_mov_b32 %s, 32768' % sTS); a('s_mov_b32 %s, 0x%x' % (sCD, (2048 - 8 * 32768) & 0xffffffff))
            a('v_mov_b32 %s, %s' % (vXA, vL16)); a('v_mov_b32 %s, %s' % (vXB, vL16))
        a('s_mov_b32 %s, %s' % (sOFF, sXB))
    def slot_dma(i, ct):
        slot = i % 3
        a('s_add_u32 m0, %s, %d' % (sRING, slot * 8192 + ct * 2048))
        g.vmi('buffer_load_dwordx4 %s, %s, %s offen%s lds' % (vXA, SRD_XS, sOFF, opt.xsc), 'L%d' % i)
        g.vmi('buffer_load_dwordx4 %s, %s, %s offen offset:1024%s lds' % (vXB, SRD_XS, sOFF, opt.xsc), 'L%d' % i)
        a('s_add_u32 %s, %s, %s' % (sOFF, sOFF, sTS))
        if (i & 1) == 1 and ct == 3: a('s_add_u32 %s, %s, %s' % (sOFF, sOFF, sCD))
    xsrc(0)
    for i in range(3):
        for ct in range(4): slot_dma(i, ct)
    g.ts(0)
    g.vmwait('E')
    a('v_readfirstlane_b32 s25, v48')
    a('s_mul_i32 s25, s25, 0x9E3779B1'); a('s_add_u32 %s, s25, 0x7F4A7C15' % sT)
    def unpack8(src, dst):
        for i in range(4):
            a('v_lshlrev_b32 v%d, 16, v%d' % (dst + 2 * i, src + i))
            a('v_and_b32 v%d, 0xffff0000, v%d' % (dst + 2 * i + 1, src + i))
    unpack8(40, 56); unpack8(44, 64)
    for r, (u, s, q) in enumerate(((56, 72, 73), (64, 74, 75))):
        a('v_add_f32 v%d, v%d, v%d' % (s, u, u + 1)); a('v_mul_f32 v%d, v%d, v%d' % (q, u, u))
        a('v_fmac_f32 v%d, v%d, v%d' % (q, u + 1, u + 1))
        for i in range(2, 8):
            a('v_add_f32 v%d, v%d, v%d' % (s, s, u + i)); a('v_fmac_f32 v%d, v%d, v%d' % (q, u + i, u + i))
    def allreduce(regs, tmp, op='v_add_f32'):
        for pat in ('quad_perm:[1,0,3,2]', 'quad_perm:[2,3,0,1]', 'row_half_mirror', 'row_mirror'):
            for r in regs: a('%s_dpp v%d, v%d, v%d %s row_mask:0xf bank_mask:0xf' % (op, r, r, r, pat))
        for sw in ('v_permlane16_swap_b32', 'v_permlane32_swap_b32'):
            for k, r in enumerate(regs): a('v_mov_b32 v%d, v%d' % (tmp + k, r))
            for k, r in enumerate(regs): a('%s v%d, v%d' % (sw, r, tmp + k))
            for k, r in enumerate(regs): a('%s v%d, v%d, v%d' % (op, r, r, tmp + k))
    allreduce([72, 73, 74, 75], 76)
    a('s_mov_b32 s25, 0x3b000000')
    a('s_mov_b32 s26, 0x3727c5ac')
    for (s, q, o) in ((72, 73, 80), (74, 75, 84)):
        a('v_mul_f32 v%d, s25, v%d' % (o, s))
        a('v_mul_f32 v%d, s25, v%d' % (q, q))
        a('v_fma_f32 v%d, -v%d, v%d, v%d' % (q, o, o, q))
        a('v_add_f32 v%d, s26, v%d' % (q, q))
        a('v_rsq_f32 v%d, v%d' % (o + 1, q))
        a('v_mov_b32 v%d, %s' % (o + 3, sT))
        a('v_mov_b32 v%d, v%d' % (o + 2, o + 1))
    a('v_cmp_eq_u32 vcc, 1, v1')
    for i in range(3): a('v_cndmask_b32 v%d, v%d, v%d, vcc' % (80 + i, 80 + i, 84 + i))
    a('s_lshl_b32 s25, s43, 4'); a('s_add_u32 s25, s25, 0x%x' % WS_FS[0])
    a('s_mov_b64 exec, 3')
    g.vmi('buffer_store_dwordx4 v[80:83], v7, %s, s25 offen sc1' % SRD_WS, 'st0')
    a('s_mov_b64 exec, 15')
    a('v_mov_b32 v84, 0'); a('v_mov_b32 v85, 0'); a('v_mov_b32 v86, 0'); a('v_mov_b32 v87, 0')
    a('s_lshl_b32 s25, %s, 6' % sB); a('s_add_u32 s25, s25, 0x%x' % WS_Y[0])
    g.vmi('buffer_store_dwordx4 v[84:87], v7, %s, s25 offen sc1' % SRD_WS, 'yz')
    a('s_mov_b64 exec, -1')
    g.vmwait('W')
    a('s_barrier')
    a('v_add_u32 v52, %d, %s' % (WST, vTR))
    for m in range(3):
        for s in range(16):
            base = 12 * s + 4 * m; off = (m * 16 + s) * 1024
            a('ds_read_b64_tr_b16 a[%d:%d], v52 offset:%d' % (base, base + 1, off))
            a('ds_read_b64_tr_b16 a[%d:%d], v52 offset:%d' % (base + 2, base + 3, off + 256))
    a('s_waitcnt lgkmcnt(0)')
    a('s_barrier')
    a('v_mov_b32 v52, 0x3f803f80'); a('v_mov_b32 v53, 0x3f803f80'); a('v_mov_b32 v54, 0x3f803f80'); a('v_mov_b32 v55, 0x3f803f80')
    a('v_and_b32 v56, 31, v0'); a('v_lshlrev_b32 v56, 4, v56'); a('v_add_u32 v56, %d, v56' % ONES)
    a('ds_write_b128 v56, v[52:55]'); a('ds_write_b128 v56, v[52:55] offset:16384')
    g.ts(1)

    a('s_mov_b32 %s, 0' % sL)
    a.label('LAYER')
    FA, FB, ACC = 40, 72, 104
    def accq(c): return ACC + 12 * c
    def frag_reads(i, F):
        slot = i % 3
        for sl in range(8):
            a('ds_read_b128 v[%d:%d], %s offset:%d' % (F + 4 * sl, F + 4 * sl + 3, vFA1 if sl & 1 else vFA0, slot * 8192 + (sl >> 1) * 2048))
    def mfmas(i, F, sl):
        c = i >> 1; s = 8 * (i & 1) + sl; f = 'v[%d:%d]' % (F + 4 * sl, F + 4 * sl + 3)
        q = accq(c); first = (s == 0)
        def C(r): return '0' if first else 'v[%d:%d]' % (r, r + 3)
        a('v_mfma_f32_16x16x32_bf16 v[%d:%d], a[%d:%d], %s, %s' % (q, q + 3, 12 * s, 12 * s + 3, f, C(q)))
        a('v_mfma_f32_16x16x32_bf16 v[%d:%d], a[%d:%d], %s, %s' % (q + 4, q + 7, 12 * s + 4, 12 * s + 7, f, C(q + 4)))
        a('v_mfma_f32_16x16x32_bf16 v[%d:%d], %s, a[%d:%d], %s' % (q + 8, q + 11, f, 12 * s + 8, 12 * s + 11, C(q + 8)))
    g.vm = ['L0'] * 8 + ['L1'] * 8 + ['L2'] * 8
    g.vmwait('L0')
    frag_reads(0, FA)
    for i in range(8):
        F = FA if i % 2 == 0 else FB; Fn = FB if i % 2 == 0 else FA
        a('s_waitcnt lgkmcnt(0)')
        if i == 6:
            a('s_lshl_b32 s25, %s, 12' % sJ); a('s_mul_i32 s26, %s, 0x%x' % (sL, WS_FS[1] - WS_FS[0])); a('s_add_u32 s25, s25, s26'); a('s_add_u32 s43, s25, 0x%x' % WS_FS[0])
            g.vmi('buffer_load_dwordx4 v[152:155], %s, %s, s43 offen sc1' % (vT16, SRD_WS), 'fs')
        for sl in range(4):
            mfmas(i, F, sl)
            if i + 3 <= 7: slot_dma(i + 3, sl)
        if i == 1:
            Lskip = a.newlabel('CSS')
            a('s_cmp_lg_u32 %s, 0' % sL); a('s_cbranch_scc1 %s' % Lskip)
            for k in range(4): a('v_mov_b32 v%d, 0x3f803f80' % (156 + k))
            for s in range(16):
                C = lambda r: ('0' if s == 0 else 'v[%d:%d]' % (r, r + 3))
                a('v_mfma_f32_16x16x32_bf16 v[14:17], a[%d:%d], v[156:159], %s' % (12 * s, 12 * s + 3, C(14)))
                a('v_mfma_f32_16x16x32_bf16 v[18:21], a[%d:%d], v[156:159], %s' % (12 * s + 4, 12 * s + 7, C(18)))
                a('v_mfma_f32_16x16x32_bf16 v[160:163], v[156:159], a[%d:%d], %s' % (12 * s + 8, 12 * s + 11, C(160)))
            a('s_nop 7'); a('v_mov_b32 v22, v160')
            a.label(Lskip)
        if i == 6:
            g.vmdrain()
            L = g.spin_begin()
            a('v_cmp_ne_u32 vcc, %s, v155' % sT); a('s_cmp_eq_u64 vcc, 0')
            Ld = a.newlabel('FSOK'); a('s_cbranch_scc1 %s' % Ld)
            a('buffer_load_dwordx4 v[152:155], %s, %s, s43 offen sc1' % (vT16, SRD_WS)); a('s_waitcnt vmcnt(0)')
            a('v_cmp_ne_u32 vcc, %s, v155' % sT); a('s_cmp_eq_u64 vcc, 0')
            g.spin_end(L, 1)
            a.label(Ld)
            a('v_lshlrev_b32 v156, 3, v0'); a('v_add_u32 v156, %d, v156' % STAT)
            a('v_mov_b32 v153, v154')
            a('ds_write_b64 v156, v[152:153]')
        elif i < 7:
            g.vmwait('L%d' % (i + 1))
        if i < 7: frag_reads(i + 1, Fn)
        for sl in range(4, 8): mfmas(i, F, sl)
    a('s_waitcnt lgkmcnt(0)'); a('s_barrier')
    g.ts(2)
    a('s_mov_b32 s25, 0x3eb8aa3b')
    a('s_lshl_b32 s26, %s, 9' % sW); a('s_add_u32 s26, s26, %d' % STAT)
    a('v_lshl_add_u32 v152, %s, 3, s26' % vTOK)
    a('v_lshl_add_u32 v153, %s, 5, s26' % vG)
    for c in range(4):
        a('ds_read_b64 v[%d:%d], v152 offset:%d' % (156 + 2 * c, 157 + 2 * c, c * 128))
        a('ds_read_b128 v[%d:%d], v153 offset:%d' % (164 + 8 * c, 167 + 8 * c, c * 128))
        a('ds_read_b128 v[%d:%d], v153 offset:%d' % (168 + 8 * c, 171 + 8 * c, c * 128 + 16))
    a('s_waitcnt lgkmcnt(0)')
    for c in range(4):
        q = accq(c); m = 156 + 2 * c; sg = m + 1; vs = 164 + 8 * c
        a('v_mul_f32 v196, s25, v%d' % sg)
        for r in range(4):
            a('v_fma_f32 v%d, -v%d, v%d, v%d' % (q + r, m, CSQ + r, q + r))
            a('v_fma_f32 v%d, -v%d, v%d, v%d' % (q + 4 + r, m, CSK + r, q + 4 + r))
            a('v_fma_f32 v%d, -v%d, v%d, v%d' % (q + 8 + r, vs + 2 * r, CSV, q + 8 + r))
        for r in range(4):
            a('v_mul_f32 v%d, v196, v%d' % (q + r, q + r))
            a('v_mul_f32 v%d, v%d, v%d' % (q + 4 + r, sg, q + 4 + r))
            a('v_mul_f32 v%d, v%d, v%d' % (q + 8 + r, vs + 2 * r + 1, q + 8 + r))
        for k in range(3):
            a('v_cvt_pk_bf16_f32 v%d, v%d, v%d' % (198 + 2 * k, q + 4 * k, q + 4 * k + 1))
            a('v_cvt_pk_bf16_f32 v%d, v%d, v%d' % (199 + 2 * k, q + 4 * k + 2, q + 4 * k + 3))
        a('ds_write_b64 %s, v[198:199] offset:%d' % (vQW, c * 256))
        a('ds_write_b64 %s, v[200:201] offset:%d' % (vQW, 8192 + c * 256))
        a('v_xor_b32 v197, %d, %s' % (32 * c, vVW))
        a('ds_write_b64 v197, v[202:203]')
    a('s_waitcnt lgkmcnt(0)'); a('s_barrier')
    g.ts(3)
    if opt.stop == 'qkv':
        dump_lds(g, IMG_Q, 24576)
        a('s_branch K_END')
    ctx = dict(g=g, a=a, opt=opt, allreduce=allreduce, xsrc=xsrc, slot_dma=slot_dma)
    rest_of_kernel(ctx)
    a.label('K_END')
    a('s_endpgm')
    return g

def dump_lds(g, base, nbytes):
    a = g.a
    a('s_lshl_b32 s25, %s, 15' % sB); a('s_add_u32 s25, s25, 0x%x' % WS_DUMP)
    a('v_add_u32 v60, %d, %s' % (base, vT16))
    for i in range(nbytes // 4096):
        a('ds_read_b128 v[64:67], v60 offset:%d' % (i * 4096)); a('s_waitcnt lgkmcnt(0)')
        a('v_add_u32 v61, %d, %s' % (i * 4096, vT16))
        a('buffer_store_dwordx4 v[64:67], v61, %s, s25 offen' % SRD_WS); a('s_waitcnt vmcnt(0)')

def emit(opt):
    gen2.C = sys.modules[__name__]
    g = build(opt)
    nops = g.a.fix_hazards()
    head = open('cdna_kernels/%s.s.ref' % NAME).read().split('\n')
    out = []
    for l in head:
        if l.startswith('; @launch'):
            out.append('; @launch grid=(256,1,1) block=(256,1,1) lds=%d' % LDS_BYTES); continue
        out.append(l)
        if l.startswith(NAME + '_kernel:'): break
    out.append(g.a.text())
    out.append('''.section .rodata,"a"
.p2align 6
.amdhsa_kernel %s_kernel
  .amdhsa_next_free_vgpr 512
  .amdhsa_next_free_sgpr 90
  .amdhsa_accum_offset 256
  .amdhsa_group_segment_fixed_size 0
  .amdhsa_kernarg_size 88
  .amdhsa_user_sgpr_count 2
  .amdhsa_user_sgpr_kernarg_segment_ptr 1
  .amdhsa_system_sgpr_workgroup_id_x 1
  .amdhsa_float_denorm_mode_32 3
.end_amdhsa_kernel
''' % NAME)
    open(opt.o, 'w').write('\n'.join(out))
    print('instructions', len(g.a.ins), 'nops inserted', nops, file=sys.stderr)

if __name__ == '__main__':
    p = argparse.ArgumentParser()
    p.add_argument('-o', default='cdna_kernels/%s.s' % NAME)
    p.add_argument('--stop', default='')
    p.add_argument('--ts', action='store_true')
    p.add_argument('--dbg', action='store_true')
    p.add_argument('--xsc', default=' sc1')
    p.add_argument('--force_slow', action='store_true')
    opt = p.parse_args()
    emit(opt)
```

```python
import sys, argparse
sys.path.insert(0, 'gen')
from asmlib import Asm
from gen2 import rest_of_kernel
import gen2

NAME = "interleave_layers__sliding_block__moe_arch_mod__prompt"

WS_E      = 0x0
FL_BASE   = 0x1000
FL_KV, FL_O, FL_X, FL_Y = 0, 2, 4, 6
def FL(setno): return FL_BASE + setno * 0x8000
WS_FS     = [0x48000, 0x50000]
WS_P      = [0x60000, 0xA0000]
WS_BM     = [0xE0000, 0xE1000]
WS_Y      = [0xE2000, 0xE4000]
YR        = 4
WS_TS     = 0xF0000
WS_KV     = [0x100000, 0x500000]
WS_O      = [0x900000, 0xB00000]
WS_X      = [0xD00000, 0xF00000]
WS_USED   = 0x1100000
WS_DUMP   = 0x1100000
WS_SIZE_DBG = 0x2000000

RING   = 0
IMG_Q  = 98304
IMG_K  = 106496
IMG_V  = 114688
IMG_KH = 122880
IMG_VH = 131072
ONES   = 139264
STAT   = 139776
LT     = 141824
PART   = 142848
XROW   = 146944
HBUF   = 151040
MISC2  = 151552
ONES2  = ONES + 16384
WST    = IMG_Q
LDS_BYTES = 163840

sB, sJ, sH, sW, sT, sL = 's2', 's20', 's21', 's22', 's23', 's24'
SRD_X0, SRD_WS, SRD_T, SRD_XS = 's[4:7]', 's[8:11]', 's[12:15]', 's[16:19]'
sRING, sXB, sCD, sTS, sOFF = 's36', 's37', 's38', 's39', 's40'
sSEL, sRSEL = 's41', 's42'
P_X0, P_WQKV, P_WO, P_WR, P_WG, P_WU, P_WD, P_OUT, P_DBG, P_WS = 48, 50, 52, 56, 58, 60, 62, 64, 66, 68

vTID, vLANE, vXA, vXB, vFA0, vFA1, vTR, vL16, vT16 = 'v0', 'v1', 'v2', 'v3', 'v4', 'v5', 'v6', 'v7', 'v8'
vWROW, vWH = 'v9', 'v10'
vQW, vVW = 'v11', 'v12'
vTOK, vG = 'v13', 'v25'
CSQ, CSK, CSV = 14, 18, 22
XT = 26
WRS = 34
FDW = 224

class G:
    def __init__(self, opt):
        self.a = Asm(); self.opt = opt
        self.vm = []
    def __call__(self, t): self.a(t)
    def vmi(self, text, tag):
        self.a(text); self.vm.append(tag)
    def vmwait(self, tag):
        last = max(i for i, t in enumerate(self.vm) if t == tag)
        n = len(self.vm) - 1 - last
        assert n <= 63
        self.a('s_waitcnt vmcnt(%d)' % n)
        self.vm = self.vm[last + 1:]
    def vmdrain(self, extra=''):
        self.a('s_waitcnt vmcnt(0)' + extra); self.vm = []
    def srd(self, base, ptr, size):
        self.a('s_mov_b32 s%d, s%d' % (base, ptr))
        self.a('s_and_b32 s%d, s%d, 0xffff' % (base + 1, ptr + 1))
        self.a('s_mov_b32 s%d, 0x%x' % (base + 2, size))
        self.a('s_mov_b32 s%d, 0x20000' % (base + 3))
    def ts(self, idx):
        if not self.opt.ts and not self.opt.tsd: return
        a = self.a; L = a.newlabel('TS')
        a('s_cmp_lg_u32 %s, 0' % sW); a('s_cbranch_scc1 %s' % L)
        a('s_memrealtime s[78:79]'); a('s_memtime s[80:81]'); a('s_waitcnt lgkmcnt(0)')
        a('v_mov_b32 v222, s78'); a('v_mov_b32 v223, s80')
        a('s_mov_b64 s[74:75], exec'); a('s_mov_b64 exec, 1')
        if self.opt.ts:
            a('s_lshl_b32 s77, %s, 8' % sB); a('s_add_u32 s77, s77, 0x%x' % (WS_TS + idx * 8))
            if idx >= 2: a('s_lshl_b32 s73, %s, 7' % sL); a('s_add_u32 s77, s77, s73')
            a('buffer_store_dwordx2 v[222:223], off, %s, s77' % SRD_WS)
        else:
            m0 = {0: 1, 2: 2, 4: 3, 6: 4, 7: 5, 9: 6, 12: 7}; m1 = {2: 8, 4: 9, 6: 10, 7: 11, 9: 12, 10: 13, 15: 14}
            w0 = m0.get(idx); w1 = m1.get(idx)
            a('s_mov_b32 s84, s%d' % P_DBG); a('s_and_b32 s85, s%d, 0xffff' % (P_DBG + 1)); a('s_mov_b32 s86, 256'); a('s_mov_b32 s87, 0x20000')
            a('s_cmp_eq_u32 %s, 0' % sL)
            a('s_cselect_b32 s77, %d, %d' % (4 * (w0 if w0 is not None else 40), 4 * (w1 if w1 is not None else 40)))
            if idx < 2: a('s_mov_b32 s77, %d' % (4 * (w0 if w0 is not None else 40)))
            a('buffer_atomic_umax v222, off, s[84:87], s77')
            if idx == 0:
                a('v_mov_b32 v223, s82'); a('v_not_b32 v223, v223'); a('buffer_atomic_umax v223, off, s[84:87], 0')
                a('v_mov_b32 v223, s82'); a('buffer_atomic_umax v223, off, s[84:87], 0 offset:60')
        a('s_mov_b64 exec, s[74:75]')
        a.label(L)
    def spin_begin(self):
        a = self.a; L = a.newlabel('SPIN'); a('s_mov_b32 s76, 0'); a.label(L); return L
    def spin_end(self, L, code):
        a = self.a; D = a.newlabel('SPD')
        a('s_cbranch_scc1 %s' % D)
        a('s_add_u32 s76, s76, 1'); a('s_cmp_lt_u32 s76, 0x40000'); a('s_cbranch_scc1 %s' % L)
        self.srd(12, P_DBG, 256)
        a('v_mov_b32 v221, %d' % code)
        a('buffer_store_dword v221, off, %s, 0 offset:%d' % (SRD_T, 0))
        a('s_waitcnt vmcnt(0)')
        a.label(D)

def build(opt):
    g = G(opt); a = g.a
    KN = NAME + '_kernel'
    a.label('K_START')
    a('s_cmp_ge_u32 s2, 256'); a('s_cbranch_scc1 K_END')
    if opt.ts or opt.tsd: a('s_memrealtime s[82:83]')
    a('s_load_dwordx16 s[48:63], s[0:1], 0')
    a('s_load_dwordx4 s[64:67], s[0:1], 64')
    a('s_load_dwordx2 s[68:69], s[0:1], 80')
    a('s_getpc_b64 s[70:71]')
    a.label('K_PC')
    a('''
    v_and_b32 v1, 63, v0
    v_lshrrev_b32 v40, 6, v0
    s_and_b32 s20, s2, 7
    v_readfirstlane_b32 s22, v40
    s_lshr_b32 s21, s2, 3
    v_and_b32 v13, 15, v1
    v_lshrrev_b32 v25, 4, v1
    v_lshlrev_b32 v7, 4, v1
    v_lshlrev_b32 v8, 4, v0
    s_mul_i32 s36, s22, 24576
    v_lshrrev_b32 v40, 3, v1
    v_lshlrev_b32 v40, 10, v40
    v_and_b32 v41, 7, v1
    v_xor_b32 v42, v41, v25
    v_lshl_add_u32 v2, v42, 4, v40
    v_xor_b32 v42, 4, v42
    v_lshl_add_u32 v3, v42, 4, v40
    v_add_u32 v3, 7168, v3
    v_lshrrev_b32 v40, 1, v13
    v_xor_b32 v40, v40, v25
    v_lshlrev_b32 v40, 4, v40
    v_lshl_add_u32 v40, v13, 7, v40
    v_add_u32 v4, s36, v40
    v_xor_b32 v5, 64, v4
    v_lshrrev_b32 v40, 1, v1
    v_and_b32 v41, 0x13, v40
    v_and_b32 v42, 4, v40
    v_lshl_or_b32 v41, v42, 1, v41
    v_and_b32 v42, 8, v40
    v_lshrrev_b32 v42, 1, v42
    v_or_b32 v9, v41, v42
    v_and_b32 v10, 1, v1
    v_lshlrev_b32 v10, 4, v10
    v_lshrrev_b32 v40, 1, v25
    v_lshlrev_b32 v40, 4, v40
    v_and_b32 v41, 1, v25
    v_lshl_add_u32 v40, v41, 2, v40
    v_lshrrev_b32 v41, 2, v13
    v_add_u32 v40, v40, v41
    v_lshlrev_b32 v40, 5, v40
    v_and_b32 v41, 3, v13
    v_lshl_add_u32 v6, v41, 3, v40
    ''')
    a('''
    v_lshrrev_b32 v40, 1, v25
    v_lshlrev_b32 v40, 12, v40
    v_and_b32 v41, 1, v25
    v_lshl_add_u32 v40, v41, 3, v40
    v_lshl_add_u32 v40, v13, 4, v40
    s_lshl_b32 s25, s22, 10
    s_add_u32 s25, s25, %d
    v_add_u32 v11, s25, v40
    ''' % IMG_Q)
    a('''
    s_lshl_b32 s25, s22, 3
    v_and_b32 v41, 1, v25
    v_add_u32 v41, s25, v41
    v_xor_b32 v41, v41, v13
    v_lshlrev_b32 v41, 4, v41
    v_lshl_add_u32 v41, v13, 9, v41
    v_lshrrev_b32 v40, 1, v25
    v_lshl_add_u32 v41, v40, 3, v41
    v_add_u32 v12, %d, v41
    ''' % IMG_V)
    a('s_waitcnt lgkmcnt(0)')
    g.srd(4, P_X0, 2048 * 1024)
    g.srd(8, P_WS, WS_SIZE_DBG if opt.dbg else WS_USED)
    g.srd(12, P_WQKV, 512 * 3072)
    a('''
    s_lshl_b32 s25, s20, 8
    s_lshl_b32 s26, s21, 3
    s_add_u32 s25, s25, s26
    s_lshl_b32 s26, s22, 1
    s_add_u32 s43, s25, s26
    s_lshl_b32 s25, s43, 10
    ''')
    g.vmi('buffer_load_dwordx4 v[40:43], v7, %s, s25 offen' % SRD_X0, 'st')
    g.vmi('buffer_load_dwordx4 v[44:47], v7, %s, s25 offen offset:1024' % SRD_X0, 'st')
    g.vmi('buffer_load_dword v48, off, %s, 0 sc1' % SRD_WS, 'E')
    a('v_lshlrev_b32 v50, 6, v0')
    a('s_mov_b32 s25, K_END-K_PC')
    a('v_min_u32 v51, s25, v50')
    g.vmi('global_load_dword v49, v51, s[70:71]', 'pf')
    for _ in range(2):
        a('v_add_u32 v50, 16384, v50'); a('v_min_u32 v51, s25, v50')
        g.vmi('global_load_dword v49, v51, s[70:71]', 'pf')
    a('''
    s_mov_b32 s25, 3072
    v_mul_lo_u32 v52, v9, s25
    v_add_u32 v52, v52, v10
    s_mul_i32 s26, s22, %d
    s_lshl_b32 s27, s21, 5
    s_add_u32 s26, s26, s27
    s_lshl_b32 s27, s22, 12
    s_add_u32 s27, s27, %d
    ''' % (4 * 32 * 3072, WST))
    for m in range(3):
        for i in range(4):
            a('s_add_u32 m0, s27, %d' % (m * 16384 + i * 1024))
            a('s_add_u32 s28, s26, %d' % (i * 32 * 3072 + m * 1024))
            g.vmi('buffer_load_dwordx4 v52, %s, s28 offen lds' % SRD_T, 'W')
    def xsrc(layer):
        if layer == 0:
            a('s_mov_b32 s16, s4'); a('s_mov_b32 s17, s5'); a('s_mov_b32 s18, s6'); a('s_mov_b32 s19, 0x20000')
            a('s_lshl_b32 s25, %s, 8' % sJ); a('s_lshl_b32 s26, %s, 6' % sW); a('s_add_u32 s25, s25, s26'); a('s_lshl_b32 %s, s25, 10' % sXB)
            a('s_mov_b32 %s, 128' % sTS); a('s_mov_b32 %s, %d' % (sCD, 16 * 1024 - 8 * 128))
        else:
            a('s_mov_b32 s16, s8'); a('s_mov_b32 s17, s9'); a('s_mov_b32 s18, s10'); a('s_mov_b32 s19, 0x20000')
            a('s_lshl_b32 s25, %s, 18' % sJ); a('s_lshl_b32 s26, %s, 13' % sW); a('s_add_u32 s25, s25, s26'); a('s_add_u32 %s, s25, 0x%x' % (sXB, WS_X[0]))
            a('s_mov_b32 %s, 32768' % sTS); a('s_mov_b32 %s, 0x%x' % (sCD, (2048 - 8 * 32768) & 0xffffffff))
            a('v_mov_b32 %s, %s' % (vXA, vL16)); a('v_mov_b32 %s, %s' % (vXB, vL16))
        a('s_mov_b32 %s, %s' % (sOFF, sXB))
    def slot_dma(i, ct):
        slot = i % 3
        a('s_add_u32 m0, %s, %d' % (sRING, slot * 8192 + ct * 2048))
        g.vmi('buffer_load_dwordx4 %s, %s, %s offen%s lds' % (vXA, SRD_XS, sOFF, opt.xsc), 'L%d' % i)
        g.vmi('buffer_load_dwordx4 %s, %s, %s offen offset:1024%s lds' % (vXB, SRD_XS, sOFF, opt.xsc), 'L%d' % i)
        a('s_add_u32 %s, %s, %s' % (sOFF, sOFF, sTS))
        if (i & 1) == 1 and ct == 3: a('s_add_u32 %s, %s, %s' % (sOFF, sOFF, sCD))
    xsrc(0)
    for i in range(3):
        for ct in range(4): slot_dma(i, ct)
    g.ts(0)
    g.vmwait('E')
    a('v_readfirstlane_b32 s25, v48')
    a('s_mul_i32 s25, s25, 0x9E3779B1'); a('s_add_u32 %s, s25, 0x7F4A7C15' % sT)
    def unpack8(src, dst):
        for i in range(4):
            a('v_lshlrev_b32 v%d, 16, v%d' % (dst + 2 * i, src + i))
            a('v_and_b32 v%d, 0xffff0000, v%d' % (dst + 2 * i + 1, src + i))
    unpack8(40, 56); unpack8(44, 64)
    for r, (u, s, q) in enumerate(((56, 72, 73), (64, 74, 75))):
        a('v_add_f32 v%d, v%d, v%d' % (s, u, u + 1)); a('v_mul_f32 v%d, v%d, v%d' % (q, u, u))
        a('v_fmac_f32 v%d, v%d, v%d' % (q, u + 1, u + 1))
        for i in range(2, 8):
            a('v_add_f32 v%d, v%d, v%d' % (s, s, u + i)); a('v_fmac_f32 v%d, v%d, v%d' % (q, u + i, u + i))
    def allreduce(regs, tmp, op='v_add_f32'):
        for pat in ('quad_perm:[1,0,3,2]', 'quad_perm:[2,3,0,1]', 'row_half_mirror', 'row_mirror'):
            for r in regs: a('%s_dpp v%d, v%d, v%d %s row_mask:0xf bank_mask:0xf' % (op, r, r, r, pat))
        for sw in ('v_permlane16_swap_b32', 'v_permlane32_swap_b32'):
            for k, r in enumerate(regs): a('v_mov_b32 v%d, v%d' % (tmp + k, r))
            for k, r in enumerate(regs): a('%s v%d, v%d' % (sw, r, tmp + k))
            for k, r in enumerate(regs): a('%s v%d, v%d, v%d' % (op, r, r, tmp + k))
    allreduce([72, 73, 74, 75], 76)
    a('s_mov_b32 s25, 0x3b000000')
    a('s_mov_b32 s26, 0x3727c5ac')
    for (s, q, o) in ((72, 73, 80), (74, 75, 84)):
        a('v_mul_f32 v%d, s25, v%d' % (o, s))
        a('v_mul_f32 v%d, s25, v%d' % (q, q))
        a('v_fma_f32 v%d, -v%d, v%d, v%d' % (q, o, o, q))
        a('v_add_f32 v%d, s26, v%d' % (q, q))
        a('v_rsq_f32 v%d, v%d' % (o + 1, q))
        a('v_mov_b32 v%d, %s' % (o + 3, sT))
        a('v_mov_b32 v%d, v%d' % (o + 2, o + 1))
    a('v_cmp_eq_u32 vcc, 1, v1')
    for i in range(3): a('v_cndmask_b32 v%d, v%d, v%d, vcc' % (80 + i, 80 + i, 84 + i))
    a('s_lshl_b32 s25, s43, 4'); a('s_add_u32 s25, s25, 0x%x' % WS_FS[0])
    a('s_mov_b64 exec, 3')
    g.vmi('buffer_store_dwordx4 v[80:83], v7, %s, s25 offen sc1' % SRD_WS, 'st0')
    a('s_mov_b64 exec, 15')
    a('v_mov_b32 v84, 0'); a('v_mov_b32 v85, 0'); a('v_mov_b32 v86, 0'); a('v_mov_b32 v87, 0')
    a('s_lshl_b32 s25, %s, 6' % sB); a('s_add_u32 s25, s25, 0x%x' % WS_Y[0])
    g.vmi('buffer_store_dwordx4 v[84:87], v7, %s, s25 offen sc1' % SRD_WS, 'yz')
    a('s_mov_b64 exec, -1')
    g.vmwait('W')
    a('s_barrier')
    a('v_add_u32 v52, %d, %s' % (WST, vTR))
    for m in range(3):
        for s in range(16):
            base = 12 * s + 4 * m; off = (m * 16 + s) * 1024
            a('ds_read_b64_tr_b16 a[%d:%d], v52 offset:%d' % (base, base + 1, off))
            a('ds_read_b64_tr_b16 a[%d:%d], v52 offset:%d' % (base + 2, base + 3, off + 256))
    a('s_waitcnt lgkmcnt(0)')
    a('s_barrier')
    a('v_mov_b32 v52, 0x3f803f80'); a('v_mov_b32 v53, 0x3f803f80'); a('v_mov_b32 v54, 0x3f803f80'); a('v_mov_b32 v55, 0x3f803f80')
    a('v_and_b32 v56, 31, v0'); a('v_lshlrev_b32 v56, 4, v56'); a('v_add_u32 v56, %d, v56' % ONES)
    a('ds_write_b128 v56, v[52:55]'); a('ds_write_b128 v56, v[52:55] offset:16384')
    g.ts(1)

    a('s_mov_b32 %s, 0' % sL)
    a.label('LAYER')
    FA, FB, ACC = 40, 72, 104
    def accq(c): return ACC + 12 * c
    def frag_reads(i, F):
        slot = i % 3
        for sl in range(8):
            a('ds_read_b128 v[%d:%d], %s offset:%d' % (F + 4 * sl, F + 4 * sl + 3, vFA1 if sl & 1 else vFA0, slot * 8192 + (sl >> 1) * 2048))
    def mfmas(i, F, sl):
        c = i >> 1; s = 8 * (i & 1) + sl; f = 'v[%d:%d]' % (F + 4 * sl, F + 4 * sl + 3)
        q = accq(c); first = (s == 0)
        def C(r): return '0' if first else 'v[%d:%d]' % (r, r + 3)
        a('v_mfma_f32_16x16x32_bf16 v[%d:%d], a[%d:%d], %s, %s' % (q, q + 3, 12 * s, 12 * s + 3, f, C(q)))
        a('v_mfma_f32_16x16x32_bf16 v[%d:%d], a[%d:%d], %s, %s' % (q + 4, q + 7, 12 * s + 4, 12 * s + 7, f, C(q + 4)))
        a('v_mfma_f32_16x16x32_bf16 v[%d:%d], %s, a[%d:%d], %s' % (q + 8, q + 11, f, 12 * s + 8, 12 * s + 11, C(q + 8)))
    g.vm = ['L0'] * 8 + ['L1'] * 8 + ['L2'] * 8
    g.vmwait('L0')
    frag_reads(0, FA)
    for i in range(8):
        F = FA if i % 2 == 0 else FB; Fn = FB if i % 2 == 0 else FA
        a('s_waitcnt lgkmcnt(0)')
        if i == 6:
            a('s_lshl_b32 s25, %s, 12' % sJ); a('s_mul_i32 s26, %s, 0x%x' % (sL, WS_FS[1] - WS_FS[0])); a('s_add_u32 s25, s25, s26'); a('s_add_u32 s43, s25, 0x%x' % WS_FS[0])
            g.vmi('buffer_load_dwordx4 v[152:155], %s, %s, s43 offen sc1' % (vT16, SRD_WS), 'fs')
        for sl in range(4):
            mfmas(i, F, sl)
            if i + 3 <= 7: slot_dma(i + 3, sl)
        if i == 1:
            Lskip = a.newlabel('CSS')
            a('s_cmp_lg_u32 %s, 0' % sL); a('s_cbranch_scc1 %s' % Lskip)
            for k in range(4): a('v_mov_b32 v%d, 0x3f803f80' % (156 + k))
            for s in range(16):
                C = lambda r: ('0' if s == 0 else 'v[%d:%d]' % (r, r + 3))
                a('v_mfma_f32_16x16x32_bf16 v[14:17], a[%d:%d], v[156:159], %s' % (12 * s, 12 * s + 3, C(14)))
                a('v_mfma_f32_16x16x32_bf16 v[18:21], a[%d:%d], v[156:159], %s' % (12 * s + 4, 12 * s + 7, C(18)))
                a('v_mfma_f32_16x16x32_bf16 v[160:163], v[156:159], a[%d:%d], %s' % (12 * s + 8, 12 * s + 11, C(160)))
            a('s_nop 7'); a('v_mov_b32 v22, v160')
            a.label(Lskip)
        if i == 6:
            g.vmdrain()
            L = g.spin_begin()
            a('v_cmp_ne_u32 vcc, %s, v155' % sT); a('s_cmp_eq_u64 vcc, 0')
            Ld = a.newlabel('FSOK'); a('s_cbranch_scc1 %s' % Ld)
            a('buffer_load_dwordx4 v[152:155], %s, %s, s43 offen sc1' % (vT16, SRD_WS)); a('s_waitcnt vmcnt(0)')
            a('v_cmp_ne_u32 vcc, %s, v155' % sT); a('s_cmp_eq_u64 vcc, 0')
            g.spin_end(L, 1)
            a.label(Ld)
            a('v_lshlrev_b32 v156, 3, v0'); a('v_add_u32 v156, %d, v156' % STAT)
            a('v_mov_b32 v153, v154')
            a('ds_write_b64 v156, v[152:153]')
        elif i < 7:
            g.vmwait('L%d' % (i + 1))
        if i < 7: frag_reads(i + 1, Fn)
        for sl in range(4, 8): mfmas(i, F, sl)
    a('s_waitcnt lgkmcnt(0)'); a('s_barrier')
    g.ts(2)
    a('s_mov_b32 s25, 0x3eb8aa3b')
    a('s_lshl_b32 s26, %s, 9' % sW); a('s_add_u32 s26, s26, %d' % STAT)
    a('v_lshl_add_u32 v152, %s, 3, s26' % vTOK)
    a('v_lshl_add_u32 v153, %s, 5, s26' % vG)
    for c in range(4):
        a('ds_read_b64 v[%d:%d], v152 offset:%d' % (156 + 2 * c, 157 + 2 * c, c * 128))
        a('ds_read_b128 v[%d:%d], v153 offset:%d' % (164 + 8 * c, 167 + 8 * c, c * 128))
        a('ds_read_b128 v[%d:%d], v153 offset:%d' % (168 + 8 * c, 171 + 8 * c, c * 128 + 16))
    a('s_waitcnt lgkmcnt(0)')
    for c in range(4):
        q = accq(c); m = 156 + 2 * c; sg = m + 1; vs = 164 + 8 * c
        a('v_mul_f32 v196, s25, v%d' % sg)
        for r in range(4):
            a('v_fma_f32 v%d, -v%d, v%d, v%d' % (q + r, m, CSQ + r, q + r))
            a('v_fma_f32 v%d, -v%d, v%d, v%d' % (q + 4 + r, m, CSK + r, q + 4 + r))
            a('v_fma_f32 v%d, -v%d, v%d, v%d' % (q + 8 + r, vs + 2 * r, CSV, q + 8 + r))
        for r in range(4):
            a('v_mul_f32 v%d, v196, v%d' % (q + r, q + r))
            a('v_mul_f32 v%d, v%d, v%d' % (q + 4 + r, sg, q + 4 + r))
            a('v_mul_f32 v%d, v%d, v%d' % (q + 8 + r, vs + 2 * r + 1, q + 8 + r))
        for k in range(3):
            a('v_cvt_pk_bf16_f32 v%d, v%d, v%d' % (198 + 2 * k, q + 4 * k, q + 4 * k + 1))
            a('v_cvt_pk_bf16_f32 v%d, v%d, v%d' % (199 + 2 * k, q + 4 * k + 2, q + 4 * k + 3))
        a('ds_write_b64 %s, v[198:199] offset:%d' % (vQW, c * 256))
        a('ds_write_b64 %s, v[200:201] offset:%d' % (vQW, 8192 + c * 256))
        a('v_xor_b32 v197, %d, %s' % (32 * c, vVW))
        a('ds_write_b64 v197, v[202:203]')
    a('s_waitcnt lgkmcnt(0)'); a('s_barrier')
    g.ts(3)
    if opt.stop == 'qkv':
        dump_lds(g, IMG_Q, 24576)
        a('s_branch K_END')
    ctx = dict(g=g, a=a, opt=opt, allreduce=allreduce, xsrc=xsrc, slot_dma=slot_dma)
    rest_of_kernel(ctx)
    a.label('K_END')
    a('s_endpgm')
    return g

def dump_lds(g, base, nbytes):
    a = g.a
    a('s_lshl_b32 s25, %s, 15' % sB); a('s_add_u32 s25, s25, 0x%x' % WS_DUMP)
    a('v_add_u32 v60, %d, %s' % (base, vT16))
    for i in range(nbytes // 4096):
        a('ds_read_b128 v[64:67], v60 offset:%d' % (i * 4096)); a('s_waitcnt lgkmcnt(0)')
        a('v_add_u32 v61, %d, %s' % (i * 4096, vT16))
        a('buffer_store_dwordx4 v[64:67], v61, %s, s25 offen' % SRD_WS); a('s_waitcnt vmcnt(0)')

def emit(opt):
    gen2.C = sys.modules[__name__]
    g = build(opt)
    nops = g.a.fix_hazards()
    head = open('cdna_kernels/%s.s.ref' % NAME).read().split('\n')
    out = []
    for l in head:
        if l.startswith('; @launch'):
            out.append('; @launch grid=(256,1,1) block=(256,1,1) lds=%d' % LDS_BYTES); continue
        out.append(l)
        if l.startswith(NAME + '_kernel:'): break
    out.append(g.a.text())
    out.append('''.section .rodata,"a"
.p2align 6
.amdhsa_kernel %s_kernel
  .amdhsa_next_free_vgpr 512
  .amdhsa_next_free_sgpr 90
  .amdhsa_accum_offset 256
  .amdhsa_group_segment_fixed_size 0
  .amdhsa_kernarg_size 88
  .amdhsa_user_sgpr_count 2
  .amdhsa_user_sgpr_kernarg_segment_ptr 1
  .amdhsa_system_sgpr_workgroup_id_x 1
  .amdhsa_float_denorm_mode_32 3
.end_amdhsa_kernel
''' % NAME)
    open(opt.o, 'w').write('\n'.join(out))
    print('instructions', len(g.a.ins), 'nops inserted', nops, file=sys.stderr)

if __name__ == '__main__':
    p = argparse.ArgumentParser()
    p.add_argument('-o', default='cdna_kernels/%s.s' % NAME)
    p.add_argument('--stop', default='')
    p.add_argument('--ts', action='store_true')
    p.add_argument('--dbg', action='store_true')
    p.add_argument('--tsd', action='store_true')
    p.add_argument('--xsc', default=' sc1')
    p.add_argument('--force_slow', action='store_true')
    opt = p.parse_args()
    emit(opt)
```

```python
import sys, argparse
sys.path.insert(0, 'gen')
from asmlib import Asm

NAME = "interleave_layers__sliding_block__moe_arch_mod__prompt"
NEGBIG = 0xF149F2CA

FL_BASE   = 0x1000
FL_KV, FL_O, FL_X, FL_Y = 0, 2, 4, 6
def FL(setno): return FL_BASE + setno * 0x8000
WS_FS     = [0x48000, 0x50000]
WS_P      = [0x60000, 0xA0000]
WS_BM     = [0xE0000, 0xE1000]
WS_Y      = [0xE2000, 0xE4000]
WS_YT     = 0x1100000
YR        = 4
WS_TS     = 0xF0000
WS_KV     = [0x100000, 0x500000]
WS_O      = [0x900000, 0xB00000]
WS_X      = [0xD00000, 0xF00000]
WS_USED   = 0x1200000
WS_DUMP   = 0x1200000
WS_SIZE_DBG = 0x2000000

XA     = 0
WST    = 32768
HALO_A, HALO_B = 0, 16384
DST    = 32768
WOST   = 65536
OST    = 0
FIXS   = 49152 + 8192
IMG_Q  = 131072
IMG_KV = 139264
MISC   = 155648
ONES   = MISC
STAT   = MISC + 256
LT     = STAT + 1024
HBUF   = LT + 1024
XROW   = HBUF + 256
PART   = IMG_KV
LDS_BYTES = 163840
assert XROW + 4096 <= LDS_BYTES

sB, sJ, sI, sW, sT, sL = 's2', 's20', 's21', 's22', 's23', 's24'
SRD_X0, SRD_WS, SRD_T, SRD_XS = 's[4:7]', 's[8:11]', 's[12:15]', 's[16:19]'
sHD, sRH, sBLK, sHP = 's34', 's35', 's36', 's45'
sXB, sCD, sTS, sOFF = 's37', 's38', 's39', 's40'
sSEL, sRSEL, sSW, sFS = 's41', 's42', 's44', 's46'
P_X0, P_WQKV, P_WO, P_WR, P_WG, P_WU, P_WD, P_OUT, P_DBG, P_WS = 48, 50, 52, 56, 58, 60, 62, 64, 66, 68

vTID, vLANE, vXA, vXB, vFA0, vFA1, vL16, vT16 = 'v0', 'v1', 'v2', 'v3', 'v4', 'v5', 'v7', 'v8'
vTRB = 'v6'
vTRC = 'v9'
vQW, vVW = 'v11', 'v12'
vTOK, vG = 'v13', 'v25'
CSQ, CSK, CSV = 14, 18, 22
XT = 26
WRS = 34
FDW = 224

class G:
    def __init__(self, opt):
        self.a = Asm(); self.opt = opt; self.vm = []
    def vmi(self, text, tag): self.a(text); self.vm.append(tag)
    def vmwait(self, tag):
        last = max(i for i, t in enumerate(self.vm) if t == tag)
        n = len(self.vm) - 1 - last
        assert n <= 63
        self.a('s_waitcnt vmcnt(%d)' % n); self.vm = self.vm[last + 1:]
    def srd(self, base, ptr, size):
        a = self.a
        a('s_mov_b32 s%d, s%d' % (base, ptr)); a('s_and_b32 s%d, s%d, 0xffff' % (base + 1, ptr + 1))
        a('s_mov_b32 s%d, 0x%x' % (base + 2, size)); a('s_mov_b32 s%d, 0x20000' % (base + 3))
    def ts(self, idx):
        if not self.opt.ts and not self.opt.tsd: return
        a = self.a; L = a.newlabel('TS')
        a('s_cmp_lg_u32 %s, 0' % sW); a('s_cbranch_scc1 %s' % L)
        a('s_memrealtime s[78:79]'); a('s_memtime s[80:81]'); a('s_waitcnt lgkmcnt(0)')
        a('v_mov_b32 v222, s78'); a('v_mov_b32 v223, s80')
        a('s_mov_b64 s[74:75], exec'); a('s_mov_b64 exec, 1')
        if self.opt.ts:
            a('s_lshl_b32 s77, %s, 8' % sB); a('s_add_u32 s77, s77, 0x%x' % (WS_TS + idx * 8))
            if idx >= 2: a('s_lshl_b32 s73, %s, 7' % sL); a('s_add_u32 s77, s77, s73')
            a('buffer_store_dwordx2 v[222:223], off, %s, s77' % SRD_WS)
            if idx == 0:
                a('v_mov_b32 v222, s82'); a('s_add_u32 s77, s77, %d' % (14 * 8)); a('buffer_store_dwordx2 v[222:223], off, %s, s77' % SRD_WS)

        else:
            m0 = {0: 1, 2: 2, 4: 3, 6: 4, 7: 5, 9: 6, 12: 7}; m1 = {2: 8, 4: 9, 6: 10, 7: 11, 9: 12, 10: 13, 15: 14}
            w0 = m0.get(idx); w1 = m1.get(idx)
            a('s_mov_b32 s84, s%d' % P_DBG); a('s_and_b32 s85, s%d, 0xffff' % (P_DBG + 1)); a('s_mov_b32 s86, 256'); a('s_mov_b32 s87, 0x20000')
            a('s_cmp_eq_u32 %s, 0' % sL)
            a('s_cselect_b32 s77, %d, %d' % (4 * (w0 if w0 is not None else 40), 4 * (w1 if w1 is not None else 40)))
            if idx < 2: a('s_mov_b32 s77, %d' % (4 * (w0 if w0 is not None else 40)))
            a('buffer_atomic_umax v222, off, s[84:87], s77')
            if idx == 0:
                a('v_mov_b32 v223, s82'); a('v_not_b32 v223, v223'); a('buffer_atomic_umax v223, off, s[84:87], 0')
                a('v_mov_b32 v223, s82'); a('buffer_atomic_umax v223, off, s[84:87], 0 offset:60')
        a('s_mov_b64 exec, s[74:75]')
        a.label(L)

def unpack2(a, dst, src):
    a('v_lshlrev_b32 v%d, 16, v%d' % (dst, src)); a('v_and_b32 v%d, 0xffff0000, v%d' % (dst + 1, src))

def allreduce(a, regs, tmp, op='v_add_f32'):
    for pat in ('quad_perm:[1,0,3,2]', 'quad_perm:[2,3,0,1]', 'row_half_mirror', 'row_mirror'):
        for r in regs: a('%s_dpp v%d, v%d, v%d %s row_mask:0xf bank_mask:0xf' % (op, r, r, r, pat))
    for sw in ('v_permlane16_swap_b32', 'v_permlane32_swap_b32'):
        for k, r in enumerate(regs): a('v_mov_b32 v%d, v%d' % (tmp + k, r))
        for k, r in enumerate(regs): a('%s v%d, v%d' % (sw, r, tmp + k))
        for k, r in enumerate(regs): a('%s v%d, v%d, v%d' % (op, r, r, tmp + k))

def timeout(g, code):
    a = g.a
    g.srd(12, P_DBG, 256)
    a('v_mov_b32 v221, %d' % code); a('buffer_store_dword v221, off, %s, 0' % SRD_T); a('s_waitcnt vmcnt(0)')

def poll(g, loads, code, pre_issued=False):
    a = g.a
    L = a.newlabel('POLL'); D = a.newlabel('POLD'); C = a.newlabel('POLC')
    a('s_mov_b32 s76, 0')
    if pre_issued: a('s_branch %s' % C)
    a.label(L)
    for voff, soff, kind, dst in loads:
        if kind == 'f': a('buffer_load_dword v%d, %s, %s, %s offen sc1' % (dst, voff, SRD_WS, soff))
        else: a('buffer_load_dwordx4 v[%d:%d], %s, %s, %s offen sc1' % (dst, dst + 3, voff, SRD_WS, soff))
    if pre_issued: a.label(C)
    a('s_waitcnt vmcnt(0)')
    first = True
    for voff, soff, kind, dst in loads:
        words = [dst] if kind == 'f' else ([dst + 3] if kind == 'g' else [dst, dst + 1, dst + 2, dst + 3])
        for w in words:
            if first: a('v_xor_b32 v219, %s, v%d' % (sT, w)); first = False
            else: a('v_xor_b32 v218, %s, v%d' % (sT, w)); a('v_or_b32 v219, v219, v218')
    a('v_cmp_ne_u32 vcc, 0, v219'); a('s_cmp_eq_u64 vcc, 0'); a('s_cbranch_scc1 %s' % D)
    a('s_add_u32 s76, s76, 1'); a('s_cmp_lt_u32 s76, 0x40000'); a('s_cbranch_scc1 %s' % L)
    timeout(g, code)
    a.label(D)

def flag_store(g, setno, layered=True):
    a = g.a
    a('s_lshl_b32 s25, %s, 7' % sB); a('s_lshl_b32 s26, %s, 2' % sW); a('s_add_u32 s25, s25, s26')
    if layered: a('s_lshl_b32 s26, %s, 15' % sL); a('s_add_u32 s25, s25, s26')
    a('s_add_u32 s25, s25, 0x%x' % FL(setno))
    a('v_mov_b32 v220, %s' % sT); a('s_mov_b64 exec, 1')
    a('buffer_store_dword v220, off, %s, s25 sc1' % SRD_WS)
    a('s_mov_b64 exec, -1')

def if_ffn(a, L, layer0_only):
    if layer0_only: a('s_cmp_lg_u32 %s, 0' % sL); a('s_cbranch_scc1 %s' % L)
    a('s_sub_u32 s3, %s, 8' % sB); a('s_cmp_ge_u32 s3, 56'); a('s_cbranch_scc1 %s' % L)

def xsrc(g, layer):
    a = g.a
    if layer == 0:
        a('s_mov_b32 s16, s4'); a('s_mov_b32 s17, s5'); a('s_mov_b32 s18, s6'); a('s_mov_b32 s19, 0x20000')
        a('s_lshl_b32 s25, %s, 7' % sBLK); a('s_lshl_b32 s26, %s, 6' % sRH); a('s_add_u32 s25, s25, s26'); a('s_lshl_b32 s25, s25, 10')
        a('s_lshl_b32 s26, %s, 9' % sHD); a('s_add_u32 %s, s25, s26' % sXB)
        a('s_mov_b32 %s, 128' % sTS); a('s_mov_b32 %s, %d' % (sCD, 16 * 1024 - 4 * 128))
    else:
        a('s_mov_b32 s16, s8'); a('s_mov_b32 s17, s9'); a('s_mov_b32 s18, s10'); a('s_mov_b32 s19, 0x20000')
        a('s_lshl_b32 s25, %s, 18' % sJ); a('s_and_b32 s26, %s, 1' % sI); a('s_lshl_b32 s26, s26, 14'); a('s_add_u32 s25, s25, s26')
        a('s_lshl_b32 s26, %s, 13' % sRH); a('s_add_u32 s25, s25, s26'); a('s_lshl_b32 s26, %s, 17' % sHD); a('s_add_u32 s25, s25, s26')
        a('s_add_u32 %s, s25, 0x%x' % (sXB, WS_X[0]))
        a('s_mov_b32 %s, 32768' % sTS); a('s_mov_b32 %s, 0x%x' % (sCD, (2048 - 4 * 32768) & 0xffffffff))
        a('v_mov_b32 %s, %s' % (vXA, vL16)); a('v_mov_b32 %s, %s' % (vXB, vL16))
    a('s_mov_b32 %s, %s' % (sOFF, sXB))
    a('s_lshl_b32 s47, %s, 14' % sRH); a('s_lshl_b32 s25, %s, 13' % sHD); a('s_add_u32 s47, s47, s25')

def x_dma(g, c, k):
    a = g.a
    a('s_add_u32 m0, s47, %d' % (c * 32768 + k * 2048))
    g.vmi('buffer_load_dwordx4 %s, %s, %s offen sc1 lds' % (vXA, SRD_XS, sOFF), 'X%d' % c)
    g.vmi('buffer_load_dwordx4 %s, %s, %s offen offset:1024 sc1 lds' % (vXB, SRD_XS, sOFF), 'X%d' % c)
    a('s_add_u32 %s, %s, %s' % (sOFF, sOFF, sTS))
    if k == 3: a('s_add_u32 %s, %s, %s' % (sOFF, sOFF, sCD))

def prologue(g):
    a, opt = g.a, g.opt
    a.label('K_START')
    a('s_cmp_ge_u32 s2, 256'); a('s_cbranch_scc1 K_END')
    if opt.ts or opt.tsd: a('s_memrealtime s[82:83]')
    a('s_load_dwordx16 s[48:63], s[0:1], 0'); a('s_load_dwordx4 s[64:67], s[0:1], 64'); a('s_load_dwordx2 s[68:69], s[0:1], 80')
    a('s_getpc_b64 s[70:71]')
    a.label('K_PC')
    a('v_lshlrev_b32 v50, 7, v0'); a('s_mov_b32 s25, K_END-K_PC'); a('v_min_u32 v51, s25, v50')
    g.vmi('global_load_dword v49, v51, s[70:71]', 'pf')
    a('v_add_u32 v50, 0x8000, v50'); a('v_min_u32 v51, s25, v50')
    g.vmi('global_load_dword v49, v51, s[70:71]', 'pf')
    a('''
    v_and_b32 v1, 63, v0
    v_lshrrev_b32 v40, 6, v0
    s_and_b32 s20, s2, 7
    v_readfirstlane_b32 s22, v40
    s_lshr_b32 s21, s2, 3
    v_and_b32 v13, 15, v1
    v_lshrrev_b32 v25, 4, v1
    v_lshlrev_b32 v7, 4, v1
    v_lshlrev_b32 v8, 4, v0
    s_and_b32 s34, s22, 1
    s_lshr_b32 s35, s22, 1
    s_and_b32 s25, s21, 1
    s_lshl_b32 s36, s20, 1
    s_add_u32 s36, s36, s25
    s_lshr_b32 s45, s21, 1
    s_xor_b32 s45, s45, %d
    s_mul_i32 s46, s20, 7
    s_add_u32 s46, s46, s21
    s_sub_u32 s46, s46, 1
    v_lshrrev_b32 v40, 3, v1
    v_lshlrev_b32 v40, 10, v40
    v_and_b32 v41, 7, v1
    v_xor_b32 v42, v41, v25
    v_lshl_add_u32 v2, v42, 4, v40
    v_xor_b32 v42, 4, v42
    v_lshl_add_u32 v3, v42, 4, v40
    v_add_u32 v3, 7168, v3
    v_lshrrev_b32 v40, 1, v13
    v_xor_b32 v40, v40, v25
    v_lshlrev_b32 v40, 4, v40
    v_lshl_add_u32 v40, v13, 7, v40
    s_lshl_b32 s25, s35, 14
    v_add_u32 v4, s25, v40
    v_xor_b32 v5, 64, v4
    v_lshrrev_b32 v40, 2, v13
    v_lshl_add_u32 v6, v25, 3, v40
    v_and_b32 v40, 3, v13
    v_lshlrev_b32 v9, 3, v40
    ''' % opt.hpx)
    a('''
    v_lshrrev_b32 v40, 1, v25
    v_lshlrev_b32 v40, 11, v40
    v_and_b32 v41, 1, v25
    v_lshl_add_u32 v40, v41, 3, v40
    v_lshl_add_u32 v40, v13, 4, v40
    s_lshl_b32 s25, s34, 12
    s_lshl_b32 s26, s35, 10
    s_add_u32 s25, s25, s26
    s_add_u32 s25, s25, %d
    v_add_u32 v11, s25, v40
    ''' % IMG_Q)
    a('''
    s_lshl_b32 s25, s35, 3
    v_and_b32 v41, 1, v25
    v_add_u32 v41, s25, v41
    v_xor_b32 v41, v41, v13
    v_lshlrev_b32 v41, 4, v41
    v_lshl_add_u32 v41, v13, 8, v41
    v_lshrrev_b32 v40, 1, v25
    v_lshl_add_u32 v41, v40, 3, v41
    s_lshl_b32 s25, s34, 13
    s_add_u32 s25, s25, %d
    v_add_u32 v12, s25, v41
    ''' % (IMG_KV + 4096))
    a('s_waitcnt lgkmcnt(0)')
    if opt.ts: a('s_memrealtime s[88:89]')
    g.srd(4, P_X0, 2048 * 1024); g.srd(8, P_WS, WS_SIZE_DBG if opt.dbg else WS_USED); g.srd(12, P_WQKV, 512 * 3072)
    a('s_lshl_b32 s25, %s, 8' % sJ); a('s_lshl_b32 s26, %s, 3' % sI); a('s_add_u32 s25, s25, s26'); a('s_lshl_b32 s26, %s, 1' % sW); a('s_add_u32 s43, s25, s26'); a('s_lshl_b32 s25, s43, 10')
    g.vmi('buffer_load_dwordx4 v[40:43], %s, %s, s25 offen' % (vL16, SRD_X0), 'st')
    g.vmi('buffer_load_dwordx4 v[44:47], %s, %s, s25 offen offset:1024' % (vL16, SRD_X0), 'st')
    g.vmi('buffer_load_dword v48, off, %s, 0 sc1' % SRD_WS, 'E')
    a('v_lshrrev_b32 v52, 2, v1'); a('s_mov_b32 s25, 3072'); a('v_mul_lo_u32 v52, v52, s25'); a('v_and_b32 v53, 3, v1'); a('v_lshl_add_u32 v52, v53, 4, v52')
    if opt.rot == 1: a('s_add_u32 s29, %s, %s' % (sW, sJ)); a('s_and_b32 s29, s29, 3')
    elif opt.rot == 2: a('s_add_u32 s29, %s, %s' % (sW, sHP)); a('s_and_b32 s29, s29, 3')
    elif opt.rot == 3: a('s_add_u32 s29, %s, %s' % (sW, sJ)); a('s_add_u32 s29, s29, %s' % sHP); a('s_and_b32 s29, s29, 3')
    else: a('s_mov_b32 s29, %s' % sW)
    a('s_mul_i32 s26, s29, %d' % (4 * 32 * 3072)); a('s_lshl_b32 s27, %s, 6' % sHP); a('s_add_u32 s26, s26, s27')
    a('s_lshl_b32 s27, s29, 13'); a('s_add_u32 s27, s27, %d' % WST)
    for i in range(4):
        for m in range(3):
            for hf in range(2):
                a('s_add_u32 m0, s27, %d' % (m * 32768 + i * 2048 + hf * 1024))
                a('s_add_u32 s28, s26, %d' % ((i * 32 + hf * 16) * 3072 + m * 1024))
                g.vmi('buffer_load_dwordx4 v52, %s, s28 offen lds' % SRD_T, 'W')
    if opt.ts: a('s_memrealtime s[90:91]')
    xsrc(g, 0)
    for k in range(4): x_dma(g, 0, k)
    a('v_lshlrev_b32 v53, 21, v1'); a('v_mov_b32 v215, 0')
    g.vmi('buffer_load_dword v49, v53, %s, 0 offen' % SRD_WS, 'tlb')
    for ptr, size in ((P_WR, 1024), (P_OUT, 2048 * 1024)):
        g.srd(12, ptr, size)
        g.vmi('buffer_load_dword v49, off, %s, 0' % SRD_T, 'tlb')
    a('s_cmp_eq_u32 %s, 1' % sW); a('s_cselect_b32 s12, s%d, s%d' % (P_WU, P_WG)); a('s_cselect_b32 s13, s%d, s%d' % (P_WU + 1, P_WG + 1))
    a('s_cmp_eq_u32 %s, 2' % sW); a('s_cselect_b32 s12, s%d, s12' % P_WD); a('s_cselect_b32 s13, s%d, s13' % (P_WD + 1))
    a('s_cmp_eq_u32 %s, 3' % sW); a('s_cselect_b32 s12, s%d, s12' % P_WO); a('s_cselect_b32 s13, s%d, s13' % (P_WO + 1))
    a('s_mov_b32 s14, 0x1c0000'); a('s_cselect_b32 s14, 0x80000, s14'); a('s_mov_b32 s25, 7168'); a('s_cselect_b32 s25, 0x800, s25'); a('s_and_b32 s13, s13, 0xffff'); a('s_mov_b32 s15, 0x20000')
    a('s_mul_i32 s26, %s, s25' % sB); a('v_lshlrev_b32 v53, 7, v1'); a('s_sub_u32 s25, s25, 128'); a('v_min_u32 v53, s25, v53')
    g.vmi('buffer_load_dword v49, v53, %s, s26 offen' % SRD_T, 'tlb')
    g.ts(0)
    g.vmwait('E')
    a('v_readfirstlane_b32 s25, v48'); a('s_mul_i32 s25, s25, 0x9E3779B1'); a('s_add_u32 %s, s25, 0x7F4A7C15' % sT)
    for i in range(4): unpack2(a, 56 + 2 * i, 40 + i); unpack2(a, 64 + 2 * i, 44 + i)
    for (u, s, q) in ((56, 72, 73), (64, 74, 75)):
        a('v_add_f32 v%d, v%d, v%d' % (s, u, u + 1)); a('v_mul_f32 v%d, v%d, v%d' % (q, u, u)); a('v_fmac_f32 v%d, v%d, v%d' % (q, u + 1, u + 1))
        for i in range(2, 8):
            a('v_add_f32 v%d, v%d, v%d' % (s, s, u + i)); a('v_fmac_f32 v%d, v%d, v%d' % (q, u + i, u + i))
    allreduce(a, [72, 73, 74, 75], 76)
    a('s_mov_b32 s25, 0x3b000000'); a('s_mov_b32 s26, 0x3727c5ac')
    for (s, q, o) in ((72, 73, 80), (74, 75, 84)):
        a('v_mul_f32 v%d, s25, v%d' % (o, s)); a('v_mul_f32 v%d, s25, v%d' % (q, q)); a('v_fma_f32 v%d, -v%d, v%d, v%d' % (q, o, o, q))
        a('v_add_f32 v%d, s26, v%d' % (q, q)); a('v_rsq_f32 v%d, v%d' % (o + 1, q)); a('v_mov_b32 v%d, %s' % (o + 3, sT)); a('v_mov_b32 v%d, v%d' % (o + 2, o + 1))
    a('v_cmp_eq_u32 vcc, 1, v1')
    for i in range(3): a('v_cndmask_b32 v%d, v%d, v%d, vcc' % (80 + i, 80 + i, 84 + i))
    a('s_lshl_b32 s25, s43, 4'); a('s_add_u32 s25, s25, 0x%x' % WS_FS[0])
    a('s_mov_b64 exec, 3')
    g.vmi('buffer_store_dwordx4 v[80:83], %s, %s, s25 offen sc1' % (vL16, SRD_WS), 'st0')
    a('s_mov_b64 exec, 15')
    for r in range(84, 88): a('v_mov_b32 v%d, 0' % r)
    a('s_lshl_b32 s25, %s, 6' % sB); a('s_add_u32 s25, s25, 0x%x' % WS_Y[0])
    g.vmi('buffer_store_dwordx4 v[84:87], %s, %s, s25 offen sc1' % (vL16, SRD_WS), 'yz')
    a('s_mov_b64 exec, -1')
    a('v_lshlrev_b32 v52, 6, %s' % vTRB); a('v_add_u32 v52, v52, %s' % vTRC); a('s_lshl_b32 s25, %s, 5' % sHD); a('s_add_u32 s25, s25, %d' % WST); a('v_add_u32 v52, s25, v52')
    g.vmwait('W')
    a('s_barrier')
    for m in range(3):
        for s in range(16):
            base = 12 * s + 4 * m
            a('ds_read_b64_tr_b16 a[%d:%d], v52 offset:%d' % (base, base + 1, s * 2048))
            a('ds_read_b64_tr_b16 a[%d:%d], v52 offset:%d' % (base + 2, base + 3, s * 2048 + 256))
        if m < 2: a('v_add_u32 v52, 32768, v52')
    for r in range(52, 56): a('v_mov_b32 v%d, 0x3f803f80' % r)
    a('v_and_b32 v56, 15, v0'); a('v_lshlrev_b32 v56, 4, v56'); a('v_add_u32 v56, %d, v56' % ONES)
    a('ds_write_b128 v56, v[52:55]')
    a('s_waitcnt lgkmcnt(0)')
    a('s_barrier')
    g.ts(1)


def gemm(g):
    a, opt = g.a, g.opt
    FA, FB, ACC = 40, 72, 104
    def when_ffn1(fn):
        L = a.newlabel('FN1'); a('s_cmp_eq_u32 %s, 0' % sL); a('s_cbranch_scc1 %s' % L); if_ffn(a, L, False); fn(); a.label(L)
    g.vm = ['X0'] * 8
    for k in range(4): x_dma(g, 1, k)
    a('s_lshl_b32 s25, %s, 11' % sBLK); a('s_lshl_b32 s26, %s, 15' % sL); a('s_add_u32 s25, s25, s26'); a('s_add_u32 s43, s25, 0x%x' % WS_FS[0])
    a('v_and_b32 v212, 127, v0'); a('v_lshlrev_b32 v213, 4, v212')
    a('v_and_b32 v214, 31, v1'); a('v_lshlrev_b32 v214, 4, v214')
    a('s_mov_b32 s33, 0x%x' % WS_BM[0])
    g.vmi('buffer_load_dwordx4 v[204:207], v214, %s, s33 offen sc1' % SRD_WS, 'BM')
    g.vmwait('X0'); a('s_barrier')
    g.ts(12)
    def gd():
        a('v_lshlrev_b32 v152, 10, %s' % vTRB); a('v_add_u32 v152, v152, %s' % vTRC); a('s_lshl_b32 s25, %s, 8' % sW); a('s_add_u32 s25, s25, %d' % WOST); a('v_add_u32 v152, s25, v152')
        for t in range(8):
            a('ds_read_b64_tr_b16 v[%d:%d], v152 offset:%d' % (FDW + 4 * t, FDW + 4 * t + 1, t * 32)); a('ds_read_b64_tr_b16 v[%d:%d], v152 offset:%d' % (FDW + 4 * t + 2, FDW + 4 * t + 3, t * 32 + 4096))
        a('s_waitcnt lgkmcnt(0)'); a('s_barrier')
    when_ffn1(gd)
    Lq = a.newlabel('GUS'); a('s_mov_b32 s72, 0'); if_ffn(a, Lq, True); a('s_mov_b32 s72, 1'); gu_setup(g); a.label(Lq)
    D = 6
    def rd(n):
        c, s = n >> 4, n & 15
        b = FA + 4 * (n & 7)
        a('ds_read_b128 v[%d:%d], %s offset:%d' % (b, b + 3, vFA1 if s & 1 else vFA0, (c & 1) * 32768 + (s >> 1) * 2048))
    def mf3(n):
        c, s = n >> 4, n & 15; b = FA + 4 * (n & 7); f = 'v[%d:%d]' % (b, b + 3); q = ACC + 12 * c
        C = lambda r: '0' if s == 0 else 'v[%d:%d]' % (r, r + 3)
        a('v_mfma_f32_16x16x32_bf16 v[%d:%d], a[%d:%d], %s, %s' % (q, q + 3, 12 * s, 12 * s + 3, f, C(q)))
        a('v_mfma_f32_16x16x32_bf16 v[%d:%d], a[%d:%d], %s, %s' % (q + 4, q + 7, 12 * s + 4, 12 * s + 7, f, C(q + 4)))
        a('v_mfma_f32_16x16x32_bf16 v[%d:%d], %s, a[%d:%d], %s' % (q + 8, q + 11, f, 12 * s + 8, 12 * s + 11, C(q + 8)))
    def body(gu):
        g.vm = list(vm0)
        for n in range(D): rd(n)
        for n in range(64):
            c, s = n >> 4, n & 15
            m = n + D
            if m < 64:
                if m % 16 == 0:
                    st = m // 16
                    if st == 3:
                        g.vm = []; a('s_waitcnt vmcnt(%d)' % (7 if gu else 0))
                    else:
                        g.vmwait('BM' if st == 1 else 'X%d' % st)
                    a('s_barrier')
                    if st == 2: a('v_add_u32 %s, 0x10000, %s' % (vFA0, vFA0)); a('v_add_u32 %s, 0x10000, %s' % (vFA1, vFA1))
                    if st == 3:
                        a('buffer_load_dwordx4 v[208:211], v213, %s, s43 offen sc1' % SRD_WS)
                        if gu: gu_srd(g, P_WU)
                rd(m)
                a('s_waitcnt lgkmcnt(%d)' % D)
            else:
                a('s_waitcnt lgkmcnt(%d)' % (63 - n))
            mf3(n)
            if c < 2 and (s & 3) == 1: x_dma(g, c + 2, s >> 2)
            if gu and 27 <= n <= 41 and n & 1: gu_dma(g, (n - 27) // 2, 0)
            if gu and 43 <= n <= 57 and n & 1: gu_dma(g, (n - 43) // 2, 32768)
            if n == 15:
                Ls = a.newlabel('CSS')
                if not gu: a('s_cmp_lg_u32 %s, 0' % sL); a('s_cbranch_scc1 %s' % Ls)
                for k in range(4): a('v_mov_b32 v%d, 0x3f803f80' % (156 + k))
                for s2 in range(16):
                    C = lambda r: ('0' if s2 == 0 else 'v[%d:%d]' % (r, r + 3))
                    a('v_mfma_f32_16x16x32_bf16 v[14:17], a[%d:%d], v[156:159], %s' % (12 * s2, 12 * s2 + 3, C(14)))
                    a('v_mfma_f32_16x16x32_bf16 v[18:21], a[%d:%d], v[156:159], %s' % (12 * s2 + 4, 12 * s2 + 7, C(18)))
                    a('v_mfma_f32_16x16x32_bf16 v[160:163], v[156:159], a[%d:%d], %s' % (12 * s2 + 8, 12 * s2 + 11, C(160)))
                a('s_nop 7'); a('v_mov_b32 v22, v160')
                a.label(Ls)
            if not gu:
                if n == 15: when_ffn1(lambda: (ffn_sel(g, 0, pre=True), ffn_flags_issue(g, 0)))
                if n == 27: when_ffn1(lambda: (ffn_flags_check(g, 0), ffn_row_issue(g, 0)))
                if n == 40: when_ffn1(lambda: (a('s_waitcnt vmcnt(0)'), ffn_gateup(g)))
                if n == 46: when_ffn1(lambda: ffn_down(g, 0))
    vm0 = list(g.vm)
    Lgu = a.newlabel('GEMMGU'); Lge = a.newlabel('GEMME')
    a('s_cmp_lg_u32 s72, 0'); a('s_cbranch_scc1 %s' % Lgu)
    body(False)
    a('s_branch %s' % Lge)
    a.label(Lgu)
    body(True)
    a.label(Lge)
    g.ts(13)
    when_ffn1(lambda: (a('s_waitcnt vmcnt(0)'), ffn_flag(g, 0)))
    a('v_subrev_u32 %s, 0x10000, %s' % (vFA0, vFA0)); a('v_subrev_u32 %s, 0x10000, %s' % (vFA1, vFA1))
    L1 = a.newlabel('GP1'); L2 = a.newlabel('GP2')
    a('s_cmp_lg_u32 %s, 0' % sL); a('s_cbranch_scc1 %s' % L1)
    gu_wait(g, 8)
    poll_nodrain(g, [('v213', 's43', 'g', 208)], 1, True)
    a('s_branch %s' % L2)
    a.label(L1)
    a('s_mov_b32 s33, 0x%x' % WS_BM[0])
    poll(g, [('v213', 's43', 'g', 208), ('v214', 's33', 'g', 204)], 15, pre_issued=True)
    sel_from_bm(g, 204)
    a.label(L2)
    a('v_lshlrev_b32 v212, 3, v212'); a('v_add_u32 v212, %d, v212' % STAT); a('v_mov_b32 v209, v210')
    a('ds_write_b64 v212, v[208:209]')
    a('s_waitcnt lgkmcnt(0)'); a('s_barrier')
    g.vm = []
    g.ts(2)
    a('s_mov_b32 s25, 0x3eb8aa3b')
    a('s_lshl_b32 s26, %s, 9' % sRH); a('s_add_u32 s26, s26, %d' % STAT)
    a('v_lshl_add_u32 v152, %s, 3, s26' % vTOK); a('v_lshl_add_u32 v153, %s, 5, s26' % vG)
    for c in range(4):
        a('ds_read_b64 v[%d:%d], v152 offset:%d' % (156 + 2 * c, 157 + 2 * c, c * 128))
        a('ds_read_b128 v[%d:%d], v153 offset:%d' % (164 + 8 * c, 167 + 8 * c, c * 128))
        a('ds_read_b128 v[%d:%d], v153 offset:%d' % (168 + 8 * c, 171 + 8 * c, c * 128 + 16))
    a('v_add_u32 v210, %d, %s' % (IMG_KV - IMG_Q, vQW)); a('s_lshl_b32 s26, %s, 12' % sHD); a('v_add_u32 v210, s26, v210')
    for c in range(4):
        q = ACC + 12 * c; m = 156 + 2 * c; sg = m + 1; vs = 164 + 8 * c
        a('s_waitcnt lgkmcnt(9)')
        a('v_mul_f32 v196, s25, v%d' % sg)
        for r in range(0, 4, 2):
            a('v_pk_fma_f32 v[%d:%d], v[%d:%d], v[%d:%d], v[%d:%d] op_sel_hi:[1,0,1] neg_lo:[0,1,0] neg_hi:[0,1,0]' % (q + r, q + r + 1, CSQ + r, CSQ + r + 1, m, m + 1, q + r, q + r + 1))
            a('v_pk_fma_f32 v[%d:%d], v[%d:%d], v[%d:%d], v[%d:%d] op_sel_hi:[1,0,1] neg_lo:[0,1,0] neg_hi:[0,1,0]' % (q + 4 + r, q + 5 + r, CSK + r, CSK + r + 1, m, m + 1, q + 4 + r, q + 5 + r))
        for r in range(4): a('v_fma_f32 v%d, -v%d, v%d, v%d' % (q + 8 + r, vs + 2 * r, CSV, q + 8 + r))
        for r in range(0, 4, 2):
            a('v_pk_mul_f32 v[%d:%d], v[%d:%d], v[196:197] op_sel_hi:[1,0]' % (q + r, q + r + 1, q + r, q + r + 1))
            a('v_pk_mul_f32 v[%d:%d], v[%d:%d], v[%d:%d] op_sel:[0,1] op_sel_hi:[1,1]' % (q + 4 + r, q + 5 + r, q + 4 + r, q + 5 + r, m, m + 1))
        for r in range(4): a('v_mul_f32 v%d, v%d, v%d' % (q + 8 + r, vs + 2 * r + 1, q + 8 + r))
        d = 198 + 6 * (c & 1)
        for k in range(3):
            a('v_cvt_pk_bf16_f32 v%d, v%d, v%d' % (d + 2 * k, q + 4 * k, q + 4 * k + 1)); a('v_cvt_pk_bf16_f32 v%d, v%d, v%d' % (d + 1 + 2 * k, q + 4 * k + 2, q + 4 * k + 3))
        a('ds_write_b64 %s, v[%d:%d] offset:%d' % (vQW, d, d + 1, c * 256))
        a('ds_write_b64 v210, v[%d:%d] offset:%d' % (d + 2, d + 3, c * 256))
        a('v_xor_b32 v197, %d, %s' % (32 * c, vVW)); a('ds_write_b64 v197, v[%d:%d]' % (d + 4, d + 5))
    a('s_waitcnt lgkmcnt(0)'); a('s_barrier')
    g.ts(3)

QA, QB, K0, K1 = 40, 44, 48, 52
VB = [(56, 60), (64, 68)]
SS = [72, 88]; PP = 104; OA, OB = 112, 128; MBD, MBA = 144, 160
VA0, VA1, VKA = 176, 180, 184

def seg_addr(g, base):
    a = g.a
    a('s_lshl_b32 s25, %s, 13' % sHD); a('s_add_u32 s25, s25, %d' % base)
    a('v_add_u32 v%d, s25, v204' % VKA)
    a('s_add_u32 s25, s25, 4096')
    a('v_add_u32 v206, s25, v205'); a('v_xor_b32 v207, 32, v206')
    a('v_cndmask_b32 v206, v208, v206, s[32:33]'); a('v_cndmask_b32 v207, v208, v207, s[32:33]')
    for t in range(4):
        a('v_xor_b32 v%d, %d, v206' % (VA0 + t, 64 * t)); a('v_xor_b32 v%d, %d, v207' % (VA1 + t, 64 * t))

def steps_code(g, steps, maskreg, hook=None):
    a = g.a
    def kread(n):
        b = K0 if n % 2 == 0 else K1
        a('ds_read_b128 v[%d:%d], v%d offset:%d' % (b, b + 3, VKA, steps[n][1] * 512))
    def vread(n):
        lo, hi = VB[n % 2]; t = steps[n][1]
        a('ds_read_b128 v[%d:%d], v%d' % (lo, lo + 3, VA0 + t)); a('ds_read_b128 v[%d:%d], v%d' % (hi, hi + 3, VA1 + t))
    def smfma(n):
        blk, t, mk = steps[n]
        b = K0 if n % 2 == 0 else K1; q = QA if blk == 0 else QB; s = SS[n % 2]
        cc = 'v[%d:%d]' % (maskreg, maskreg + 15) if mk else '0'
        a('v_mfma_f32_32x32x16_bf16 v[%d:%d], v[%d:%d], v[%d:%d], %s' % (s, s + 15, b, b + 3, q, q + 3, cc))
    N = len(steps)
    kread(0); vread(0)
    if N > 1: kread(1)
    a('s_waitcnt lgkmcnt(%d)' % (3 if N > 1 else 2))
    smfma(0)
    for n in range(N):
        o = OA if steps[n][0] == 0 else OB; s = SS[n % 2]; lo, hi = VB[n % 2]
        ex = lambda r: a('v_exp_f32 v%d, v%d' % (s + r, s + r))
        cv = lambda r: a('v_cvt_pk_bf16_f32 v%d, v%d, v%d' % (PP + r, s + 2 * r, s + 2 * r + 1))
        for r in range(4): ex(r)
        a('s_waitcnt lgkmcnt(0)')
        if n + 1 < N: smfma(n + 1)
        if n + 2 < N: kread(n + 2)
        for r in range(4, 8): ex(r)
        for r in range(4): cv(r)
        ex(8); ex(9)
        a('v_mfma_f32_32x32x16_bf16 v[%d:%d], v[%d:%d], v[%d:%d], v[%d:%d]' % (o, o + 15, lo, lo + 3, PP, PP + 3, o, o + 15))
        if n + 1 < N: vread(n + 1)
        for r in range(10, 16): ex(r)
        for r in range(4, 8): cv(r)
        a('v_mfma_f32_32x32x16_bf16 v[%d:%d], v[%d:%d], v[%d:%d], v[%d:%d]' % (o, o + 15, hi, hi + 3, PP + 4, PP + 7, o, o + 15))
        if hook: hook(n)

def two_variants(g, fn):
    a = g.a; L1 = a.newlabel('VAR1'); Lj = a.newlabel('VARJ')
    a('s_cmp_eq_u32 %s, 1' % sRH); a('s_cbranch_scc1 %s' % L1)
    fn(0); a('s_branch %s' % Lj)
    a.label(L1); fn(1)
    a.label(Lj)

def attention(g):
    a, opt = g.a, g.opt
    a('v_add_u32 v186, %d, %s' % (IMG_KV, vT16))
    for i in range(4): a('ds_read_b128 v[%d:%d], v186 offset:%d' % (188 + 4 * i, 191 + 4 * i, i * 4096))
    a('s_lshl_b32 s25, %s, 4' % sBLK); a('s_add_u32 s25, s25, %s' % sHP); a('s_lshl_b32 s25, s25, 14')
    a('s_lshl_b32 s26, %s, 22' % sL); a('s_add_u32 s25, s25, s26'); a('s_add_u32 s25, s25, 0x%x' % WS_KV[0])
    a('''
    v_and_b32 v186, 31, v1
    v_lshrrev_b32 v187, 5, v1
    v_lshlrev_b32 v204, 11, v187
    v_lshl_add_u32 v204, v186, 4, v204
    ''')
    a('s_lshl_b32 s26, %s, 12' % sHD); a('s_add_u32 s26, s26, %d' % IMG_Q); a('s_lshl_b32 s27, %s, 9' % sRH)
    a('s_add_u32 s28, s26, s27'); a('v_add_u32 v205, s28, v204'); a('s_sub_u32 s28, s26, s27'); a('s_add_u32 s28, s28, %d' % (3 * 512)); a('v_add_u32 v206, s28, v204')
    a('ds_read_b128 v[%d:%d], v205' % (QA, QA + 3)); a('ds_read_b128 v[%d:%d], v206' % (QB, QB + 3))
    a('s_waitcnt lgkmcnt(2)')
    for i in range(4):
        a('s_add_u32 s26, s25, %d' % (i * 4096))
        a('buffer_store_dwordx4 v[%d:%d], %s, %s, s26 offen sc1' % (188 + 4 * i, 191 + 4 * i, vT16, SRD_WS))
    a('v_and_b32 v205, 15, v186'); a('v_xor_b32 v206, v187, v205'); a('v_lshlrev_b32 v206, 4, v206'); a('v_lshl_add_u32 v209, v205, 8, v206')
    a('v_cmp_gt_u32 s[32:33], 16, v186'); a('v_mov_b32 v208, %d' % ONES)
    a('v_lshlrev_b32 v205, 2, v187'); a('v_sub_u32 v205, v186, v205')
    a('v_mov_b32 v206, 0x%x' % NEGBIG); a('v_mov_b32 v207, 0')
    for r0 in range(0, 16, 2):
        for k in range(2):
            r = r0 + k; key = (r & 3) + 8 * (r >> 2)
            a('v_cmp_le_i32 s[%d:%d], %d, v205' % (28 + 2 * k, 29 + 2 * k, key))
        for k in range(2):
            r = r0 + k
            a('v_cndmask_b32 v%d, v206, v207, s[%d:%d]' % (MBD + r, 28 + 2 * k, 29 + 2 * k)); a('v_cndmask_b32 v%d, v207, v206, s[%d:%d]' % (MBA + r, 28 + 2 * k, 29 + 2 * k))
    a('v_mov_b32 v205, v209')
    for r in range(16): a('v_mov_b32 v%d, 0' % (OA + r)); a('v_mov_b32 v%d, 0' % (OB + r))
    seg_addr(g, IMG_KV)
    def hook(n):
        if n == 3:
            a('s_waitcnt vmcnt(0)'); flag_store(g, FL_KV)
    two_variants(g, lambda p: steps_code(g, [(0, t, t == p) for t in range(p + 1)] + [(1, t, t == 3 - p) for t in range(4 - p)], MBD, hook))
    g.ts(4)
    gu_frags(g)
    Lno = a.newlabel('NOHALO'); Lb = a.newlabel('HALOB'); Lend = a.newlabel('HALOE')
    a('s_cmp_eq_u32 %s, 0' % sBLK); a('s_cbranch_scc1 %s' % Lno)
    def wg_of(dst, delta):
        a('s_sub_u32 s25, %s, %d' % (sBLK, delta)); a('s_max_i32 s25, s25, 0')
        a('s_and_b32 s26, s25, 1'); a('s_lshl_b32 s27, %s, 1' % sHP); a('s_add_u32 s26, s26, s27'); a('s_lshl_b32 s26, s26, 3'); a('s_lshr_b32 s27, s25, 1'); a('s_add_u32 %s, s26, s27' % dst)
    wg_of('s29', 1); wg_of('s30', 2)
    a('s_lshl_b32 s29, s29, 7'); a('s_lshl_b32 s30, s30, 7')
    a('v_and_b32 v206, 3, v1'); a('v_lshlrev_b32 v206, 2, v206'); a('v_and_b32 v207, 4, v1'); a('v_cmp_eq_u32 vcc, 0, v207')
    a('v_mov_b32 v207, s30'); a('v_mov_b32 v210, s29'); a('v_cndmask_b32 v207, v207, v210, vcc'); a('v_add_u32 v206, v206, v207')
    a('s_lshl_b32 s27, %s, 15' % sL); a('s_add_u32 s27, s27, 0x%x' % FL(FL_KV))
    poll(g, [('v206', 's27', 'f', 216)], 2)
    a('s_lshl_b32 s27, %s, 4' % sBLK); a('s_add_u32 s27, s27, %s' % sHP); a('s_sub_u32 s27, s27, 16'); a('s_lshl_b32 s27, s27, 14')
    a('s_lshl_b32 s26, %s, 22' % sL); a('s_add_u32 s27, s27, s26'); a('s_lshl_b32 s26, %s, 12' % sW); a('s_add_u32 s27, s27, s26'); a('s_add_u32 s27, s27, 0x%x' % WS_KV[0])
    a('s_add_u32 m0, s26, %d' % HALO_B)
    for i in range(4): a('buffer_load_dwordx4 %s, %s, s27 offen offset:%d sc1 lds' % (vL16, SRD_WS, i * 1024))
    a('s_cmp_eq_u32 %s, 1' % sBLK); a('s_cbranch_scc1 %s' % Lb)
    a('s_sub_u32 s27, s27, %d' % (16 * 16384)); a('s_add_u32 m0, s26, %d' % HALO_A)
    for i in range(4): a('buffer_load_dwordx4 %s, %s, s27 offen offset:%d sc1 lds' % (vL16, SRD_WS, i * 1024))
    a.label(Lb)
    wo_stage(g)
    seg_addr(g, HALO_B)
    a('s_waitcnt vmcnt(16)'); a('s_barrier')
    steps_code(g, [(n & 1, n >> 1, False) for n in range(8)], MBA)
    a('s_cmp_eq_u32 %s, 1' % sBLK); a('s_cbranch_scc1 %s' % Lend)
    seg_addr(g, HALO_A)
    two_variants(g, lambda p: steps_code(g, [(0, t, t == p) for t in range(p, 4)] + [(1, t, t == 3 - p) for t in range(3 - p, 4)], MBA))
    a('s_branch %s' % Lend)
    a.label(Lno)
    wo_stage(g)
    a.label(Lend)
    g.ts(5)
    for blk, o in ((0, OA), (1, OB)):
        Lok = a.newlabel('SMOK')
        a('s_mov_b32 s25, 0x21800000'); a('s_mov_b32 s26, 0x5d800000')
        a('v_cmp_nle_f32 vcc, s25, v%d' % (o + 8)); a('v_cmp_nge_f32 s[28:29], s26, v%d' % (o + 8)); a('s_or_b64 vcc, vcc, s[28:29]')
        if opt.force_slow: a('s_mov_b64 vcc, 1')
        a('s_cmp_eq_u64 vcc, 0'); a('s_cbranch_scc1 %s' % Lok)
        slow_softmax(g, blk, o)
        a.label(Lok)
    a('s_lshl_b32 s25, %s, 5' % sBLK); a('s_lshl_b32 s26, %s, 1' % sHP); a('s_add_u32 s25, s25, s26'); a('s_add_u32 s25, s25, %s' % sHD); a('s_lshl_b32 s25, s25, 12')
    a('s_lshl_b32 s26, %s, 21' % sL); a('s_add_u32 s25, s25, s26'); a('s_add_u32 s25, s25, 0x%x' % WS_O[0])
    a('s_lshl_b32 s26, %s, 10' % sRH); a('s_add_u32 s27, s25, s26'); a('s_sub_u32 s28, s25, s26'); a('s_add_u32 s28, s28, %d' % (3 * 1024))
    a('v_and_b32 v186, 31, v1'); a('v_lshrrev_b32 v187, 5, v1'); a('v_lshlrev_b32 v186, 5, v186'); a('v_lshl_add_u32 v186, v187, 4, v186')
    for blk, o, so, d in ((0, OA, 's27', 188), (1, OB, 's28', 192)):
        a('v_rcp_f32 v187, v%d' % (o + 8))
        for r in range(8): a('v_mul_f32 v%d, v187, v%d' % (o + r, o + r))
        for r in range(4): a('v_cvt_pk_bf16_f32 v%d, v%d, v%d' % (d + r, o + 2 * r, o + 2 * r + 1))
        a('v_permlane32_swap_b32 v%d, v%d' % (d, d + 2)); a('v_permlane32_swap_b32 v%d, v%d' % (d + 1, d + 3))
        a('buffer_store_dwordx4 v[%d:%d], v186, %s, %s offen sc1' % (d, d + 3, SRD_WS, so))
    a('s_waitcnt vmcnt(0)')
    flag_store(g, FL_O)
    g.ts(6)

def slow_softmax(g, blk, o):
    a = g.a
    q = QA if blk == 0 else QB
    S = 72; CM = 88; P = 104; K = 48; VL = 56; VH = 60; MX = 211
    if blk == 0: a('s_mov_b32 s28, %s' % sRH)
    else: a('s_sub_u32 s28, 3, %s' % sRH)
    a('v_mov_b32 v%d, 0x%x' % (MX, NEGBIG))
    def loop(body, tag):
        L = a.newlabel('SL' + tag); Lskip = a.newlabel('SLK'); Lown = a.newlabel('SLO'); Lb = a.newlabel('SLB'); Lgo = a.newlabel('SLG')
        Lm = a.newlabel('SLM'); Lz = a.newlabel('SLZ'); Ld = a.newlabel('SLD')
        a('s_mov_b32 s30, 0'); a.label(L)
        a('s_cmp_le_u32 s30, s28'); a('s_cbranch_scc1 %s' % Lown)
        a('s_sub_u32 s31, s30, 1')
        a('s_cmp_lt_u32 s31, 4'); a('s_cbranch_scc0 %s' % Lb)
        a('s_cmp_lt_u32 %s, 2' % sBLK); a('s_cbranch_scc1 %s' % Lskip)
        a('s_mov_b32 s29, %d' % HALO_A); a('s_mov_b32 s27, s31'); a('s_cmp_eq_u32 s31, s28'); a('s_cselect_b32 s33, 2, 0'); a('s_branch %s' % Lgo)
        a.label(Lb)
        a('s_cmp_lt_u32 %s, 1' % sBLK); a('s_cbranch_scc1 %s' % Lskip)
        a('s_mov_b32 s29, %d' % HALO_B); a('s_sub_u32 s27, s31, 4'); a('s_mov_b32 s33, 0'); a('s_branch %s' % Lgo)
        a.label(Lown)
        a('s_mov_b32 s29, %d' % IMG_KV); a('s_mov_b32 s27, s30'); a('s_cmp_eq_u32 s30, s28'); a('s_cselect_b32 s33, 1, 0')
        a.label(Lgo)
        a('s_lshl_b32 s25, %s, 13' % sHD); a('s_add_u32 s29, s29, s25'); a('s_lshl_b32 s25, s27, 9'); a('s_add_u32 s25, s25, s29')
        a('v_add_u32 v210, s25, v204'); a('ds_read_b128 v[%d:%d], v210' % (K, K + 3))
        a('s_cmp_eq_u32 s33, 0'); a('s_cbranch_scc1 %s' % Lz)
        a('s_cmp_eq_u32 s33, 1'); a('s_cbranch_scc0 %s' % Lm)
        for r in range(16): a('v_mov_b32 v%d, v%d' % (CM + r, MBD + r))
        a('s_branch %s' % Ld)
        a.label(Lm)
        for r in range(16): a('v_mov_b32 v%d, v%d' % (CM + r, MBA + r))
        a('s_branch %s' % Ld)
        a.label(Lz)
        for r in range(16): a('v_mov_b32 v%d, 0' % (CM + r))
        a.label(Ld)
        body()
        a.label(Lskip)
        a('s_add_u32 s30, s30, 1'); a('s_cmp_lt_u32 s30, 9'); a('s_cbranch_scc1 %s' % L)
    def p1():
        a('s_waitcnt lgkmcnt(0)')
        a('v_mfma_f32_32x32x16_bf16 v[%d:%d], v[%d:%d], v[%d:%d], v[%d:%d]' % (S, S + 15, K, K + 3, q, q + 3, CM, CM + 15))
        a('s_nop 15')
        for r in range(0, 16, 2): a('v_max3_f32 v%d, v%d, v%d, v%d' % (MX, MX, S + r, S + r + 1))
    loop(p1, 'A')
    a('v_mov_b32 v210, v%d' % MX); a('s_nop 1'); a('v_permlane32_swap_b32 v%d, v210' % MX); a('v_max_f32 v%d, v%d, v210' % (MX, MX))
    for r in range(16): a('v_mov_b32 v%d, 0' % (o + r))
    def p2():
        for r in range(16): a('v_sub_f32 v%d, v%d, v%d' % (CM + r, CM + r, MX))
        a('s_add_u32 s29, s29, 4096'); a('s_lshl_b32 s25, s27, 6')
        a('v_cmp_gt_u32 vcc, 16, v186') if False else None
        a('v_add_u32 v210, s29, v205'); a('v_xor_b32 v212, 32, v210')
        a('v_cndmask_b32 v210, v208, v210, s[70:71]'); a('v_cndmask_b32 v212, v208, v212, s[70:71]')
        a('v_xor_b32 v210, s25, v210'); a('v_xor_b32 v212, s25, v212')
        a('ds_read_b128 v[%d:%d], v210' % (VL, VL + 3)); a('ds_read_b128 v[%d:%d], v212' % (VH, VH + 3))
        a('s_waitcnt lgkmcnt(0)')
        a('v_mfma_f32_32x32x16_bf16 v[%d:%d], v[%d:%d], v[%d:%d], v[%d:%d]' % (S, S + 15, K, K + 3, q, q + 3, CM, CM + 15))
        a('s_nop 15')
        for r in range(16): a('v_exp_f32 v%d, v%d' % (S + r, S + r))
        a('s_nop 0')
        for r in range(8): a('v_cvt_pk_bf16_f32 v%d, v%d, v%d' % (P + r, S + 2 * r, S + 2 * r + 1))
        a('s_nop 1')
        a('v_mfma_f32_32x32x16_bf16 v[%d:%d], v[%d:%d], v[%d:%d], v[%d:%d]' % (o, o + 15, VL, VL + 3, P, P + 3, o, o + 15))
        a('v_mfma_f32_32x32x16_bf16 v[%d:%d], v[%d:%d], v[%d:%d], v[%d:%d]' % (o, o + 15, VH, VH + 3, P + 4, P + 7, o, o + 15))
    a('v_and_b32 v210, 31, v1'); a('v_cmp_gt_u32 s[70:71], 16, v210')
    loop(p2, 'B')
    a('s_nop 15')

def wo_stage(g):
    a = g.a
    g.srd(12, P_WO, 512 * 1024)
    a('v_lshrrev_b32 v210, 3, v1'); a('v_lshlrev_b32 v210, 10, v210'); a('v_and_b32 v211, 7, v1'); a('v_lshl_add_u32 v210, v211, 4, v210')
    a('s_and_b32 s25, %s, 7' % sI); a('s_lshl_b32 s25, s25, 7'); a('s_lshl_b32 s26, %s, 17' % sW); a('s_add_u32 s25, s25, s26')
    a('s_lshl_b32 s27, %s, 14' % sW); a('s_add_u32 s27, s27, %d' % WOST)
    for n in range(16):
        a('s_add_u32 m0, s27, %d' % (n * 1024)); a('s_add_u32 s26, s25, %d' % (n * 8192))
        a('buffer_load_dwordx4 v210, %s, s26 offen lds' % SRD_T)

def gu_srd(g, ptr):
    g.srd(12, ptr, 512 * 3584)

def gu_setup(g):
    a = g.a
    gu_srd(g, P_WG)
    a('v_lshrrev_b32 v76, 2, v1'); a('s_mov_b32 s28, 3584'); a('v_mul_lo_u32 v76, v76, s28'); a('v_and_b32 v77, 3, v1'); a('v_lshl_add_u32 v76, v77, 4, v76')
    a('s_lshl_b32 s30, %s, 6' % sFS); a('s_mul_i32 s29, %s, %d' % (sW, 128 * 3584)); a('s_add_u32 s30, s30, s29')
    a('s_lshl_b32 s31, %s, 13' % sW)

def gu_wait(g, n):
    a = g.a
    L0 = a.newlabel('GW0'); L2 = a.newlabel('GW2')
    a('s_cmp_eq_u32 s72, 0'); a('s_cbranch_scc1 %s' % L0)
    a('s_waitcnt vmcnt(%d)' % n); a('s_branch %s' % L2)
    a.label(L0); a('s_waitcnt vmcnt(0)')
    a.label(L2)

def gu_dma(g, n, base):
    a = g.a
    a('s_add_u32 m0, s31, %d' % (base + n * 1024)); a('s_add_u32 s29, s30, %d' % (n * 16 * 3584))
    a('buffer_load_dwordx4 v76, %s, s29 offen lds' % SRD_T)

def gu_frags(g):
    a = g.a
    L = a.newlabel('NOGF'); if_ffn(a, L, True)
    a('s_waitcnt vmcnt(0)'); a('s_barrier')
    a('v_lshlrev_b32 v210, 6, %s' % vTRB); a('v_add_u32 v210, v210, %s' % vTRC)
    a('s_lshl_b32 s25, %s, 15' % sRH); a('s_lshl_b32 s26, %s, 5' % sHD); a('s_add_u32 s25, s25, s26'); a('v_add_u32 v210, s25, v210')
    for s in range(16):
        a('ds_read_b64_tr_b16 a[%d:%d], v210 offset:%d' % (192 + 4 * s, 193 + 4 * s, s * 2048)); a('ds_read_b64_tr_b16 a[%d:%d], v210 offset:%d' % (194 + 4 * s, 195 + 4 * s, s * 2048 + 256))
    a('s_waitcnt lgkmcnt(0)'); a('s_barrier')
    a.label(L)

def down_stage(g):
    a = g.a
    L = a.newlabel('NODW'); if_ffn(a, L, True)
    g.srd(12, P_WD, 1792 * 1024)
    a('s_lshl_b32 s25, %s, 15' % sFS); a('s_lshl_b32 s26, %s, 14' % sW); a('s_add_u32 s25, s25, s26'); a('s_add_u32 s27, s26, %d' % WOST)
    for n in range(16):
        a('s_add_u32 m0, s27, %d' % (n * 1024)); a('s_add_u32 s26, s25, %d' % (n * 1024))
        a('buffer_load_dwordx4 %s, %s, s26 offen lds' % (vL16, SRD_T))
    a.label(L)

def poll_yflags(g, soff, code):
    a = g.a
    a('v_min_u32 v206, 55, v1'); a('v_add_u32 v206, 8, v206'); a('v_lshlrev_b32 v206, 7, v206')
    poll(g, [('v206', soff, 'f4', 212)], code)

def own_check(g, L):
    a = g.a
    a('s_lshr_b32 s25, %s, 8' % sSEL); a('s_cmp_lg_u32 s25, %s' % sJ); a('s_cbranch_scc1 %s' % L)
    a('s_lshr_b32 s25, %s, 6' % sSEL); a('s_and_b32 s25, s25, 3'); a('s_lshr_b32 s26, %s, 3' % sI); a('s_cmp_lg_u32 s25, s26'); a('s_cbranch_scc1 %s' % L)

def y_fetch(g, ylayer, code, L):
    a = g.a
    own_check(g, L)
    if ylayer == 0:
        a('s_mov_b32 s27, 0x%x' % FL(FL_Y + ylayer))
        poll_yflags(g, 's27', code)
        a('s_and_b32 s25, %s, 7' % sI); a('s_lshl_b32 s25, s25, 8'); a('s_lshl_b32 s26, %s, 6' % sW); a('s_add_u32 s25, s25, s26'); a('s_add_u32 s25, s25, 0x%x' % WS_Y[ylayer])
        a('v_lshlrev_b32 v186, 4, %s' % vG)
        for rep in range(YR):
            a('s_add_u32 s26, s25, %d' % (rep * 2048)); a('buffer_load_dwordx4 v[%d:%d], v186, %s, s26 offen sc1' % (196 + 4 * rep, 199 + 4 * rep, SRD_WS))
        a('s_waitcnt vmcnt(0)')
        for rep in range(1, YR):
            for r in range(4): a('v_add_f32 v%d, v%d, v%d' % (196 + r, 196 + r, 196 + 4 * rep + r))
    else:
        Lp = a.newlabel('YTP'); Ld = a.newlabel('YTD')
        a('v_lshlrev_b32 v186, 3, v1'); a('s_lshl_b32 s25, %s, 12' % sW); a('v_add_u32 v186, s25, v186')
        a('s_and_b32 s25, %s, 7' % sI); a('s_lshl_b32 s25, s25, 9'); a('s_add_u32 s25, s25, 0x%x' % WS_YT)
        a('s_mov_b32 s76, 0'); a.label(Lp)
        for i in range(14):
            a('s_add_u32 s26, s25, %d' % (i * 16384)); a('buffer_load_dwordx2 v[%d:%d], v186, %s, s26 offen sc1' % (40 + 2 * i, 41 + 2 * i, SRD_WS))
        a('s_waitcnt vmcnt(0)')
        a('v_xor_b32 v219, %s, v41' % sT)
        for i in range(1, 14): a('v_xor_b32 v218, %s, v%d' % (sT, 41 + 2 * i)); a('v_or_b32 v219, v219, v218')
        a('v_cmp_ne_u32 vcc, 0, v219'); a('s_cmp_eq_u64 vcc, 0'); a('s_cbranch_scc1 %s' % Ld)
        a('s_add_u32 s76, s76, 1'); a('s_cmp_lt_u32 s76, 0x40000'); a('s_cbranch_scc1 %s' % Lp)
        timeout(g, code)
        a.label(Ld)
        for i in range(1, 14): a('v_add_f32 v40, v40, v%d' % (40 + 2 * i))
        a('s_lshl_b32 s25, %s, 8' % sW); a('s_add_u32 s25, s25, %d' % XROW); a('v_lshlrev_b32 v186, 2, v1'); a('v_add_u32 v186, s25, v186')
        a('ds_write_b32 v186, v40'); a('s_waitcnt lgkmcnt(0)'); a('s_barrier')
        a('s_lshl_b32 s25, %s, 6' % sW); a('s_add_u32 s25, s25, %d' % XROW); a('v_lshlrev_b32 v186, 4, %s' % vG); a('v_add_u32 v186, s25, v186')
        for k in range(4): a('ds_read_b128 v[%d:%d], v186 offset:%d' % (196 + 4 * k, 199 + 4 * k, k * 256))
        a('s_waitcnt lgkmcnt(0)')
        for k in range(1, 4):
            for r in range(4): a('v_add_f32 v%d, v%d, v%d' % (196 + r, 196 + r, 196 + 4 * k + r))

def blayer(g, dst, ylayer, code):
    a = g.a
    a('v_lshlrev_b32 v186, 4, %s' % vTOK); a('v_add_u32 v186, %d, v186' % LT)
    for tt in range(4): a('ds_read_b64 v[%d:%d], v186 offset:%d' % (188 + 2 * tt, 189 + 2 * tt, tt * 256))
    for tt in range(4):
        for k in range(2): unpack2(a, dst + 4 * tt + 2 * k, XT + 2 * tt + k)
    a('s_waitcnt lgkmcnt(0)')
    for tt in range(4):
        m, s = 188 + 2 * tt, 189 + 2 * tt
        a('v_mul_f32 v%d, v%d, v%d' % (m, m, s)); a('v_add_f32 v%d, 1.0, v%d' % (s, s))
        for r in range(4): a('v_fma_f32 v%d, v%d, v%d, -v%d' % (dst + 4 * tt + r, dst + 4 * tt + r, s, m))
    L = a.newlabel('NOY')
    if ylayer == 0:
        own_check(g, L)
        a('v_mov_b32 v196, v38'); a('v_mov_b32 v197, v39'); a('v_mov_b32 v198, v23'); a('v_mov_b32 v199, v24')
    else:
        y_fetch(g, 1, code, L)
    a('s_and_b32 s25, %s, 63' % sSEL)
    for tt in range(4):
        a('v_add_u32 v186, %d, %s' % (16 * tt, vTOK)); a('v_cmp_eq_u32 vcc, s25, v186'); a('v_cndmask_b32 v187, 0, 1.0, vcc')
        for r in range(4): a('v_fmac_f32 v%d, v187, v%d' % (dst + 4 * tt + r, 196 + r))
    a.label(L)

def tile_image_write(g, src):
    a = g.a
    a('v_lshrrev_b32 v186, 1, %s' % vG); a('s_lshl_b32 s25, %s, 1' % sW); a('v_add_u32 v186, s25, v186')
    a('v_lshrrev_b32 v187, 1, %s' % vTOK); a('v_xor_b32 v186, v186, v187'); a('v_lshlrev_b32 v186, 4, v186')
    a('v_lshl_add_u32 v186, %s, 7, v186' % vTOK); a('v_and_b32 v187, 1, %s' % vG); a('v_lshl_add_u32 v186, v187, 3, v186'); a('v_add_u32 v186, %d, v186' % IMG_Q)
    for tt in range(4): a('ds_write_b64 v186, v[%d:%d] offset:%d' % (src + 2 * tt, src + 2 * tt + 1, tt * 2048))

def outproj(g):
    a, opt = g.a, g.opt
    WO, FR, ACC = 40, 104, 136
    a('s_barrier')
    a('v_lshlrev_b32 v205, 7, %s' % vTRB); a('v_add_u32 v205, v205, %s' % vTRC); a('s_lshl_b32 s25, %s, 5' % sW); a('s_add_u32 s25, s25, %d' % WOST); a('v_add_u32 v205, s25, v205')
    for s in range(16):
        a('ds_read_b64_tr_b16 v[%d:%d], v205 offset:%d' % (WO + 4 * s, WO + 4 * s + 1, s * 4096)); a('ds_read_b64_tr_b16 v[%d:%d], v205 offset:%d' % (WO + 4 * s + 2, WO + 4 * s + 3, s * 4096 + 512))
    L0 = a.newlabel('OPL0')
    a('s_cmp_lg_u32 %s, 0' % sL); a('s_cbranch_scc1 %s' % L0)
    a('s_lshl_b32 s25, %s, 8' % sJ); a('s_lshr_b32 s26, %s, 3' % sI); a('s_lshl_b32 s26, s26, 6'); a('s_add_u32 s25, s25, s26'); a('s_lshl_b32 s25, s25, 10')
    a('s_and_b32 s26, %s, 7' % sI); a('s_lshl_b32 s26, s26, 7'); a('s_lshl_b32 s27, %s, 5' % sW); a('s_add_u32 s26, s26, s27'); a('s_add_u32 s25, s25, s26')
    a('v_lshlrev_b32 v186, 3, %s' % vG); a('v_lshl_add_u32 v187, %s, 10, v186' % vTOK)
    for tt in range(4):
        a('s_add_u32 s27, s25, %d' % (tt * 16384)); a('buffer_load_dwordx2 v[%d:%d], v187, %s, s27 offen' % (XT + 2 * tt, XT + 2 * tt + 1, SRD_X0))
    g.srd(12, P_WR, 1024)
    a('buffer_load_dwordx2 v[188:189], v186, %s, s26 offen' % SRD_T); a('buffer_load_dwordx4 v[192:195], %s, %s, 0 offen' % (vL16, SRD_T))
    a('s_waitcnt vmcnt(0)')
    for k in range(2): unpack2(a, WRS + 2 * k, 188 + k)
    for k in range(4): unpack2(a, 196 + 2 * k, 192 + k)
    for k in range(1, 8): a('v_add_f32 v196, v196, v%d' % (196 + k))
    allreduce(a, [196], 197)
    a('v_readfirstlane_b32 %s, v196' % sSW)
    a.label(L0)
    a('s_waitcnt lgkmcnt(0)'); a('s_barrier')
    Ly = a.newlabel('OPY')
    a('s_cmp_eq_u32 %s, 0' % sL); a('s_cbranch_scc1 %s' % Ly)
    y_fetch(g, 0, 4, Ly)
    a('v_mov_b32 v38, v196'); a('v_mov_b32 v39, v197'); a('v_mov_b32 v23, v198'); a('v_mov_b32 v24, v199')
    a.label(Ly)
    a('s_lshr_b32 s25, %s, 3' % sI)
    a('s_lshr_b32 s26, s25, 1'); a('s_lshl_b32 s26, s26, 10'); a('s_lshl_b32 s27, %s, 7' % sJ); a('s_add_u32 s27, s27, s26')
    a('s_lshl_b32 s26, %s, 15' % sL); a('s_add_u32 s27, s27, s26'); a('s_add_u32 s27, s27, 0x%x' % FL(FL_O))
    a('v_and_b32 v186, 3, v1'); a('v_lshlrev_b32 v186, 2, v186'); a('v_lshrrev_b32 v187, 2, v1'); a('v_lshl_add_u32 v186, v187, 11, v186')
    poll(g, [('v186', 's27', 'f', 216)], 3)
    g.ts(7)
    a('s_lshl_b32 s26, %s, 1' % sJ); a('s_lshr_b32 s27, s25, 1'); a('s_add_u32 s26, s26, s27'); a('s_lshl_b32 s26, s26, 17')
    a('s_lshl_b32 s27, %s, 21' % sL); a('s_add_u32 s26, s26, s27'); a('s_and_b32 s27, s25, 1'); a('s_lshl_b32 s27, s27, 11'); a('s_add_u32 s26, s26, s27')
    a('s_lshl_b32 s28, %s, 12' % sRH); a('s_add_u32 s26, s26, s28'); a('s_lshl_b32 s28, %s, 10' % sHD); a('s_add_u32 s26, s26, s28'); a('s_add_u32 s26, s26, 0x%x' % WS_O[0])
    a('s_lshl_b32 s27, %s, 11' % sRH); a('s_add_u32 s27, s27, s28')
    for n in range(16):
        a('s_add_u32 m0, s27, %d' % (OST + n * 4096)); a('s_add_u32 s28, s26, %d' % (n * 8192))
        a('buffer_load_dwordx4 %s, %s, s28 offen sc1 lds' % (vL16, SRD_WS))
    a('v_lshrrev_b32 v186, 1, %s' % vG); a('v_lshlrev_b32 v186, 11, v186'); a('v_lshl_add_u32 v186, %s, 5, v186' % vTOK)
    a('v_and_b32 v187, 1, %s' % vG); a('v_lshl_add_u32 v186, v187, 4, v186')
    if OST: a('v_add_u32 v186, %d, v186' % OST)
    DO = 6
    def ord_(n):
        s, tt = n >> 2, n & 3; b = FR + 4 * (n & 7)
        a('ds_read_b128 v[%d:%d], v186 offset:%d' % (b, b + 3, s * 4096 + tt * 512))
    def omf(n):
        s, tt = n >> 2, n & 3; b = FR + 4 * (n & 7); o = ACC + 4 * tt
        a('v_mfma_f32_16x16x32_bf16 v[%d:%d], v[%d:%d], v[%d:%d], %s' % (o, o + 3, WO + 4 * s, WO + 4 * s + 3, b, b + 3, '0' if s == 0 else 'v[%d:%d]' % (o, o + 3)))
    a('s_waitcnt vmcnt(12)'); a('s_barrier')
    for n in range(DO): ord_(n)
    for n in range(64):
        m = n + DO
        if m < 64:
            if m % 16 == 0: a('s_waitcnt vmcnt(%d)' % (12 - 4 * (m // 16))); a('s_barrier')
            ord_(m); a('s_waitcnt lgkmcnt(%d)' % DO)
        else:
            a('s_waitcnt lgkmcnt(%d)' % (63 - n))
        omf(n)
    g.ts(8)
    BASE = 152
    Lb1 = a.newlabel('OPB1'); Lb2 = a.newlabel('OPB2')
    a('s_cmp_lg_u32 %s, 0' % sL); a('s_cbranch_scc1 %s' % Lb1)
    for tt in range(4):
        for k in range(2): unpack2(a, BASE + 4 * tt + 2 * k, XT + 2 * tt + k)
    a('s_branch %s' % Lb2)
    a.label(Lb1); blayer(g, BASE, 0, 4); a.label(Lb2)
    for i in range(16): a('v_add_f32 v%d, v%d, v%d' % (BASE + i, BASE + i, ACC + i))
    for tt in range(4):
        for k in range(2): a('v_cvt_pk_bf16_f32 v%d, v%d, v%d' % (XT + 2 * tt + k, BASE + 4 * tt + 2 * k, BASE + 4 * tt + 2 * k + 1))
    tile_image_write(g, XT)
    for tt in range(4):
        for k in range(2): unpack2(a, BASE + 4 * tt + 2 * k, XT + 2 * tt + k)
    for tt in range(4):
        x = BASE + 4 * tt
        a('v_add_f32 v%d, v%d, v%d' % (168 + tt, x, x + 1)); a('v_mul_f32 v%d, v%d, v%d' % (172 + tt, x, x)); a('v_mul_f32 v%d, v%d, v%d' % (176 + tt, x, WRS))
        a('v_add_f32 v%d, v%d, v%d' % (168 + tt, 168 + tt, x + 2)); a('v_fmac_f32 v%d, v%d, v%d' % (172 + tt, x + 1, x + 1)); a('v_fmac_f32 v%d, v%d, v%d' % (176 + tt, x + 1, WRS + 1))
        a('v_add_f32 v%d, v%d, v%d' % (168 + tt, 168 + tt, x + 3)); a('v_fmac_f32 v%d, v%d, v%d' % (172 + tt, x + 2, x + 2)); a('v_fmac_f32 v%d, v%d, v%d' % (176 + tt, x + 2, WRS + 2))
        a('v_fmac_f32 v%d, v%d, v%d' % (172 + tt, x + 3, x + 3)); a('v_fmac_f32 v%d, v%d, v%d' % (176 + tt, x + 3, WRS + 3))
    qs = (168, 172, 176)
    for q in qs: a('v_permlane32_swap_b32 v%d, v%d' % (q, q + 2)); a('v_permlane32_swap_b32 v%d, v%d' % (q + 1, q + 3))
    for q in qs: a('v_add_f32 v%d, v%d, v%d' % (q, q, q + 2)); a('v_add_f32 v%d, v%d, v%d' % (q + 1, q + 1, q + 3))
    for q in qs: a('v_permlane16_swap_b32 v%d, v%d' % (q, q + 1))
    for k, q in enumerate(qs): a('v_add_f32 v%d, v%d, v%d' % (180 + k, q, q + 1))
    a('v_mov_b32 v183, %s' % sT)
    a('s_lshl_b32 s25, %s, 10' % sW); a('s_add_u32 s25, s25, %d' % PART); a('v_add_u32 v186, s25, %s' % vL16); a('ds_write_b128 v186, v[180:183]')
    a('s_waitcnt lgkmcnt(0)'); a('s_barrier')
    Lw23 = a.newlabel('OPW23'); Lpubend = a.newlabel('OPPE')
    a('s_cmp_ge_u32 %s, 2' % sW); a('s_cbranch_scc1 %s' % Lw23)
    a('v_add_u32 v186, %d, %s' % (IMG_Q, vT16))
    for i in range(4): a('ds_read_b128 v[%d:%d], v186 offset:%d' % (152 + 4 * i, 155 + 4 * i, i * 2048))
    a('s_lshl_b32 s25, %s, 3' % sJ); a('s_and_b32 s26, %s, 7' % sI); a('s_add_u32 s25, s25, s26'); a('s_lshl_b32 s25, s25, 15')
    a('s_lshr_b32 s27, %s, 3' % sI); a('s_lshl_b32 s27, s27, 13'); a('s_add_u32 s25, s25, s27')
    a('s_lshl_b32 s27, %s, 21' % sL); a('s_add_u32 s25, s25, s27'); a('s_add_u32 s25, s25, 0x%x' % WS_X[0])
    a('s_lshl_b32 s27, %s, 9' % sW); a('s_add_u32 s27, s27, %d' % PART); a('v_add_u32 v187, s27, %s' % vL16)
    for k in range(4): a('ds_read_b128 v[%d:%d], v187 offset:%d' % (196 + 4 * k, 199 + 4 * k, k * 1024))
    a('s_lshl_b32 s29, %s, 8' % sJ); a('s_lshr_b32 s27, %s, 3' % sI); a('s_lshl_b32 s27, s27, 6'); a('s_add_u32 s29, s29, s27'); a('s_lshl_b32 s29, s29, 7')
    a('s_lshl_b32 s27, %s, 18' % sL); a('s_add_u32 s29, s29, s27'); a('s_add_u32 s29, s29, 0x%x' % WS_P[0])
    a('s_lshl_b32 s27, s26, 4'); a('s_add_u32 s30, s29, s27'); a('s_lshl_b32 s27, %s, 12' % sW); a('s_add_u32 s30, s30, s27')
    a('s_waitcnt lgkmcnt(0)')
    for k in range(1, 4):
        for r in range(3): a('v_add_f32 v%d, v%d, v%d' % (196 + r, 196 + r, 196 + 4 * k + r))
    a('v_lshlrev_b32 v187, 7, v1')
    a('s_mov_b32 exec_hi, 0')
    a('buffer_store_dwordx4 v[196:199], v187, %s, s30 offen sc1' % SRD_WS)
    a('s_mov_b64 exec, -1')
    for i in range(4):
        a('s_add_u32 s28, s25, %d' % (i * 2048)); a('buffer_store_dwordx4 v[%d:%d], %s, %s, s28 offen sc1' % (152 + 4 * i, 155 + 4 * i, vT16, SRD_WS))
    a('s_waitcnt vmcnt(0)')
    flag_store(g, FL_X)
    g.ts(9)
    a('s_mov_b32 s33, s29'); down_stage(g); a('s_mov_b32 s29, s33')
    for i in range(1, 4): a('s_add_u32 s%d, s29, %d' % (29 + i, i * 2048))
    poll(g, [(vT16, 's29', 'g', 188), (vT16, 's30', 'g', 192), (vT16, 's31', 'g', 196), (vT16, 's32', 'g', 200)], 5)
    bs = (188, 192, 196, 200)
    regs = [b + k for b in bs for k in range(3)]
    for pat in ('quad_perm:[1,0,3,2]', 'quad_perm:[2,3,0,1]', 'row_half_mirror'):
        for r in regs: a('v_add_f32_dpp v%d, v%d, v%d %s row_mask:0xf bank_mask:0xf' % (r, r, r, pat))
    a('s_mov_b32 s25, 0x3b000000'); a('s_mov_b32 s26, 0x3727c5ac')
    bt = [(b, 152 + 4 * i) for i, b in enumerate(bs)]
    for b, t in bt: a('v_mul_f32 v%d, s25, v%d' % (b, b)); a('v_mul_f32 v%d, s25, v%d' % (b + 1, b + 1))
    for b, t in bt: a('v_fma_f32 v%d, -v%d, v%d, v%d' % (b + 1, b, b, b + 1)); a('v_fma_f32 v%d, -v%d, %s, v%d' % (b + 3, b, sSW, b + 2))
    for b, t in bt: a('v_add_f32 v%d, s26, v%d' % (t, b + 1))
    for b, t in bt: a('v_rsq_f32 v%d, v%d' % (t + 1, t))
    for b, t in bt: a('v_add_f32 v%d, 1.0, v%d' % (t + 2, t + 1))
    for b, t in bt: a('v_mul_f32 v%d, v%d, v%d' % (b + 3, t + 1, b + 3)); a('v_mul_f32 v%d, v%d, v%d' % (t + 3, t + 2, t + 2))
    for b, t in bt: a('v_fma_f32 v%d, v%d, v%d, s26' % (t + 3, t + 3, b + 1))
    for b, t in bt: a('v_rsq_f32 v%d, v%d' % (t + 3, t + 3))
    for b, t in bt: a('v_mov_b32 v%d, v%d' % (b + 1, t + 1))
    for b, t in bt: a('v_mul_f32 v%d, v%d, v%d' % (b + 2, t + 2, t + 3))
    a('v_lshrrev_b32 v186, 3, v0'); a('v_lshlrev_b32 v186, 4, v186'); a('v_add_u32 v186, %d, v186' % LT)
    a('s_mov_b32 s28, 0x01010101'); a('s_mov_b32 s29, 0x01010101'); a('s_mov_b64 exec, s[28:29]')
    for i, b in enumerate(bs): a('ds_write_b128 v186, v[%d:%d] offset:%d' % (b, b + 3, i * 256))
    a('s_mov_b64 exec, -1')
    a('s_waitcnt lgkmcnt(0)')
    a('s_branch %s' % Lpubend)
    a.label(Lw23)
    a.label(Lpubend)
    Lp = a.newlabel('OPFS')
    a('s_and_b32 s25, %s, 7' % sI); a('s_cmp_lg_u32 s25, 0'); a('s_cbranch_scc1 %s' % Lp)
    a('s_barrier')
    a('s_cmp_lg_u32 %s, 0' % sW); a('s_cbranch_scc1 %s' % Lp)
    a('v_add_u32 v186, %d, %s' % (LT, vL16)); a('ds_read_b128 v[188:191], v186'); a('s_waitcnt lgkmcnt(0)')
    a('v_mov_b32 v192, v191'); a('v_mov_b32 v193, v191'); a('v_mov_b32 v191, %s' % sT)
    a('s_lshl_b32 s29, %s, 8' % sJ); a('s_lshr_b32 s27, %s, 3' % sI); a('s_lshl_b32 s27, s27, 6'); a('s_add_u32 s29, s29, s27')
    allreduce(a, [192], 194, op='v_max_f32')
    a('v_cmp_eq_f32 vcc, v192, v193'); a('s_ff1_i32_b64 s28, vcc'); a('s_add_u32 s28, s28, s29')
    a('v_mov_b32 v193, s28'); a('v_mov_b32 v194, %s' % sT); a('v_mov_b32 v195, %s' % sT)
    a('s_lshl_b32 s28, %s, 2' % sJ); a('s_lshr_b32 s27, %s, 3' % sI); a('s_add_u32 s28, s28, s27'); a('s_lshl_b32 s28, s28, 4')
    a('s_lshl_b32 s27, %s, 12' % sL); a('s_add_u32 s28, s28, s27'); a('s_add_u32 s28, s28, 0x%x' % WS_BM[0])
    a('s_mov_b64 exec, 1'); a('buffer_store_dwordx4 v[192:195], off, %s, s28 sc1' % SRD_WS); a('s_mov_b64 exec, -1')
    Lq = a.newlabel('OPFS1')
    a('s_cmp_lg_u32 %s, 0' % sL); a('s_cbranch_scc1 %s' % Lq)
    a('s_lshl_b32 s28, s29, 4'); a('s_add_u32 s28, s28, 0x%x' % WS_FS[1])
    a('buffer_store_dwordx4 v[188:191], %s, %s, s28 offen sc1' % (vL16, SRD_WS))
    a.label(Lq)
    a.label(Lp)
    g.ts(10)

def get_sel(g, layer, code):
    a = g.a
    a('v_and_b32 v186, 31, v1'); a('v_lshlrev_b32 v186, 4, v186'); a('s_mov_b32 s27, 0x%x' % WS_BM[layer])
    poll(g, [('v186', 's27', 'g', 188)], code)
    a('v_mov_b32 v192, v188'); allreduce(a, [192], 194, op='v_max_f32')
    a('v_cmp_eq_f32 vcc, v192, v188'); a('s_ff1_i32_b64 s28, vcc'); a('s_nop 3')
    a('v_readlane_b32 %s, v189, s28' % sSEL); a('v_readlane_b32 %s, v188, s28' % sRSEL)

def row_stats(g):
    a = g.a
    a('v_add_f32 v196, v188, v189'); a('v_mul_f32 v197, v188, v188'); a('v_fmac_f32 v197, v189, v189')
    for k in range(2, 8): a('v_add_f32 v196, v196, v%d' % (188 + k)); a('v_fmac_f32 v197, v%d, v%d' % (188 + k, 188 + k))
    allreduce(a, [196, 197], 198)
    a('s_mov_b32 s25, 0x3b000000'); a('s_mov_b32 s26, 0x3727c5ac')
    a('v_mul_f32 v196, s25, v196'); a('v_mul_f32 v197, s25, v197'); a('v_fma_f32 v197, -v196, v196, v197'); a('v_add_f32 v197, s26, v197'); a('v_rsq_f32 v197, v197')

def load_row(g, layer, code):
    a = g.a
    a('s_lshr_b32 s25, %s, 8' % sSEL); a('s_lshr_b32 s26, %s, 6' % sSEL); a('s_and_b32 s26, s26, 3')
    a('s_lshl_b32 s27, s26, 13'); a('s_lshl_b32 s28, s25, 7'); a('s_add_u32 s27, s27, s28'); a('s_add_u32 s27, s27, 0x%x' % FL(FL_X + layer))
    a('v_and_b32 v186, 15, v1'); a('v_lshrrev_b32 v187, 1, v186'); a('v_and_b32 v186, 1, v186'); a('v_lshlrev_b32 v186, 2, v186'); a('v_lshl_add_u32 v186, v187, 10, v186')
    poll(g, [('v186', 's27', 'f', 216)], code)
    a('s_and_b32 s26, %s, 255' % sSEL); a('s_lshl_b32 s27, s25, 18'); a('s_lshl_b32 s28, s26, 7'); a('s_add_u32 s27, s27, s28'); a('s_add_u32 s27, s27, 0x%x' % WS_X[layer])
    a('s_and_b32 s26, s26, 15'); a('s_lshr_b32 s26, s26, 1')
    a('v_and_b32 v186, 7, v1'); a('v_xor_b32 v186, s26, v186'); a('v_lshlrev_b32 v186, 4, v186'); a('v_lshrrev_b32 v187, 3, v1'); a('v_lshl_add_u32 v186, v187, 15, v186')
    a('buffer_load_dwordx4 v[200:203], v186, %s, s27 offen sc1' % SRD_WS); a('s_waitcnt vmcnt(0)')
    for k in range(4): unpack2(a, 188 + 2 * k, 200 + k)
    row_stats(g)

def norm_row_to_lds(g):
    a = g.a
    for k in range(8): a('v_sub_f32 v%d, v%d, v196' % (188 + k, 188 + k)); a('v_mul_f32 v%d, v%d, v197' % (188 + k, 188 + k))
    for k in range(4): a('v_cvt_pk_bf16_f32 v%d, v%d, v%d' % (200 + k, 188 + 2 * k, 189 + 2 * k))
    a('s_lshl_b32 s25, %s, 10' % sW); a('s_add_u32 s25, s25, %d' % XROW)
    a('v_add_u32 v186, s25, %s' % vL16); a('ds_write_b128 v186, v[200:203]')
    a('v_lshlrev_b32 v186, 4, %s' % vG); a('v_add_u32 v186, s25, v186'); a('s_waitcnt lgkmcnt(0)')


def sel_from_bm(g, r):
    a = g.a
    a('v_mov_b32 v192, v%d' % r); allreduce(a, [192], 194, op='v_max_f32')
    a('v_cmp_eq_f32 vcc, v192, v%d' % r); a('s_ff1_i32_b64 s28, vcc'); a('s_nop 3')
    a('v_readlane_b32 %s, v%d, s28' % (sSEL, r + 1)); a('v_readlane_b32 %s, v%d, s28' % (sRSEL, r))

def ffn_sel(g, layer, pre):
    a = g.a
    a('s_mov_b32 s33, 0x%x' % WS_BM[layer])
    if not pre: a('v_and_b32 v214, 31, v1'); a('v_lshlrev_b32 v214, 4, v214')
    poll_nodrain(g, [('v214', 's33', 'g', 204)], 7, pre)
    sel_from_bm(g, 204)

def poll_nodrain(g, loads, code, pre):
    a = g.a
    if not pre:
        poll(g, loads, code); return
    D = a.newlabel('PND')
    voff, soff, kind, dst = loads[0]
    w = dst + 3 if kind == 'g' else dst
    a('v_cmp_ne_u32 vcc, %s, v%d' % (sT, w)); a('s_cmp_eq_u64 vcc, 0'); a('s_cbranch_scc1 %s' % D)
    poll(g, loads, code)
    a.label(D)

def ffn_flags_issue(g, layer):
    a = g.a
    a('s_lshr_b32 s25, %s, 8' % sSEL); a('s_lshr_b32 s26, %s, 6' % sSEL); a('s_and_b32 s26, s26, 3')
    a('s_lshl_b32 s27, s26, 13'); a('s_lshl_b32 s28, s25, 7'); a('s_add_u32 s27, s27, s28'); a('s_add_u32 s31, s27, 0x%x' % FL(FL_X + layer))
    a('v_and_b32 v186, 15, v1'); a('v_lshrrev_b32 v187, 1, v186'); a('v_and_b32 v186, 1, v186'); a('v_lshlrev_b32 v186, 2, v186'); a('v_lshl_add_u32 v215, v187, 10, v186')
    a('buffer_load_dword v216, v215, %s, s31 offen sc1' % SRD_WS)

def ffn_flags_check(g, layer):
    a = g.a
    a('s_waitcnt vmcnt(0)')
    a('s_lshr_b32 s25, %s, 8' % sSEL); a('s_lshr_b32 s26, %s, 6' % sSEL); a('s_and_b32 s26, s26, 3')
    a('s_lshl_b32 s27, s26, 13'); a('s_lshl_b32 s28, s25, 7'); a('s_add_u32 s27, s27, s28'); a('s_add_u32 s31, s27, 0x%x' % FL(FL_X + layer))
    poll_nodrain(g, [('v215', 's31', 'f', 216)], 8, True)

def ffn_row_issue(g, layer):
    a = g.a
    a('s_lshr_b32 s25, %s, 8' % sSEL); a('s_and_b32 s26, %s, 255' % sSEL); a('s_lshl_b32 s27, s25, 18'); a('s_lshl_b32 s28, s26, 7'); a('s_add_u32 s27, s27, s28'); a('s_add_u32 s27, s27, 0x%x' % WS_X[layer])
    a('s_and_b32 s26, s26, 15'); a('s_lshr_b32 s26, s26, 1')
    a('v_and_b32 v186, 7, v1'); a('v_xor_b32 v186, s26, v186'); a('v_lshlrev_b32 v186, 4, v186'); a('v_lshrrev_b32 v187, 3, v1'); a('v_lshl_add_u32 v186, v187, 15, v186')
    a('buffer_load_dwordx4 v[200:203], v186, %s, s27 offen sc1' % SRD_WS)

def ffn_gateup(g):
    a = g.a
    for k in range(4): unpack2(a, 188 + 2 * k, 200 + k)
    row_stats(g); norm_row_to_lds(g)
    F = 152
    for h in range(2):
        for s in range(8): a('ds_read_b128 v[%d:%d], v186 offset:%d' % (F + 4 * s, F + 4 * s + 3, (8 * h + s) * 64))
        a('s_waitcnt lgkmcnt(0)')
        for s in range(8):
            S = 8 * h + s
            a('v_mfma_f32_16x16x32_bf16 v[188:191], a[%d:%d], v[%d:%d], %s' % (192 + 4 * S, 195 + 4 * S, F + 4 * s, F + 4 * s + 3, '0' if S == 0 else 'v[188:191]'))
    a('s_lshl_b32 s25, %s, 6' % sW); a('s_add_u32 s25, s25, %d' % HBUF)
    a('v_lshlrev_b32 v186, 4, %s' % vG); a('v_add_u32 v186, s25, v186')
    a('s_mov_b32 s28, 0x00010001'); a('s_mov_b32 s29, 0x00010001'); a('s_mov_b64 exec, s[28:29]')
    a('ds_write_b128 v186, v[188:191]')
    a('s_mov_b64 exec, -1')
    a('s_waitcnt lgkmcnt(0)')

def ffn_down(g, layer):
    a = g.a
    a('v_lshlrev_b32 v186, 5, %s' % vG); a('v_add_u32 v186, %d, v186' % HBUF)
    a('ds_read_b128 v[168:171], v186'); a('ds_read_b128 v[172:175], v186 offset:16'); a('ds_read_b128 v[176:179], v186 offset:128'); a('ds_read_b128 v[180:183], v186 offset:144')
    a('s_mov_b32 s25, 0xbfb8aa3b')
    a('v_mov_b32 v196, %s' % sRSEL); a('v_mul_f32 v196, s25, v196')
    a('s_waitcnt lgkmcnt(0)')
    for k in range(8): a('v_mul_f32 v%d, s25, v%d' % (188 + k, 168 + k))
    for k in range(9): a('v_exp_f32 v%d, v%d' % (188 + k, 188 + k))
    for k in range(9): a('v_add_f32 v%d, 1.0, v%d' % (188 + k, 188 + k))
    for k in range(9): a('v_rcp_f32 v%d, v%d' % (188 + k, 188 + k))
    for k in range(8): a('v_mul_f32 v%d, v%d, v%d' % (168 + k, 168 + k, 176 + k))
    for k in range(8): a('v_mul_f32 v%d, v%d, v%d' % (168 + k, 168 + k, 188 + k))
    for k in range(4): a('v_cvt_pk_bf16_f32 v%d, v%d, v%d' % (184 + k, 168 + 2 * k, 169 + 2 * k))
    D = 152
    for t in range(8): a('v_mfma_f32_16x16x32_bf16 v[%d:%d], v[184:187], v[%d:%d], 0' % (D + 4 * t, D + 4 * t + 3, FDW + 4 * t, FDW + 4 * t + 3))
    a('v_cmp_le_u32 s[28:29], 1, %s' % vG); a('v_cmp_le_u32 s[30:31], 2, %s' % vG); a('v_cmp_le_u32 vcc, 3, %s' % vG)
    for i in range(2):
        d = D + 16 * i
        a('v_cndmask_b32 v%d, v%d, v%d, s[28:29]' % (190 + 2 * i, d, d + 4)); a('v_cndmask_b32 v%d, v%d, v%d, s[30:31]' % (190 + 2 * i, 190 + 2 * i, d + 8))
        a('v_cndmask_b32 v%d, v%d, v%d, vcc' % (190 + 2 * i, 190 + 2 * i, d + 12)); a('v_mul_f32 v%d, v196, v%d' % (190 + 2 * i, 190 + 2 * i))
    if layer == 0:
        a('s_and_b32 s25, %s, %d' % (sB, YR - 1)); a('s_lshl_b32 s25, s25, 11'); a('s_lshl_b32 s26, %s, 9' % sW); a('s_add_u32 s25, s25, s26'); a('s_add_u32 s25, s25, 0x%x' % WS_Y[0])
        a('v_lshlrev_b32 v186, 2, v1')
        a('buffer_atomic_add_f32 v190, v186, %s, s25 offen' % SRD_WS); a('buffer_atomic_add_f32 v192, v186, %s, s25 offen offset:256' % SRD_WS)
    else:
        a('s_lshl_b32 s25, %s, 12' % sFS); a('s_lshl_b32 s26, %s, 10' % sW); a('s_add_u32 s25, s25, s26'); a('s_add_u32 s25, s25, 0x%x' % WS_YT)
        a('v_lshlrev_b32 v186, 3, v1'); a('v_mov_b32 v191, %s' % sT); a('v_mov_b32 v193, %s' % sT)
        a('buffer_store_dwordx2 v[190:191], v186, %s, s25 offen sc1' % SRD_WS); a('buffer_store_dwordx2 v[192:193], v186, %s, s25 offen offset:512 sc1' % SRD_WS)

def ffn_flag(g, layer):
    a = g.a
    a('s_lshl_b32 s25, %s, 7' % sB); a('s_lshl_b32 s26, %s, 2' % sW); a('s_add_u32 s25, s25, s26'); a('s_add_u32 s25, s25, 0x%x' % FL(FL_Y + layer))
    a('v_mov_b32 v220, %s' % sT); a('s_mov_b64 exec, 1'); a('buffer_store_dword v220, off, %s, s25 sc1' % SRD_WS); a('s_mov_b64 exec, -1')

def ffn(g, layer):
    a = g.a
    L = a.newlabel('NOFFN'); if_ffn(a, L, False)
    ffn_sel(g, layer, pre=False)
    ffn_flags_issue(g, layer); ffn_flags_check(g, layer); ffn_row_issue(g, layer)
    a('s_waitcnt vmcnt(0)')
    ffn_gateup(g); a('s_barrier'); ffn_down(g, layer)
    a.label(L)

def fix_row(g):
    a = g.a
    L = a.newlabel('NOFIX'); L2 = a.newlabel('FIXW')
    a('s_cmp_eq_u32 %s, 0' % sL); a('s_cbranch_scc1 %s' % L)
    a('s_lshr_b32 s25, %s, 7' % sSEL); a('s_cmp_lg_u32 s25, %s' % sBLK); a('s_cbranch_scc1 %s' % L)
    a('s_cmp_lg_u32 %s, 0' % sRH); a('s_cbranch_scc1 %s' % L2)
    a('s_mov_b32 s27, 0x%x' % FL(FL_Y)); poll_yflags(g, 's27', 10)
    a('v_lshlrev_b32 v186, 5, v1')
    for rep in range(YR):
        a('s_mov_b32 s26, 0x%x' % (WS_Y[0] + rep * 2048))
        a('buffer_load_dwordx4 v[%d:%d], v186, %s, s26 offen sc1' % (104 + 8 * rep, 107 + 8 * rep, SRD_WS)); a('buffer_load_dwordx4 v[%d:%d], v186, %s, s26 offen offset:16 sc1' % (108 + 8 * rep, 111 + 8 * rep, SRD_WS))
    load_row(g, 0, 11)
    for rep in range(1, YR):
        for k in range(8): a('v_add_f32 v%d, v%d, v%d' % (104 + k, 104 + k, 104 + 8 * rep + k))
    a('v_mul_f32 v196, v196, v197'); a('v_add_f32 v197, 1.0, v197')
    for k in range(8): a('v_fma_f32 v%d, v%d, v197, -v196' % (188 + k, 188 + k)); a('v_add_f32 v%d, v%d, v%d' % (188 + k, 188 + k, 104 + k))
    for k in range(4): a('v_cvt_pk_bf16_f32 v%d, v%d, v%d' % (200 + k, 188 + 2 * k, 189 + 2 * k))
    for k in range(4): unpack2(a, 188 + 2 * k, 200 + k)
    row_stats(g); norm_row_to_lds(g)
    F = 104
    for s in range(16): a('ds_read_b128 v[%d:%d], v186 offset:%d' % (F + 4 * s, F + 4 * s + 3, s * 64))
    a('s_waitcnt lgkmcnt(0)')
    for s in range(16):
        f = 'v[%d:%d]' % (F + 4 * s, F + 4 * s + 3); Cc = lambda r: '0' if s == 0 else 'v[%d:%d]' % (r, r + 3)
        a('v_mfma_f32_16x16x32_bf16 v[168:171], a[%d:%d], %s, %s' % (12 * s, 12 * s + 3, f, Cc(168)))
        a('v_mfma_f32_16x16x32_bf16 v[172:175], a[%d:%d], %s, %s' % (12 * s + 4, 12 * s + 7, f, Cc(172)))
        a('v_mfma_f32_16x16x32_bf16 v[176:179], %s, a[%d:%d], %s' % (f, 12 * s + 8, 12 * s + 11, Cc(176)))
    a('s_mov_b32 s25, 0x3eb8aa3b')
    for r in range(4): a('v_mul_f32 v%d, s25, v%d' % (168 + r, 168 + r))
    a('v_cvt_pk_bf16_f32 v180, v168, v169'); a('v_cvt_pk_bf16_f32 v181, v170, v171'); a('v_cvt_pk_bf16_f32 v182, v172, v173'); a('v_cvt_pk_bf16_f32 v183, v174, v175'); a('v_cvt_pk_bf16_f32 v184, v176, v176')
    a('s_and_b32 s26, %s, 127' % sSEL); a('s_lshl_b32 s27, s26, 4')
    a('v_lshrrev_b32 v186, 1, %s' % vG); a('v_lshlrev_b32 v186, 11, v186'); a('v_and_b32 v187, 1, %s' % vG); a('v_lshl_add_u32 v186, v187, 3, v186'); a('v_add_u32 v186, s27, v186')
    a('s_lshl_b32 s27, %s, 12' % sHD); a('s_add_u32 s27, s27, %d' % IMG_Q); a('v_add_u32 v187, s27, v186')
    a('s_lshl_b32 s27, %s, 13' % sHD); a('s_add_u32 s27, s27, %d' % IMG_KV); a('v_add_u32 v186, s27, v186')
    a('s_mov_b32 s28, 0x00010001'); a('s_mov_b32 s29, 0x00010001'); a('s_mov_b64 exec, s[28:29]')
    a('ds_write_b64 v187, v[180:181]'); a('ds_write_b64 v186, v[182:183]')
    a('s_mov_b64 exec, -1')
    a('s_add_u32 s30, s27, 4096')
    a('s_lshr_b32 s27, s26, 4'); a('s_lshl_b32 s27, s27, 1'); a('s_lshr_b32 s28, s26, 2'); a('s_and_b32 s28, s28, 1'); a('s_add_u32 s27, s27, s28')
    a('s_lshr_b32 s28, s26, 3'); a('s_and_b32 s28, s28, 1'); a('s_lshl_b32 s28, s28, 2'); a('s_and_b32 s29, s26, 3'); a('s_add_u32 s28, s28, s29'); a('s_lshl_b32 s28, s28, 1'); a('s_add_u32 s28, s28, s30')
    a('v_xor_b32 v186, s27, %s' % vTOK); a('v_lshlrev_b32 v186, 4, v186'); a('v_lshl_add_u32 v186, %s, 8, v186' % vTOK); a('v_add_u32 v186, s28, v186')
    a('s_mov_b64 exec, 0xffff'); a('ds_write_b16 v186, v184'); a('s_mov_b64 exec, -1')
    a('s_waitcnt lgkmcnt(0)')
    a.label(L2)
    a('s_barrier')
    a.label(L)

def final_phase(g):
    a = g.a
    ffn(g, 1)
    get_sel(g, 1, 12)
    a('s_barrier')
    Le = a.newlabel('NOE')
    a('s_or_b32 s25, %s, %s' % (sB, sW)); a('s_cmp_lg_u32 s25, 0'); a('s_cbranch_scc1 %s' % Le)
    a('v_mov_b32 v220, %s' % sT); a('s_mov_b64 exec, 1'); a('buffer_store_dword v220, off, %s, 0 sc1' % SRD_WS); a('s_mov_b64 exec, -1')
    a.label(Le)
    OUT = 152
    blayer(g, OUT, 1, 13)
    for tt in range(4):
        for k in range(2): a('v_cvt_pk_bf16_f32 v%d, v%d, v%d' % (168 + 2 * tt + k, OUT + 4 * tt + 2 * k, OUT + 4 * tt + 2 * k + 1))
    tile_image_write(g, 168)
    a('s_waitcnt lgkmcnt(0)'); a('s_barrier')
    a('v_lshrrev_b32 v186, 3, v0'); a('v_and_b32 v187, 7, v0')
    a('v_and_b32 v188, 15, v186'); a('v_lshrrev_b32 v188, 1, v188'); a('v_xor_b32 v188, v187, v188'); a('v_lshlrev_b32 v188, 4, v188'); a('v_lshl_add_u32 v188, v186, 7, v188'); a('v_add_u32 v188, %d, v188' % IMG_Q)
    a('ds_read_b128 v[192:195], v188'); a('ds_read_b128 v[196:199], v188 offset:4096')
    a('v_lshlrev_b32 v187, 4, v187'); a('v_lshl_add_u32 v187, v186, 10, v187')
    g.srd(12, P_OUT, 2048 * 1024)
    a('s_lshl_b32 s25, %s, 8' % sJ); a('s_lshr_b32 s26, %s, 3' % sI); a('s_lshl_b32 s26, s26, 6'); a('s_add_u32 s25, s25, s26'); a('s_lshl_b32 s25, s25, 10')
    a('s_and_b32 s26, %s, 7' % sI); a('s_lshl_b32 s26, s26, 7'); a('s_add_u32 s25, s25, s26'); a('s_add_u32 s26, s25, 32768')
    a('s_waitcnt lgkmcnt(0)')
    a('buffer_store_dwordx4 v[192:195], v187, %s, s25 offen' % SRD_T); a('buffer_store_dwordx4 v[196:199], v187, %s, s26 offen' % SRD_T)
    g.ts(15)

def dump_lds(g, base, nbytes):
    a = g.a
    a('s_lshl_b32 s25, %s, 15' % sB); a('s_add_u32 s25, s25, 0x%x' % WS_DUMP); a('v_add_u32 v60, %d, %s' % (base, vT16))
    for i in range(nbytes // 4096):
        a('ds_read_b128 v[64:67], v60 offset:%d' % (i * 4096)); a('s_waitcnt lgkmcnt(0)'); a('v_add_u32 v61, %d, %s' % (i * 4096, vT16))
        a('buffer_store_dwordx4 v[64:67], v61, %s, s25 offen' % SRD_WS); a('s_waitcnt vmcnt(0)')

def build(opt):
    g = G(opt); a = g.a
    prologue(g)
    a('s_mov_b32 %s, 0' % sL)
    a.label('LAYER')
    gemm(g)
    if opt.stop == 'qkv':
        dump_lds(g, IMG_Q, 24576); a('s_branch K_END')
    fix_row(g)
    attention(g)
    if opt.stop == 'attn': a('s_branch K_END')
    outproj(g)
    Lfin = a.newlabel('FINAL')
    a('s_cmp_lg_u32 %s, 0' % sL); a('s_cbranch_scc1 %s' % Lfin)
    a('s_and_b32 s25, %s, 1' % sI); a('s_lshl_b32 s25, s25, 1'); a('s_add_u32 s25, s25, %s' % sRH)
    a('s_lshl_b32 s27, s25, 13'); a('s_lshl_b32 s28, %s, 7' % sJ); a('s_add_u32 s27, s27, s28'); a('s_add_u32 s27, s27, 0x%x' % FL(FL_X))
    a('v_and_b32 v186, 15, v1'); a('v_lshrrev_b32 v187, 1, v186'); a('v_and_b32 v186, 1, v186'); a('v_lshlrev_b32 v186, 2, v186'); a('v_lshl_add_u32 v186, v187, 10, v186')
    poll(g, [('v186', 's27', 'f', 216)], 14)
    g.ts(11)
    xsrc(g, 1)
    g.vm = []
    for k in range(4): x_dma(g, 0, k)
    a('s_mov_b32 %s, 1' % sL)
    a('s_branch LAYER')
    a.label(Lfin)
    final_phase(g)
    a.label('K_END'); a('s_endpgm')
    return g

def emit(opt):
    g = build(opt)
    nops = g.a.fix_hazards()
    head = open('cdna_kernels/%s.s.ref' % NAME).read().split('\n')
    out = []
    for l in head:
        if l.startswith('; @launch'):
            out.append('; @launch grid=(256,1,1) block=(256,1,1) lds=%d' % LDS_BYTES); continue
        out.append(l)
        if l.startswith(NAME + '_kernel:'): break
    out.append(g.a.text())
    out.append('''.section .rodata,"a"
.p2align 6
.amdhsa_kernel %s_kernel
  .amdhsa_next_free_vgpr 512
  .amdhsa_next_free_sgpr 96
  .amdhsa_accum_offset 256
  .amdhsa_group_segment_fixed_size 0
  .amdhsa_kernarg_size 88
  .amdhsa_user_sgpr_count 2
  .amdhsa_user_sgpr_kernarg_segment_ptr 1
  .amdhsa_system_sgpr_workgroup_id_x 1
  .amdhsa_float_denorm_mode_32 3
.end_amdhsa_kernel
''' % NAME)
    open(opt.o, 'w').write('\n'.join(out))
    print('instructions', len(g.a.ins), 'nops inserted', nops, file=sys.stderr)

if __name__ == '__main__':
    p = argparse.ArgumentParser()
    p.add_argument('-o', default='cdna_kernels/%s.s' % NAME)
    p.add_argument('--stop', default=''); p.add_argument('--ts', action='store_true'); p.add_argument('--tsd', action='store_true')
    p.add_argument('--hpx', type=int, default=0)
    p.add_argument('--rot', type=int, default=0)
    p.add_argument('--dbg', action='store_true'); p.add_argument('--force_slow', action='store_true')
    emit(p.parse_args())
```

```python
import sys, argparse
sys.path.insert(0, 'gen')
from asmlib import Asm

NAME = "interleave_layers__sliding_block__moe_arch_mod__prompt"
NEGBIG = 0xF149F2CA

FL_BASE   = 0x1000
FL_KV, FL_O, FL_X, FL_Y = 0, 2, 4, 6
def FL(setno): return FL_BASE + setno * 0x8000
WS_FS     = [0x48000, 0x50000]
WS_P      = [0x60000, 0xA0000]
WS_BM     = [0xE0000, 0xE1000]
WS_Y      = [0xE2000, 0xE4000]
WS_YT     = 0x1100000
YR        = 2
WS_TS     = 0xF0000
WS_KV     = [0x100000, 0x500000]
WS_O      = [0x900000, 0xB00000]
WS_X      = [0xD00000, 0xF00000]
WS_USED   = 0x1200000
WS_DUMP   = 0x1200000
WS_SIZE_DBG = 0x2000000

XA     = 0
WST    = 32768
HALO_A, HALO_B = 0, 16384
DST    = 32768
WOST   = 65536
OST    = 0
FIXS   = 49152 + 8192
IMG_Q  = 131072
IMG_KV = 139264
MISC   = 155648
ONES_O, ONES_A, ONES_B = MISC, MISC + 256, MISC + 512
STAT   = MISC + 768
LT     = STAT + 1024
HBUF   = LT + 1024
XROW   = HBUF + 256
MERGE  = XROW + 4096
HBUF2  = MERGE
PART   = IMG_KV
LDS_BYTES = 163840
assert MERGE + 512 <= LDS_BYTES

sB, sJ, sI, sW, sT, sL = 's2', 's20', 's21', 's22', 's23', 's24'
SRD_X0, SRD_WS, SRD_T, SRD_XS = 's[4:7]', 's[8:11]', 's[12:15]', 's[16:19]'
sHD, sRH, sBLK, sHP = 's34', 's35', 's36', 's45'
sXB, sCD, sTS, sOFF = 's37', 's38', 's39', 's40'
sSEL, sRSEL, sSW, sFS = 's41', 's42', 's44', 's46'
P_X0, P_WQKV, P_WO, P_WR, P_WG, P_WU, P_WD, P_OUT, P_DBG, P_WS = 48, 50, 52, 56, 58, 60, 62, 64, 66, 68

vTID, vLANE, vXA, vXB, vFA0, vFA1, vL16, vT16 = 'v0', 'v1', 'v2', 'v3', 'v4', 'v5', 'v7', 'v8'
vTRB = 'v6'
vTRC = 'v9'
vQW, vVW = 'v11', 'v12'
vTOK, vG = 'v13', 'v25'
CSQ, CSK, CSV = 14, 18, 22
XT = 26
WRS = 34
FDW = 224

class G:
    def __init__(self, opt):
        self.a = Asm(); self.opt = opt; self.vm = []
    def vmi(self, text, tag): self.a(text); self.vm.append(tag)
    def vmwait(self, tag):
        last = max(i for i, t in enumerate(self.vm) if t == tag)
        n = len(self.vm) - 1 - last
        assert n <= 63
        self.a('s_waitcnt vmcnt(%d)' % n); self.vm = self.vm[last + 1:]
    def srd(self, base, ptr, size):
        a = self.a
        a('s_mov_b32 s%d, s%d' % (base, ptr)); a('s_and_b32 s%d, s%d, 0xffff' % (base + 1, ptr + 1))
        a('s_mov_b32 s%d, 0x%x' % (base + 2, size)); a('s_mov_b32 s%d, 0x20000' % (base + 3))
    def ts(self, idx, lay=False):
        if not self.opt.ts and not self.opt.tsd: return
        if lay and not self.opt.ts: return
        a = self.a; L = a.newlabel('TS')
        a('s_cmp_lg_u32 %s, 0' % sW); a('s_cbranch_scc1 %s' % L)
        a('s_memrealtime s[78:79]'); a('s_memtime s[80:81]'); a('s_waitcnt lgkmcnt(0)')
        a('v_mov_b32 v222, s78'); a('v_mov_b32 v223, s80')
        a('s_mov_b64 s[74:75], exec'); a('s_mov_b64 exec, 1')
        if self.opt.ts:
            a('s_lshl_b32 s77, %s, 8' % sB); a('s_add_u32 s77, s77, 0x%x' % (WS_TS + idx * 8))
            if idx >= 2 or lay: a('s_lshl_b32 s73, %s, 7' % sL); a('s_add_u32 s77, s77, s73')
            a('buffer_store_dwordx2 v[222:223], off, %s, s77' % SRD_WS)
            if idx == 0 and not lay:
                a('v_mov_b32 v222, s82'); a('s_add_u32 s77, s77, %d' % (14 * 8)); a('buffer_store_dwordx2 v[222:223], off, %s, s77' % SRD_WS)

        else:
            m0 = {0: 1, 1: 2, 12: 3, 2: 4, 6: 5, 9: 6, 11: 7}; m1 = {2: 8, 4: 9, 6: 10, 7: 11, 9: 12, 10: 13, 15: 14}
            w0 = m0.get(idx); w1 = m1.get(idx)
            a('s_mov_b32 s84, s%d' % P_DBG); a('s_and_b32 s85, s%d, 0xffff' % (P_DBG + 1)); a('s_mov_b32 s86, 256'); a('s_mov_b32 s87, 0x20000')
            a('s_cmp_eq_u32 %s, 0' % sL)
            a('s_cselect_b32 s77, %d, %d' % (4 * (w0 if w0 is not None else 40), 4 * (w1 if w1 is not None else 40)))
            if idx < 2: a('s_mov_b32 s77, %d' % (4 * (w0 if w0 is not None else 40)))
            a('buffer_atomic_umax v222, off, s[84:87], s77')
            if idx == 0:
                a('v_mov_b32 v223, s82'); a('v_not_b32 v223, v223'); a('buffer_atomic_umax v223, off, s[84:87], 0')
                a('v_mov_b32 v223, s82'); a('buffer_atomic_umax v223, off, s[84:87], 0 offset:60')
        a('s_mov_b64 exec, s[74:75]')
        a.label(L)

def unpack2(a, dst, src):
    a('v_lshlrev_b32 v%d, 16, v%d' % (dst, src)); a('v_and_b32 v%d, 0xffff0000, v%d' % (dst + 1, src))

def allreduce(a, regs, tmp, op='v_add_f32'):
    for pat in ('quad_perm:[1,0,3,2]', 'quad_perm:[2,3,0,1]', 'row_half_mirror', 'row_mirror'):
        for r in regs: a('%s_dpp v%d, v%d, v%d %s row_mask:0xf bank_mask:0xf' % (op, r, r, r, pat))
    for sw in ('v_permlane16_swap_b32', 'v_permlane32_swap_b32'):
        for k, r in enumerate(regs): a('v_mov_b32 v%d, v%d' % (tmp + k, r))
        for k, r in enumerate(regs): a('%s v%d, v%d' % (sw, r, tmp + k))
        for k, r in enumerate(regs): a('%s v%d, v%d, v%d' % (op, r, r, tmp + k))

def timeout(g, code):
    a = g.a
    g.srd(12, P_DBG, 256)
    a('v_mov_b32 v221, %d' % code); a('buffer_store_dword v221, off, %s, 0' % SRD_T); a('s_waitcnt vmcnt(0)')

def poll(g, loads, code, pre_issued=False):
    a = g.a
    L = a.newlabel('POLL'); D = a.newlabel('POLD'); C = a.newlabel('POLC')
    a('s_mov_b32 s76, 0')
    if pre_issued: a('s_branch %s' % C)
    a.label(L)
    for voff, soff, kind, dst in loads:
        if kind == 'f': a('buffer_load_dword v%d, %s, %s, %s offen sc1' % (dst, voff, SRD_WS, soff))
        else: a('buffer_load_dwordx4 v[%d:%d], %s, %s, %s offen sc1' % (dst, dst + 3, voff, SRD_WS, soff))
    if pre_issued: a.label(C)
    a('s_waitcnt vmcnt(0)')
    first = True
    for voff, soff, kind, dst in loads:
        words = [dst] if kind == 'f' else ([dst + 3] if kind == 'g' else [dst, dst + 1, dst + 2, dst + 3])
        for w in words:
            if first: a('v_xor_b32 v219, %s, v%d' % (sT, w)); first = False
            else: a('v_xor_b32 v218, %s, v%d' % (sT, w)); a('v_or_b32 v219, v219, v218')
    a('v_cmp_ne_u32 vcc, 0, v219'); a('s_cmp_eq_u64 vcc, 0'); a('s_cbranch_scc1 %s' % D)
    if g.opt.sleep: a('s_sleep %d' % g.opt.sleep)
    a('s_add_u32 s76, s76, 1'); a('s_cmp_lt_u32 s76, 0x40000'); a('s_cbranch_scc1 %s' % L)
    timeout(g, code)
    a.label(D)

def poll_leader(g, loads, code):
    a = g.a
    L = a.newlabel('PLD')
    a('s_cmp_lg_u32 %s, 0' % sW); a('s_cbranch_scc1 %s' % L)
    poll(g, loads, code)
    a.label(L); a('s_barrier')

def flag_store(g, setno, layered=True):
    a = g.a
    a('s_lshl_b32 s25, %s, 7' % sB); a('s_lshl_b32 s26, %s, 2' % sW); a('s_add_u32 s25, s25, s26')
    if layered: a('s_lshl_b32 s26, %s, 15' % sL); a('s_add_u32 s25, s25, s26')
    a('s_add_u32 s25, s25, 0x%x' % FL(setno))
    a('v_mov_b32 v220, %s' % sT); a('s_mov_b64 exec, 1')
    a('buffer_store_dword v220, off, %s, s25 sc1' % SRD_WS)
    a('s_mov_b64 exec, -1')

def if_ffn(a, L, layer0_only):
    if layer0_only: a('s_cmp_lg_u32 %s, 0' % sL); a('s_cbranch_scc1 %s' % L)
    a('s_sub_u32 s3, %s, 8' % sB); a('s_cmp_ge_u32 s3, 56'); a('s_cbranch_scc1 %s' % L)

def xsrc(g, layer):
    a = g.a
    if layer == 0:
        a('s_mov_b32 s16, s4'); a('s_mov_b32 s17, s5'); a('s_mov_b32 s18, s6'); a('s_mov_b32 s19, 0x20000')
        a('s_lshl_b32 s25, %s, 7' % sBLK); a('s_lshl_b32 s26, %s, 6' % sRH); a('s_add_u32 s25, s25, s26'); a('s_lshl_b32 s25, s25, 10')
        a('s_lshl_b32 s26, %s, 9' % sHD); a('s_add_u32 %s, s25, s26' % sXB)
        a('s_mov_b32 %s, 128' % sTS); a('s_mov_b32 %s, %d' % (sCD, 16 * 1024 - 4 * 128))
    else:
        a('s_mov_b32 s16, s8'); a('s_mov_b32 s17, s9'); a('s_mov_b32 s18, s10'); a('s_mov_b32 s19, 0x20000')
        a('s_lshl_b32 s25, %s, 18' % sJ); a('s_and_b32 s26, %s, 1' % sI); a('s_lshl_b32 s26, s26, 14'); a('s_add_u32 s25, s25, s26')
        a('s_lshl_b32 s26, %s, 13' % sRH); a('s_add_u32 s25, s25, s26'); a('s_lshl_b32 s26, %s, 17' % sHD); a('s_add_u32 s25, s25, s26')
        a('s_add_u32 %s, s25, 0x%x' % (sXB, WS_X[0]))
        a('s_mov_b32 %s, 32768' % sTS); a('s_mov_b32 %s, 0x%x' % (sCD, (2048 - 4 * 32768) & 0xffffffff))
        a('v_mov_b32 %s, %s' % (vXA, vL16)); a('v_mov_b32 %s, %s' % (vXB, vL16))
    a('s_mov_b32 %s, %s' % (sOFF, sXB))
    a('s_lshl_b32 s47, %s, 14' % sRH); a('s_lshl_b32 s25, %s, 13' % sHD); a('s_add_u32 s47, s47, s25')

def x_dma(g, c, k):
    a = g.a
    a('s_add_u32 m0, s47, %d' % (c * 32768 + k * 2048))
    g.vmi('buffer_load_dwordx4 %s, %s, %s offen sc1 lds' % (vXA, SRD_XS, sOFF), 'X%d' % c)
    g.vmi('buffer_load_dwordx4 %s, %s, %s offen offset:1024 sc1 lds' % (vXB, SRD_XS, sOFF), 'X%d' % c)
    a('s_add_u32 %s, %s, %s' % (sOFF, sOFF, sTS))
    if k == 3: a('s_add_u32 %s, %s, %s' % (sOFF, sOFF, sCD))

def prologue(g):
    a, opt = g.a, g.opt
    a.label('K_START')
    a('s_cmp_ge_u32 s2, 256'); a('s_cbranch_scc1 K_END')
    if opt.ts or opt.tsd: a('s_memrealtime s[82:83]')
    a('s_load_dwordx16 s[48:63], s[0:1], 0'); a('s_load_dwordx4 s[64:67], s[0:1], 64'); a('s_load_dwordx2 s[68:69], s[0:1], 80')
    a('s_getpc_b64 s[70:71]')
    a.label('K_PC')
    a('v_lshlrev_b32 v50, 7, v0'); a('s_mov_b32 s25, K_END-K_PC'); a('v_min_u32 v51, s25, v50')
    g.vmi('global_load_dword v49, v51, s[70:71]', 'pf')
    a('v_add_u32 v50, 0x8000, v50'); a('v_min_u32 v51, s25, v50')
    g.vmi('global_load_dword v49, v51, s[70:71]', 'pf')
    a('''
    v_and_b32 v1, 63, v0
    v_lshrrev_b32 v40, 6, v0
    s_and_b32 s20, s2, 7
    v_readfirstlane_b32 s22, v40
    s_lshr_b32 s21, s2, 3
    v_and_b32 v13, 15, v1
    v_lshrrev_b32 v25, 4, v1
    v_lshlrev_b32 v7, 4, v1
    v_lshlrev_b32 v8, 4, v0
    s_and_b32 s34, s22, 1
    s_lshr_b32 s35, s22, 1
    s_and_b32 s25, s21, 1
    s_lshl_b32 s36, s20, 1
    s_add_u32 s36, s36, s25
    s_lshr_b32 s45, s21, 1
    s_xor_b32 s45, s45, %d
    s_mul_i32 s46, s20, 7
    s_add_u32 s46, s46, s21
    s_sub_u32 s46, s46, 1
    v_lshrrev_b32 v40, 3, v1
    v_lshlrev_b32 v40, 10, v40
    v_and_b32 v41, 7, v1
    v_xor_b32 v42, v41, v25
    v_lshl_add_u32 v2, v42, 4, v40
    v_xor_b32 v42, 4, v42
    v_lshl_add_u32 v3, v42, 4, v40
    v_add_u32 v3, 7168, v3
    v_lshrrev_b32 v40, 1, v13
    v_xor_b32 v40, v40, v25
    v_lshlrev_b32 v40, 4, v40
    v_lshl_add_u32 v40, v13, 7, v40
    s_lshl_b32 s25, s35, 14
    v_add_u32 v4, s25, v40
    v_xor_b32 v5, 64, v4
    v_lshrrev_b32 v40, 2, v13
    v_lshl_add_u32 v6, v25, 3, v40
    v_and_b32 v40, 3, v13
    v_lshlrev_b32 v9, 3, v40
    ''' % opt.hpx)
    a('''
    v_lshrrev_b32 v40, 1, v25
    v_lshlrev_b32 v40, 11, v40
    v_and_b32 v41, 1, v25
    v_lshl_add_u32 v40, v41, 3, v40
    v_lshl_add_u32 v40, v13, 4, v40
    s_lshl_b32 s25, s34, 12
    s_lshl_b32 s26, s35, 10
    s_add_u32 s25, s25, s26
    s_add_u32 s25, s25, %d
    v_add_u32 v11, s25, v40
    ''' % IMG_Q)
    a('''
    s_lshl_b32 s25, s35, 3
    v_and_b32 v41, 1, v25
    v_add_u32 v41, s25, v41
    v_xor_b32 v41, v41, v13
    v_lshlrev_b32 v41, 4, v41
    v_lshl_add_u32 v41, v13, 8, v41
    v_lshrrev_b32 v40, 1, v25
    v_lshl_add_u32 v41, v40, 3, v41
    s_lshl_b32 s25, s34, 13
    s_add_u32 s25, s25, %d
    v_add_u32 v12, s25, v41
    ''' % (IMG_KV + 4096))
    a('s_waitcnt lgkmcnt(0)')
    if opt.ts: a('s_memrealtime s[88:89]')
    g.srd(4, P_X0, 2048 * 1024); g.srd(8, P_WS, WS_SIZE_DBG if opt.dbg else WS_USED); g.srd(12, P_WQKV, 512 * 3072)
    a('s_lshl_b32 s25, %s, 8' % sJ); a('s_lshl_b32 s26, %s, 3' % sI); a('s_add_u32 s25, s25, s26'); a('s_lshl_b32 s26, %s, 1' % sW); a('s_add_u32 s43, s25, s26'); a('s_lshl_b32 s25, s43, 10')
    g.vmi('buffer_load_dwordx4 v[40:43], %s, %s, s25 offen' % (vL16, SRD_X0), 'st')
    g.vmi('buffer_load_dwordx4 v[44:47], %s, %s, s25 offen offset:1024' % (vL16, SRD_X0), 'st')
    g.vmi('buffer_load_dword v48, off, %s, 0 sc1' % SRD_WS, 'E')
    a('v_lshrrev_b32 v52, 2, v1'); a('s_mov_b32 s25, 3072'); a('v_mul_lo_u32 v52, v52, s25'); a('v_and_b32 v53, 3, v1')
    a('v_lshrrev_b32 v54, 5, v1'); a('v_lshlrev_b32 v54, 1, v54'); a('v_xor_b32 v53, v53, v54'); a('v_lshl_add_u32 v52, v53, 4, v52')
    if opt.rot == 1: a('s_add_u32 s29, %s, %s' % (sW, sJ)); a('s_and_b32 s29, s29, 3')
    elif opt.rot == 2: a('s_add_u32 s29, %s, %s' % (sW, sHP)); a('s_and_b32 s29, s29, 3')
    elif opt.rot == 3: a('s_add_u32 s29, %s, %s' % (sW, sJ)); a('s_add_u32 s29, s29, %s' % sHP); a('s_and_b32 s29, s29, 3')
    else: a('s_mov_b32 s29, %s' % sW)
    a('s_mul_i32 s26, s29, %d' % (4 * 32 * 3072)); a('s_lshl_b32 s27, %s, 6' % sHP); a('s_add_u32 s26, s26, s27')
    a('s_lshl_b32 s27, s29, 13'); a('s_add_u32 s27, s27, %d' % WST)
    for i in range(4):
        for m in range(3):
            for hf in range(2):
                a('s_add_u32 m0, s27, %d' % (m * 32768 + i * 2048 + hf * 1024))
                a('s_add_u32 s28, s26, %d' % ((i * 32 + hf * 16) * 3072 + m * 1024))
                g.vmi('buffer_load_dwordx4 v52, %s, s28 offen lds' % SRD_T, 'W')
    if opt.ts: a('s_memrealtime s[90:91]')
    xsrc(g, 0)
    for k in range(4): x_dma(g, 0, k)
    a('v_lshlrev_b32 v53, 21, v1'); a('v_mov_b32 v215, 0')
    g.vmi('buffer_load_dword v49, v53, %s, 0 offen' % SRD_WS, 'tlb')
    for ptr, size in ((P_WR, 1024), (P_OUT, 2048 * 1024)):
        g.srd(12, ptr, size)
        g.vmi('buffer_load_dword v49, off, %s, 0' % SRD_T, 'tlb')
    a('s_cmp_eq_u32 %s, 1' % sW); a('s_cselect_b32 s12, s%d, s%d' % (P_WU, P_WG)); a('s_cselect_b32 s13, s%d, s%d' % (P_WU + 1, P_WG + 1))
    a('s_cmp_eq_u32 %s, 2' % sW); a('s_cselect_b32 s12, s%d, s12' % P_WD); a('s_cselect_b32 s13, s%d, s13' % (P_WD + 1))
    a('s_cmp_eq_u32 %s, 3' % sW); a('s_cselect_b32 s12, s%d, s12' % P_WO); a('s_cselect_b32 s13, s%d, s13' % (P_WO + 1))
    a('s_mov_b32 s14, 0x1c0000'); a('s_cselect_b32 s14, 0x80000, s14'); a('s_mov_b32 s25, 7168'); a('s_cselect_b32 s25, 0x800, s25'); a('s_and_b32 s13, s13, 0xffff'); a('s_mov_b32 s15, 0x20000')
    a('s_mul_i32 s26, %s, s25' % sB); a('v_lshlrev_b32 v53, 7, v1'); a('s_sub_u32 s25, s25, 128'); a('v_min_u32 v53, s25, v53')
    g.vmi('buffer_load_dword v49, v53, %s, s26 offen' % SRD_T, 'tlb')
    g.ts(0)
    g.vmwait('E')
    a('v_readfirstlane_b32 s25, v48'); a('s_mul_i32 s25, s25, 0x9E3779B1'); a('s_add_u32 %s, s25, 0x7F4A7C15' % sT)
    for i in range(4): unpack2(a, 56 + 2 * i, 40 + i); unpack2(a, 64 + 2 * i, 44 + i)
    for (u, s, q) in ((56, 72, 73), (64, 74, 75)):
        a('v_add_f32 v%d, v%d, v%d' % (s, u, u + 1)); a('v_mul_f32 v%d, v%d, v%d' % (q, u, u)); a('v_fmac_f32 v%d, v%d, v%d' % (q, u + 1, u + 1))
        for i in range(2, 8):
            a('v_add_f32 v%d, v%d, v%d' % (s, s, u + i)); a('v_fmac_f32 v%d, v%d, v%d' % (q, u + i, u + i))
    allreduce(a, [72, 73, 74, 75], 76)
    a('s_mov_b32 s25, 0x3b000000'); a('s_mov_b32 s26, 0x3727c5ac')
    for (s, q, o) in ((72, 73, 80), (74, 75, 84)):
        a('v_mul_f32 v%d, s25, v%d' % (o, s)); a('v_mul_f32 v%d, s25, v%d' % (q, q)); a('v_fma_f32 v%d, -v%d, v%d, v%d' % (q, o, o, q))
        a('v_add_f32 v%d, s26, v%d' % (q, q)); a('v_rsq_f32 v%d, v%d' % (o + 1, q)); a('v_mov_b32 v%d, %s' % (o + 3, sT)); a('v_mov_b32 v%d, v%d' % (o + 2, o + 1))
    a('v_cmp_eq_u32 vcc, 1, v1')
    for i in range(3): a('v_cndmask_b32 v%d, v%d, v%d, vcc' % (80 + i, 80 + i, 84 + i))
    a('s_lshl_b32 s25, s43, 4'); a('s_add_u32 s25, s25, 0x%x' % WS_FS[0])
    a('s_mov_b64 exec, 3')
    g.vmi('buffer_store_dwordx4 v[80:83], %s, %s, s25 offen sc1' % (vL16, SRD_WS), 'st0')
    a('s_mov_b64 exec, 15')
    for r in range(84, 88): a('v_mov_b32 v%d, 0' % r)
    a('s_lshl_b32 s25, %s, 6' % sB); a('s_add_u32 s25, s25, 0x%x' % WS_Y[0])
    g.vmi('buffer_store_dwordx4 v[84:87], %s, %s, s25 offen sc1' % (vL16, SRD_WS), 'yz')
    a('s_mov_b64 exec, -1')
    a('v_lshlrev_b32 v52, 6, %s' % vTRB); a('v_add_u32 v52, v52, %s' % vTRC)
    a('v_and_b32 v53, 1, %s' % vG); a('v_xor_b32 v53, %s, v53' % sHD); a('v_lshl_add_u32 v52, v53, 5, v52'); a('v_add_u32 v52, %d, v52' % WST)
    g.vmwait('W')
    a('s_barrier')
    for m in range(3):
        for s in range(16):
            base = 12 * s + 4 * m
            a('ds_read_b64_tr_b16 a[%d:%d], v52 offset:%d' % (base, base + 1, s * 2048))
            a('ds_read_b64_tr_b16 a[%d:%d], v52 offset:%d' % (base + 2, base + 3, s * 2048 + 256))
        if m < 2: a('v_add_u32 v52, 32768, v52')
    for r in range(52, 56): a('v_mov_b32 v%d, 0x3f803f80' % r)
    a('v_add_u32 v56, %d, %s' % (ONES_O, vL16))
    a('ds_write_b128 v56, v[52:55]')
    a('s_waitcnt lgkmcnt(0)')
    a('s_barrier')
    g.ts(1)


class Rec:
    def __init__(self, real): self.l = []; self.real = real
    def __call__(self, t):
        for x in t.split('\n'):
            x = x.strip()
            if x and not x.startswith(';'): self.l.append(x)
    def label(self, n): self.l.append(n + ':')
    def newlabel(self, b='L'): return self.real.newlabel(b)

def atoms(lines):
    out = []; i = 0
    while i < len(lines):
        x = lines[i]
        if (x.startswith('s_mov_b64 exec') and not x.endswith('-1')) or x.startswith('s_mov_b32 exec'):
            j = i
            while not lines[j].startswith('s_mov_b64 exec, -1'): j += 1
            out.append(lines[i:j + 1]); i = j + 1
        elif x.startswith('s_cmp'):
            j = i
            while not (lines[j].startswith('s_cbranch') or lines[j].startswith('s_cselect')): j += 1
            while j + 1 < len(lines) and lines[j + 1].startswith('s_cselect'): j += 1
            out.append(lines[i:j + 1]); i = j + 1
        else:
            out.append([x]); i += 1
    return out

def ffn_stream(g):
    real = g.a; st = []; tail = []
    def rec(fn):
        r = Rec(real); g.a = r
        try: fn()
        finally: g.a = real
        for grp in atoms(r.l):
            if len(grp) == 1 and grp[0] == 's_waitcnt lgkmcnt(0)': st.append(('lw', None))
            else: st.append(('i', grp))
    def check(regword, fallback):
        F = real.newlabel('FFB'); R = real.newlabel('FFR')
        st.append(('i', ['v_cmp_ne_u32 vcc, %s, v%d' % (sT, regword)]))
        st.append(('i', ['s_cmp_eq_u64 vcc, 0', 's_cbranch_scc0 %s' % F, R + ':']))
        tail.append((F, R, fallback))
    a = None
    check(207, lambda: (g.a('s_mov_b32 s33, 0x%x' % WS_BM[0]), poll(g, [('v214', 's33', 'g', 204)], 7)))
    rec(lambda: sel_from_bm(g, 204))
    def addr_flags():
        a = g.a
        a('s_lshr_b32 s25, %s, 8' % sSEL); a('s_lshr_b32 s26, %s, 6' % sSEL); a('s_and_b32 s26, s26, 3')
        a('s_lshl_b32 s27, s26, 13'); a('s_lshl_b32 s28, s25, 7'); a('s_add_u32 s27, s27, s28'); a('s_add_u32 s31, s27, 0x%x' % FL(FL_X))
        a('v_and_b32 v186, 15, v1'); a('v_lshrrev_b32 v187, 1, v186'); a('v_and_b32 v186, 1, v186'); a('v_lshlrev_b32 v186, 2, v186'); a('v_lshl_add_u32 v215, v187, 10, v186')
        a('s_lshl_b32 s30, %s, 4' % sSEL); a('s_add_u32 s30, s30, 0x%x' % WS_FS[1])
    rec(addr_flags)
    st.append(('vm', ('buffer_load_dword v216, v215, %s, s31 offen sc1' % SRD_WS, 'ff')))
    st.append(('vm', ('buffer_load_dwordx4 v[76:79], off, %s, s30 sc1' % SRD_WS, 'ff')))
    st.append(('gap', 11)); st.append(('vw', 'ff'))
    check(216, lambda: poll(g, [('v215', 's31', 'f', 216)], 8))
    def fs_fb():
        a = g.a; L = a.newlabel('FSP')
        a('v_mov_b32 v217, 0'); poll(g, [('v217', 's30', 'g', 76)], 16)
    check(79, fs_fb)
    def addr_row():
        a = g.a
        a('s_lshr_b32 s25, %s, 8' % sSEL); a('s_and_b32 s26, %s, 255' % sSEL); a('s_lshl_b32 s27, s25, 18'); a('s_lshl_b32 s28, s26, 7'); a('s_add_u32 s27, s27, s28'); a('s_add_u32 s27, s27, 0x%x' % WS_X[0])
        a('s_and_b32 s26, s26, 15'); a('s_lshr_b32 s26, s26, 1')
        a('v_and_b32 v186, 7, v1'); a('v_xor_b32 v186, s26, v186'); a('v_lshlrev_b32 v186, 4, v186'); a('v_lshrrev_b32 v187, 3, v1'); a('v_lshl_add_u32 v186, v187, 15, v186')
    rec(addr_row)
    st.append(('vm', ('buffer_load_dwordx4 v[72:75], v186, %s, s27 offen sc1' % SRD_WS, 'fr')))
    st.append(('gap', 11)); st.append(('vw', 'fr'))
    def norm():
        a = g.a
        for k in range(4): unpack2(a, 188 + 2 * k, 72 + k)
        a('v_mul_f32 v76, v76, v77')
        for k in range(8): a('v_fma_f32 v%d, v%d, v77, -v76' % (188 + k, 188 + k))
        for k in range(4): a('v_cvt_pk_bf16_f32 v%d, v%d, v%d' % (200 + k, 188 + 2 * k, 189 + 2 * k))
        a('s_lshl_b32 s25, %s, 10' % sW); a('s_add_u32 s25, s25, %d' % XROW)
        a('v_add_u32 v186, s25, %s' % vL16); a('ds_write_b128 v186, v[200:203]')
        a('v_lshlrev_b32 v186, 4, %s' % vG); a('v_add_u32 v186, s25, v186'); a('s_waitcnt lgkmcnt(0)')
        F = 152
        for h in range(2):
            for q in range(8): a('ds_read_b128 v[%d:%d], v186 offset:%d' % (F + 4 * q, F + 4 * q + 3, (8 * h + q) * 64))
            a('s_waitcnt lgkmcnt(0)')
            for q in range(8):
                S = 8 * h + q
                a('v_mfma_f32_16x16x32_bf16 v[188:191], a[%d:%d], v[%d:%d], %s' % (192 + 4 * S, 195 + 4 * S, F + 4 * q, F + 4 * q + 3, '0' if S == 0 else 'v[188:191]'))
        a('s_lshl_b32 s25, %s, 6' % sW); a('s_add_u32 s25, s25, %d' % HBUF)
        a('v_lshlrev_b32 v186, 4, %s' % vG); a('v_add_u32 v186, s25, v186')
        a('s_mov_b32 s28, 0x00010001'); a('s_mov_b32 s29, 0x00010001'); a('s_mov_b64 exec, s[28:29]')
        a('ds_write_b128 v186, v[188:191]')
        a('s_mov_b64 exec, -1')
        a('s_waitcnt lgkmcnt(0)'); a('s_barrier')
    rec(norm)
    rec(lambda: ffn_down(g, 0))
    return st, tail

def gemm(g):
    a, opt = g.a, g.opt
    FA, FB, ACC = 40, 72, 104
    def when_ffn1(fn):
        L = a.newlabel('FN1'); a('s_cmp_eq_u32 %s, 0' % sL); a('s_cbranch_scc1 %s' % L); if_ffn(a, L, False); fn(); a.label(L)
    g.vm = ['X0'] * 8
    for k in range(4): x_dma(g, 1, k)
    a('s_lshl_b32 s25, %s, 11' % sBLK); a('s_lshl_b32 s26, %s, 15' % sL); a('s_add_u32 s25, s25, s26'); a('s_add_u32 s43, s25, 0x%x' % WS_FS[0])
    a('v_and_b32 v212, 127, v0'); a('v_lshlrev_b32 v213, 4, v212')
    a('v_and_b32 v214, 31, v1'); a('v_lshlrev_b32 v214, 4, v214')
    a('s_mov_b32 s33, 0x%x' % WS_BM[0])
    g.vmi('buffer_load_dwordx4 v[204:207], v214, %s, s33 offen sc1' % SRD_WS, 'BM')
    g.vmwait('X0'); a('s_barrier')
    g.ts(12)
    def gd():
        a('v_lshlrev_b32 v152, 10, %s' % vTRB); a('v_add_u32 v152, v152, %s' % vTRC); a('s_lshl_b32 s25, %s, 8' % sW); a('s_add_u32 s25, s25, %d' % WOST); a('v_add_u32 v152, s25, v152')
        a('v_bfe_u32 v153, %s, 2, 2' % vTOK); a('v_and_b32 v154, 1, %s' % vG); a('v_lshl_or_b32 v153, v154, 2, v153'); a('v_lshl_add_u32 v152, v153, 5, v152')
        for t in range(8):
            a('v_xor_b32 v153, %d, v152' % (t * 32))
            a('ds_read_b64_tr_b16 v[%d:%d], v153' % (FDW + 4 * t, FDW + 4 * t + 1)); a('ds_read_b64_tr_b16 v[%d:%d], v153 offset:4096' % (FDW + 4 * t + 2, FDW + 4 * t + 3))
        a('s_waitcnt lgkmcnt(0)'); a('s_barrier')
    when_ffn1(gd)
    Lq = a.newlabel('GUS'); Lq2 = a.newlabel('GUS2')
    a('s_mov_b32 s72, 0'); if_ffn(a, Lq, False); a('s_mov_b32 s72, 2')
    a('s_cmp_lg_u32 %s, 0' % sL); a('s_cbranch_scc1 %s' % Lq)
    a('s_mov_b32 s72, 1'); gu_setup(g); a.label(Lq)
    D = 6
    def rd(n):
        c, s = n >> 4, n & 15
        b = FA + 4 * (n & 7)
        a('ds_read_b128 v[%d:%d], %s offset:%d' % (b, b + 3, vFA1 if s & 1 else vFA0, (c & 1) * 32768 + (s >> 1) * 2048))
    def mf3(n):
        c, s = n >> 4, n & 15; b = FA + 4 * (n & 7); f = 'v[%d:%d]' % (b, b + 3); q = ACC + 12 * c
        C = lambda r: '0' if s == 0 else 'v[%d:%d]' % (r, r + 3)
        a('v_mfma_f32_16x16x32_bf16 v[%d:%d], a[%d:%d], %s, %s' % (q, q + 3, 12 * s, 12 * s + 3, f, C(q)))
        a('v_mfma_f32_16x16x32_bf16 v[%d:%d], a[%d:%d], %s, %s' % (q + 4, q + 7, 12 * s + 4, 12 * s + 7, f, C(q + 4)))
        a('v_mfma_f32_16x16x32_bf16 v[%d:%d], %s, a[%d:%d], %s' % (q + 8, q + 11, f, 12 * s + 8, 12 * s + 11, C(q + 8)))
    def body(gu, ffn=False):
        g.vm = list(vm0)
        st_, tail = ffn_stream(g) if ffn else ([], [])
        W = dict(pos=0, notbefore=10, since=0)
        def weave(n, budget):
            while W['pos'] < len(st_) and budget > 0 and n >= W['notbefore']:
                kind, pay = st_[W['pos']]; W['pos'] += 1
                if kind == 'gap': W['notbefore'] = n + pay
                elif kind == 'vm': g.vmi(pay[0], pay[1]); budget -= 1
                elif kind == 'vw':
                    if pay in g.vm: g.vmwait(pay)
                elif kind == 'lw':
                    a('s_waitcnt lgkmcnt(%d)' % min(15, W['since'])); budget -= 1
                    if n < 64 and W['since'] < 2: W['notbefore'] = n
                else:
                    for x in pay:
                        if x.endswith(':'): a.label(x[:-1])
                        else: a(x)
                        if x.startswith('ds_'): W['since'] = 0
                    budget -= len(pay)
                    nxt = st_[W['pos']][0] if W['pos'] < len(st_) else None
                    if nxt == 'lw' and n < 63: W['notbefore'] = n + 2; break
        for n in range(D): rd(n)
        for n in range(64):
            c, s = n >> 4, n & 15
            m = n + D
            if m < 64:
                if m % 16 == 0:
                    st = m // 16
                    if st == 3:
                        g.vm = []; a('s_waitcnt vmcnt(%d)' % (7 if gu else 0))
                    else:
                        g.vmwait('BM' if st == 1 else 'X%d' % st)
                    a('s_barrier')
                    if st == 2: a('v_add_u32 %s, 0x10000, %s' % (vFA0, vFA0)); a('v_add_u32 %s, 0x10000, %s' % (vFA1, vFA1))
                    if st == 3:
                        a('buffer_load_dwordx4 v[208:211], v213, %s, s43 offen sc1' % SRD_WS)
                        if gu: gu_srd(g, P_WU)
                rd(m); W['since'] += 1
                a('s_waitcnt lgkmcnt(%d)' % D)
            else:
                a('s_waitcnt lgkmcnt(%d)' % (63 - n))
            mf3(n)
            if c < 2 and (s & 3) == 1: x_dma(g, c + 2, s >> 2)
            if ffn:
                if g.opt.tsf and n in (0, 2, 5, 9, 13):
                    k = (0, 2, 5, 9, 13).index(n)
                    a('s_waitcnt lgkmcnt(0)'); a('s_memrealtime s[90:91]'); a('s_waitcnt lgkmcnt(0)'); a('s_mov_b32 s%d, s90' % (92 + k))
                weave(n, g.opt.budget)
            if gu and 27 <= n <= 41 and n & 1: gu_dma(g, (n - 27) // 2, 0)
            if gu and 43 <= n <= 57 and n & 1: gu_dma(g, (n - 43) // 2, 32768)
            if n == 15 and not ffn:
                Ls = a.newlabel('CSS')
                if not gu: a('s_cmp_lg_u32 %s, 0' % sL); a('s_cbranch_scc1 %s' % Ls)
                for k in range(4): a('v_mov_b32 v%d, 0x3f803f80' % (156 + k))
                for s2 in range(16):
                    C = lambda r: ('0' if s2 == 0 else 'v[%d:%d]' % (r, r + 3))
                    a('v_mfma_f32_16x16x32_bf16 v[14:17], a[%d:%d], v[156:159], %s' % (12 * s2, 12 * s2 + 3, C(14)))
                    a('v_mfma_f32_16x16x32_bf16 v[18:21], a[%d:%d], v[156:159], %s' % (12 * s2 + 4, 12 * s2 + 7, C(18)))
                    a('v_mfma_f32_16x16x32_bf16 v[160:163], v[156:159], a[%d:%d], %s' % (12 * s2 + 8, 12 * s2 + 11, C(160)))
                a('s_nop 7'); a('v_mov_b32 v22, v160')
                a.label(Ls)
        if ffn:
            W['notbefore'] = 0
            weave(64, 10 ** 6)
            if g.opt.tsf:
                a('s_waitcnt lgkmcnt(0)'); a('s_memrealtime s[90:91]'); a('s_waitcnt lgkmcnt(0)'); a('s_mov_b32 s97, s90')
                a('s_mov_b64 exec, 1'); a('s_lshl_b32 s77, %s, 8' % sB); a('s_add_u32 s77, s77, 0x%x' % (WS_TS + 0x10000))
                for k in range(6):
                    a('v_mov_b32 v222, s%d' % (92 + k)); a('buffer_store_dword v222, off, %s, s77 offset:%d' % (SRD_WS, 4 * k))
                a('s_mov_b64 exec, -1')
            a('s_branch %s' % Lge)
            for F, R, fb in tail:
                a.label(F); fb(); a('s_branch %s' % R)
    vm0 = list(g.vm)
    Lgu = a.newlabel('GEMMGU'); Lge = a.newlabel('GEMME'); Lff = a.newlabel('GEMMFF')
    a('s_cmp_eq_u32 s72, 1'); a('s_cbranch_scc1 %s' % Lgu)
    a('s_cmp_eq_u32 s72, 2'); a('s_cbranch_scc1 %s' % Lff)
    body(False)
    a('s_branch %s' % Lge)
    a.label(Lgu)
    body(True)
    a('s_branch %s' % Lge)
    a.label(Lff)
    body(False, True)
    a.label(Lge)
    g.ts(13)
    a('v_subrev_u32 %s, 0x10000, %s' % (vFA0, vFA0)); a('v_subrev_u32 %s, 0x10000, %s' % (vFA1, vFA1))
    L1 = a.newlabel('GP1'); L2 = a.newlabel('GP2')
    a('s_cmp_lg_u32 %s, 0' % sL); a('s_cbranch_scc1 %s' % L1)
    gu_wait(g, 8)
    poll_nodrain(g, [('v213', 's43', 'g', 208)], 1, True)
    a('s_branch %s' % L2)
    a.label(L1)
    a('s_mov_b32 s33, 0x%x' % WS_BM[0])
    poll(g, [('v213', 's43', 'g', 208), ('v214', 's33', 'g', 204)], 15, pre_issued=True)
    when_ffn1(lambda: ffn_flag(g, 0))
    sel_from_bm(g, 204)
    a.label(L2)
    a('v_lshlrev_b32 v212, 3, v212'); a('v_add_u32 v212, %d, v212' % STAT); a('v_mov_b32 v209, v210')
    a('ds_write_b64 v212, v[208:209]')
    a('s_waitcnt lgkmcnt(0)'); a('s_barrier')
    g.vm = []
    g.ts(2)
    a('s_mov_b32 s25, 0x3eb8aa3b')
    a('s_lshl_b32 s26, %s, 9' % sRH); a('s_add_u32 s26, s26, %d' % STAT)
    a('v_lshl_add_u32 v152, %s, 3, s26' % vTOK); a('v_lshl_add_u32 v153, %s, 5, s26' % vG)
    for c in range(4):
        a('ds_read_b64 v[%d:%d], v152 offset:%d' % (156 + 2 * c, 157 + 2 * c, c * 128))
        a('ds_read_b128 v[%d:%d], v153 offset:%d' % (164 + 8 * c, 167 + 8 * c, c * 128))
        a('ds_read_b128 v[%d:%d], v153 offset:%d' % (168 + 8 * c, 171 + 8 * c, c * 128 + 16))
    a('v_add_u32 v210, %d, %s' % (IMG_KV - IMG_Q, vQW)); a('s_lshl_b32 s26, %s, 12' % sHD); a('v_add_u32 v210, s26, v210')
    for c in range(4):
        q = ACC + 12 * c; m = 156 + 2 * c; sg = m + 1; vs = 164 + 8 * c
        a('s_waitcnt lgkmcnt(9)')
        a('v_mul_f32 v196, s25, v%d' % sg)
        for r in range(0, 4, 2):
            a('v_pk_fma_f32 v[%d:%d], v[%d:%d], v[%d:%d], v[%d:%d] op_sel_hi:[1,0,1] neg_lo:[0,1,0] neg_hi:[0,1,0]' % (q + r, q + r + 1, CSQ + r, CSQ + r + 1, m, m + 1, q + r, q + r + 1))
            a('v_pk_fma_f32 v[%d:%d], v[%d:%d], v[%d:%d], v[%d:%d] op_sel_hi:[1,0,1] neg_lo:[0,1,0] neg_hi:[0,1,0]' % (q + 4 + r, q + 5 + r, CSK + r, CSK + r + 1, m, m + 1, q + 4 + r, q + 5 + r))
        for r in range(4): a('v_fma_f32 v%d, -v%d, v%d, v%d' % (q + 8 + r, vs + 2 * r, CSV, q + 8 + r))
        for r in range(0, 4, 2):
            a('v_pk_mul_f32 v[%d:%d], v[%d:%d], v[196:197] op_sel_hi:[1,0]' % (q + r, q + r + 1, q + r, q + r + 1))
            a('v_pk_mul_f32 v[%d:%d], v[%d:%d], v[%d:%d] op_sel:[0,1] op_sel_hi:[1,1]' % (q + 4 + r, q + 5 + r, q + 4 + r, q + 5 + r, m, m + 1))
        for r in range(4): a('v_mul_f32 v%d, v%d, v%d' % (q + 8 + r, vs + 2 * r + 1, q + 8 + r))
        d = 198 + 6 * (c & 1)
        for k in range(3):
            a('v_cvt_pk_bf16_f32 v%d, v%d, v%d' % (d + 2 * k, q + 4 * k, q + 4 * k + 1)); a('v_cvt_pk_bf16_f32 v%d, v%d, v%d' % (d + 1 + 2 * k, q + 4 * k + 2, q + 4 * k + 3))
        a('ds_write_b64 %s, v[%d:%d] offset:%d' % (vQW, d, d + 1, c * 256))
        a('ds_write_b64 v210, v[%d:%d] offset:%d' % (d + 2, d + 3, c * 256))
        a('v_xor_b32 v197, %d, %s' % (32 * c, vVW)); a('ds_write_b64 v197, v[%d:%d]' % (d + 4, d + 5))
    a('s_waitcnt lgkmcnt(0)'); a('s_barrier')
    g.ts(3)

QA, QB, K0, K1 = 40, 44, 48, 52
VB = [(56, 60), (64, 68)]
SS = [72, 88]; PP = 104; OA, OB = 112, 128; MBD, MBA = 144, 160
VA0, VA1, VKA = 176, 180, 184

def ones_of(base): return {IMG_KV: ONES_O, HALO_A: ONES_A, HALO_B: ONES_B}[base]

def seg_addr(g, base):
    a = g.a
    a('s_lshl_b32 s25, %s, 13' % sHD); a('s_add_u32 s25, s25, %d' % base)
    a('v_add_u32 v%d, s25, v204' % VKA)
    a('s_add_u32 s25, s25, 4096')
    a('v_add_u32 v206, s25, v205'); a('v_add_u32 v208, %d, v209' % ones_of(base))
    a('v_cndmask_b32 v206, v208, v206, s[32:33]'); a('v_xor_b32 v207, 32, v206')
    for t in range(4):
        a('v_xor_b32 v%d, %d, v206' % (VA0 + t, 64 * t)); a('v_xor_b32 v%d, %d, v207' % (VA1 + t, 64 * t))

def make_masks(g):
    a = g.a
    a('v_and_b32 v210, 31, v1'); a('v_lshrrev_b32 v206, 5, v1'); a('v_lshlrev_b32 v206, 2, v206'); a('v_sub_u32 v210, v210, v206')
    a('v_mov_b32 v206, 0x%x' % NEGBIG); a('v_mov_b32 v207, 0')
    for r0 in range(0, 16, 2):
        for k in range(2):
            r = r0 + k; key = (r & 3) + 8 * (r >> 2)
            a('v_cmp_le_i32 s[%d:%d], %d, v210' % (28 + 2 * k, 29 + 2 * k, key))
        for k in range(2):
            r = r0 + k
            a('v_cndmask_b32 v%d, v206, v207, s[%d:%d]' % (MBD + r, 28 + 2 * k, 29 + 2 * k)); a('v_cndmask_b32 v%d, v207, v206, s[%d:%d]' % (MBA + r, 28 + 2 * k, 29 + 2 * k))

sZD = 's47'

def key_pos(g):
    a = g.a
    a('s_and_b32 s29, %s, 127' % sSEL)
    a('s_lshr_b32 s30, s29, 4'); a('s_lshl_b32 s30, s30, 1'); a('s_lshr_b32 s28, s29, 2'); a('s_and_b32 s28, s28, 1'); a('s_add_u32 s30, s30, s28')
    a('s_lshr_b32 s31, s29, 3'); a('s_and_b32 s31, s31, 1'); a('s_lshl_b32 s31, s31, 2'); a('s_and_b32 s28, s29, 3'); a('s_add_u32 s31, s31, s28'); a('s_lshl_b32 s31, s31, 1')

def img_select(g, dst, own, b, a_):
    a = g.a
    a('s_mov_b32 %s, %d' % (dst, own)); a('s_cmp_eq_u32 %s, 1' % sZD); a('s_cselect_b32 %s, %d, %s' % (dst, b, dst)); a('s_cmp_eq_u32 %s, 2' % sZD); a('s_cselect_b32 %s, %d, %s' % (dst, a_, dst))

def write_key(g, kregs, vreg, ones_val):
    a = g.a
    key_pos(g)
    img_select(g, 's27', IMG_KV, HALO_B, HALO_A); a('s_lshl_b32 s26, %s, 13' % sHD); a('s_add_u32 s27, s27, s26')
    a('v_lshrrev_b32 v186, 1, %s' % vG); a('v_lshlrev_b32 v186, 11, v186'); a('v_and_b32 v187, 1, %s' % vG); a('v_lshl_add_u32 v186, v187, 3, v186')
    a('s_lshl_b32 s26, s29, 4'); a('s_add_u32 s26, s26, s27'); a('v_add_u32 v187, s26, v186')
    a('s_mov_b32 vcc_lo, 0x00010001'); a('s_mov_b32 vcc_hi, 0x00010001'); a('s_mov_b64 exec, vcc')
    a('ds_write_b64 v187, v[%d:%d]' % (kregs, kregs + 1))
    a('s_mov_b64 exec, 0xffff')
    a('v_xor_b32 v187, s30, %s' % vTOK); a('v_lshlrev_b32 v187, 4, v187'); a('v_lshl_add_u32 v187, %s, 8, v187' % vTOK); a('s_add_u32 s26, s27, 4096'); a('s_add_u32 s26, s26, s31'); a('v_add_u32 v187, s26, v187')
    a('ds_write_b16 v187, v%d' % vreg)
    img_select(g, 's27', ONES_O, ONES_B, ONES_A); a('s_lshl_b32 s26, s30, 4'); a('s_add_u32 s27, s27, s26'); a('s_add_u32 s27, s27, s31')
    a('v_mov_b32 v187, s27'); a('v_mov_b32 v185, 0x%x' % ones_val); a('ds_write_b16 v187, v185')
    a('s_mov_b64 exec, -1')

def z_zero(g):
    a = g.a
    L = a.newlabel('ZZ'); L2 = a.newlabel('ZZW')
    a('s_mov_b32 %s, 3' % sZD)
    a('s_cmp_eq_u32 %s, 0' % sL); a('s_cbranch_scc1 %s' % L)
    a('s_lshr_b32 s25, %s, 7' % sSEL); a('s_sub_u32 s25, %s, s25' % sBLK); a('s_cmp_gt_u32 s25, 2'); a('s_cbranch_scc1 %s' % L)
    a('s_mov_b32 %s, s25' % sZD)
    a('s_cmp_eq_u32 s25, 0'); a('s_cbranch_scc0 %s' % L)
    a('s_cmp_lg_u32 %s, 0' % sRH); a('s_cbranch_scc1 %s' % L2)
    a('v_mov_b32 v188, 0'); a('v_mov_b32 v189, 0')
    write_key(g, 188, 188, 0)
    a('s_waitcnt lgkmcnt(0)')
    a.label(L2); a('s_barrier')
    a.label(L)

sZOK = 's72'
def z_loads(g):
    a = g.a
    a('v_lshlrev_b32 v186, 5, v1')
    for rep in range(YR):
        a('s_mov_b32 s26, 0x%x' % (WS_Y[0] + rep * 2048))
        a('buffer_load_dwordx4 v[%d:%d], v186, %s, s26 offen sc1' % (188 + 8 * rep, 191 + 8 * rep, SRD_WS)); a('buffer_load_dwordx4 v[%d:%d], v186, %s, s26 offen offset:16 sc1' % (192 + 8 * rep, 195 + 8 * rep, SRD_WS))
    a('s_lshr_b32 s25, %s, 8' % sSEL); a('s_and_b32 s26, %s, 255' % sSEL); a('s_lshl_b32 s27, s25, 18'); a('s_lshl_b32 s28, s26, 7'); a('s_add_u32 s27, s27, s28'); a('s_add_u32 s27, s27, 0x%x' % WS_X[0])
    a('s_and_b32 s26, s26, 15'); a('s_lshr_b32 s26, s26, 1')
    a('v_and_b32 v186, 7, v1'); a('v_xor_b32 v186, s26, v186'); a('v_lshlrev_b32 v186, 4, v186'); a('v_lshrrev_b32 v187, 3, v1'); a('v_lshl_add_u32 v186, v187, 15, v186')
    a('buffer_load_dwordx4 v[212:215], v186, %s, s27 offen sc1' % SRD_WS)
    a('s_lshl_b32 s26, %s, 4' % sSEL); a('s_add_u32 s26, s26, 0x%x' % WS_FS[1])
    a('buffer_load_dwordx2 v[206:207], off, %s, s26 sc1' % SRD_WS)

def z_hook(g, n):
    a = g.a
    if n == 0:
        L = a.newlabel('ZH0'); a('s_mov_b32 %s, 0' % sZOK); a('s_cmp_eq_u32 %s, 3' % sZD); a('s_cbranch_scc1 %s' % L)
        a('v_min_u32 v210, 55, v1'); a('v_add_u32 v210, 8, v210'); a('v_lshlrev_b32 v210, 7, v210'); a('s_mov_b32 s27, 0x%x' % FL(FL_Y))
        a('buffer_load_dwordx4 v[212:215], v210, %s, s27 offen sc1' % SRD_WS)
        a.label(L)
    if n == 3:
        L = a.newlabel('ZH3'); a('s_cmp_eq_u32 %s, 3' % sZD); a('s_cbranch_scc1 %s' % L)
        for k in range(4): a('v_xor_b32 v%d, %s, v%d' % (212 + k, sT, 212 + k))
        a('v_or_b32 v212, v212, v213'); a('v_or3_b32 v212, v212, v214, v215'); a('v_cmp_ne_u32 vcc, 0, v212'); a('s_cmp_eq_u64 vcc, 0'); a('s_cbranch_scc0 %s' % L)
        z_loads(g); a('s_mov_b32 %s, 1' % sZOK)
        a.label(L)

def z_new(g):
    a = g.a
    assert YR == 2
    L = a.newlabel('ZN'); Lk = a.newlabel('ZNK')
    a('s_cmp_eq_u32 %s, 3' % sZD); a('s_cbranch_scc1 %s' % L)
    a('s_cmp_eq_u32 %s, 1' % sZOK); a('s_cbranch_scc1 %s' % Lk)
    a('s_mov_b32 s27, 0x%x' % FL(FL_Y)); poll_yflags(g, 's27', 10); z_loads(g)
    a.label(Lk)
    a('s_waitcnt vmcnt(0)')
    a('v_mul_f32 v206, v206, v207'); a('v_add_f32 v207, 1.0, v207')
    for k in range(8): a('v_add_f32 v%d, v%d, v%d' % (188 + k, 188 + k, 196 + k))
    for k in range(4): unpack2(a, 196 + 2 * k, 212 + k)
    for k in range(8): a('v_fma_f32 v%d, v%d, v207, -v206' % (196 + k, 196 + k))
    for k in range(8): a('v_add_f32 v%d, v%d, v%d' % (188 + k, 188 + k, 196 + k))
    for k in range(4): a('v_cvt_pk_bf16_f32 v%d, v%d, v%d' % (200 + k, 188 + 2 * k, 189 + 2 * k))
    for k in range(4): unpack2(a, 188 + 2 * k, 200 + k)
    row_stats(g); norm_row_to_lds(g)
    F = 72
    for h in range(2):
        for s in range(8): a('ds_read_b128 v[%d:%d], v186 offset:%d' % (F + 4 * s, F + 4 * s + 3, (8 * h + s) * 64))
        for s in range(8):
            S = 8 * h + s; f = 'v[%d:%d]' % (F + 4 * s, F + 4 * s + 3); Cc = lambda r: '0' if S == 0 else 'v[%d:%d]' % (r, r + 3)
            a('s_waitcnt lgkmcnt(%d)' % (7 - s))
            a('v_mfma_f32_16x16x32_bf16 v[104:107], a[%d:%d], %s, %s' % (12 * S, 12 * S + 3, f, Cc(104)))
            a('v_mfma_f32_16x16x32_bf16 v[108:111], a[%d:%d], %s, %s' % (12 * S + 4, 12 * S + 7, f, Cc(108)))
            a('v_mfma_f32_16x16x32_bf16 v[48:51], %s, a[%d:%d], %s' % (f, 12 * S + 8, 12 * S + 11, Cc(48)))
    a('s_mov_b32 s25, 0x3eb8aa3b')
    for r in range(4): a('v_mul_f32 v%d, s25, v%d' % (104 + r, 104 + r))
    a('v_cvt_pk_bf16_f32 v52, v104, v105'); a('v_cvt_pk_bf16_f32 v53, v106, v107'); a('v_cvt_pk_bf16_f32 v54, v108, v109'); a('v_cvt_pk_bf16_f32 v55, v110, v111')
    a('v_cvt_pk_bf16_f32 v56, v48, v48'); a('v_lshlrev_b32 v57, 16, v56')
    a('s_cmp_lg_u32 %s, 0' % sZD); a('s_cbranch_scc1 %s' % L)
    a('s_barrier')
    Lp = a.newlabel('ZNP')
    a('s_cmp_lg_u32 %s, 0' % sRH); a('s_cbranch_scc1 %s' % Lp)
    write_key(g, 54, 56, 0x3f80)
    a('s_lshl_b32 s25, %s, 6' % sHD); a('s_add_u32 s25, s25, %d' % MERGE); a('v_lshl_add_u32 v187, %s, 2, s25' % vTOK)
    a('s_mov_b64 exec, 0xffff'); a('ds_write_b32 v187, v57'); a('s_mov_b64 exec, -1')
    a('s_lshl_b32 s25, %s, 12' % sHD); a('s_lshl_b32 s26, s29, 4'); a('s_add_u32 s25, s25, s26'); a('s_add_u32 s25, s25, %d' % IMG_Q); a('v_add_u32 v187, s25, v186')
    a('s_mov_b32 vcc_lo, 0x00010001'); a('s_mov_b32 vcc_hi, 0x00010001'); a('s_mov_b64 exec, vcc')
    a('ds_write_b64 v187, v[52:53]'); a('s_mov_b64 exec, -1')
    a('s_waitcnt lgkmcnt(0)')
    a.label(Lp)
    a('s_barrier')
    key_pos(g)
    a('s_lshl_b32 s26, %s, 12' % sHD); a('s_add_u32 s26, s26, %d' % IMG_Q); a('s_lshl_b32 s27, %s, 9' % sRH)
    a('s_add_u32 s28, s26, s27'); a('v_add_u32 v186, s28, v204'); a('s_sub_u32 s28, s26, s27'); a('s_add_u32 s28, s28, %d' % (3 * 512)); a('v_add_u32 v187, s28, v204')
    a('ds_read_b128 v[%d:%d], v186' % (QA, QA + 3)); a('ds_read_b128 v[%d:%d], v187' % (QB, QB + 3))
    a('s_lshl_b32 s27, %s, 13' % sHD); a('s_add_u32 s27, s27, %d' % IMG_KV); a('s_lshl_b32 s26, s29, 4'); a('s_add_u32 s27, s27, s26')
    a('v_lshrrev_b32 v185, 5, v1'); a('v_lshlrev_b32 v186, 11, v185'); a('v_add_u32 v186, s27, v186'); a('ds_read_b128 v[52:55], v186')
    a('s_lshl_b32 s25, %s, 6' % sHD); a('s_add_u32 s25, s25, %d' % MERGE); a('v_add_u32 v186, s25, v209')
    a('ds_read_b128 v[56:59], v186'); a('ds_read_b128 v[60:63], v186 offset:32')
    a('v_and_b32 v187, 27, v1'); a('v_cmp_eq_u32 s[70:71], 0, v187')
    a('v_and_b32 v187, 31, v1'); a('v_subrev_u32 v187, s29, v187')
    a('s_lshl_b32 s26, %s, 5' % sRH); a('v_add_u32 v210, s26, v187'); a('s_sub_u32 s26, 96, s26'); a('v_add_u32 v211, s26, v187')
    a('s_mov_b32 s43, 0x100')
    a('s_waitcnt lgkmcnt(0)')
    for r in range(4): a('v_cndmask_b32 v%d, 0, v%d, s[70:71]' % (52 + r, 52 + r))
    for blk, q in ((0, QA), (1, QB)): a('v_mfma_f32_32x32x16_bf16 v[%d:%d], v[52:55], v[%d:%d], 0' % (72 + 16 * blk, 87 + 16 * blk, q, q + 3))
    a('s_lshl_b32 s25, %s, 12' % sHD); a('s_lshl_b32 s26, s29, 4'); a('s_add_u32 s25, s25, s26'); a('s_add_u32 s25, s25, %d' % IMG_Q)
    a('v_lshlrev_b32 v186, 11, v185'); a('v_add_u32 v186, s25, v186'); a('ds_read_b128 v[48:51], v186')
    for blk, o in ((0, OA), (1, OB)):
        a('v_cmp_gt_u32 vcc, s43, v%d' % (210 + blk))
        a('v_exp_f32 v186, v%d' % (72 + 16 * blk)); a('s_nop 1'); a('v_cndmask_b32 v186, 0, v186, vcc')
        for r in range(8): a('v_fmac_f32 v%d, v186, v%d' % (o + r, 56 + r))
        a('v_add_f32 v%d, v%d, v186' % (o + 8, o + 8))
    a('s_lshr_b32 s25, s29, 5'); a('s_sub_u32 s26, 3, s25'); a('s_min_u32 s26, s26, s25'); a('s_cmp_lg_u32 s26, %s' % sRH); a('s_cbranch_scc1 %s' % L)
    a('v_and_b32 v187, 31, v1')
    a('v_lshrrev_b32 v186, 4, v187'); a('v_lshlrev_b32 v188, 5, v186'); a('v_bfe_u32 v186, v187, 2, 1'); a('v_lshl_add_u32 v188, v186, 4, v188')
    a('v_bfe_u32 v186, v187, 3, 1'); a('v_lshl_add_u32 v188, v186, 3, v188'); a('v_and_b32 v186, 3, v187'); a('v_lshl_add_u32 v188, v186, 1, v188')
    a('s_lshl_b32 s25, %s, 10' % sW); a('s_add_u32 s25, s25, %d' % (XROW + 512)); a('v_add_u32 v188, s25, v188'); a('v_add_u32 v189, s25, v209')
    a('v_sub_u32 v190, s29, v187')
    seg_addr(g, IMG_KV)
    for t in range(4): a('ds_read_b128 v[%d:%d], v%d offset:%d' % (56 + 4 * t, 59 + 4 * t, VKA, t * 512))
    a('s_waitcnt lgkmcnt(0)')
    for r in range(4): a('v_cndmask_b32 v%d, 0, v%d, s[70:71]' % (48 + r, 48 + r))
    for t in range(4):
        sb = 72 + 16 * (t & 1)
        a('v_mfma_f32_32x32x16_bf16 v[%d:%d], v[48:51], v[%d:%d], 0' % (sb, sb + 15, 56 + 4 * t, 59 + 4 * t))
        if t >= 1:
            tp = t - 1; sp = 72 + 16 * (tp & 1)
            a('v_exp_f32 v%d, v%d' % (192 + tp, sp))
    a('v_exp_f32 v195, v88')
    for t in range(4):
        a('v_subrev_u32 v191, %d, v190' % (32 * t)); a('v_cmp_gt_u32 vcc, s43, v191'); a('v_cndmask_b32 v%d, 0, v%d, vcc' % (192 + t, 192 + t)); a('v_cvt_pk_bf16_f32 v%d, v%d, v%d' % (192 + t, 192 + t, 192 + t))
    a('s_mov_b32 exec_hi, 0')
    for t in range(4): a('ds_write_b16 v188, v%d offset:%d' % (192 + t, t * 64))
    a('s_mov_b64 exec, -1')
    for t in range(4): a('ds_read_b128 v[%d:%d], v%d' % (56 + 4 * t, 59 + 4 * t, VA0 + t))
    for t in range(4): a('ds_read_b128 v[%d:%d], v%d' % (88 + 4 * t, 91 + 4 * t, VA1 + t))
    for t in range(2): a('ds_read_b128 v[%d:%d], v189 offset:%d' % (188 + 8 * t + 4, 191 + 8 * t + 4, 0)) if False else None
    a('s_waitcnt lgkmcnt(8)')
    for t in range(4): a('ds_read_b128 v[%d:%d], v189 offset:%d' % (144 + 4 * t, 147 + 4 * t, t * 64))
    a('s_waitcnt lgkmcnt(0)')
    for t in range(4): a('v_mfma_f32_32x32x16_bf16 v[72:87], v[%d:%d], v[%d:%d], %s' % (56 + 4 * t, 59 + 4 * t, 144 + 4 * t, 147 + 4 * t, '0' if t == 0 else 'v[72:87]'))
    for t in range(4): a('ds_read_b128 v[%d:%d], v189 offset:%d' % (144 + 4 * t, 147 + 4 * t, t * 64 + 32))
    a('s_waitcnt lgkmcnt(0)')
    for t in range(4): a('v_mfma_f32_32x32x16_bf16 v[72:87], v[%d:%d], v[%d:%d], v[72:87]' % (88 + 4 * t, 91 + 4 * t, 144 + 4 * t, 147 + 4 * t))
    a('s_and_b32 s26, s29, 31'); a('v_and_b32 v187, 31, v1'); a('v_cmp_eq_u32 vcc, s26, v187'); a('s_lshr_b32 s25, s29, 5')
    for blk, o in ((0, OA), (1, OB)):
        Ls = a.newlabel('ZRO')
        if blk == 0: a('s_cmp_eq_u32 s25, %s' % sRH)
        else: a('s_sub_u32 s26, 3, %s' % sRH); a('s_cmp_eq_u32 s25, s26')
        a('s_cbranch_scc0 %s' % Ls)
        for r in range(9): a('v_cndmask_b32 v%d, v%d, v%d, vcc' % (o + r, o + r, 72 + r))
        a.label(Ls)
    a.label(L)

def z_halo_patch(g):
    a = g.a
    L = a.newlabel('ZHP'); L2 = a.newlabel('ZHW')
    a('s_cmp_eq_u32 %s, 3' % sZD); a('s_cbranch_scc1 %s' % L); a('s_cmp_eq_u32 %s, 0' % sZD); a('s_cbranch_scc1 %s' % L)
    a('s_cmp_lg_u32 %s, 0' % sRH); a('s_cbranch_scc1 %s' % L2)
    write_key(g, 54, 56, 0x3f80)
    a('s_waitcnt lgkmcnt(0)')
    a.label(L2); a('s_barrier')
    a.label(L)

def steps_code(g, steps, maskreg, hook=None):
    a = g.a
    def kread(n):
        b = K0 if n % 2 == 0 else K1
        a('ds_read_b128 v[%d:%d], v%d offset:%d' % (b, b + 3, VKA, steps[n][1] * 512))
    def vread(n):
        lo, hi = VB[n % 2]; t = steps[n][1]
        a('ds_read_b128 v[%d:%d], v%d' % (lo, lo + 3, VA0 + t)); a('ds_read_b128 v[%d:%d], v%d' % (hi, hi + 3, VA1 + t))
    def smfma(n):
        blk, t, mk = steps[n]
        b = K0 if n % 2 == 0 else K1; q = QA if blk == 0 else QB; s = SS[n % 2]
        cc = 'v[%d:%d]' % (maskreg, maskreg + 15) if mk else '0'
        a('v_mfma_f32_32x32x16_bf16 v[%d:%d], v[%d:%d], v[%d:%d], %s' % (s, s + 15, b, b + 3, q, q + 3, cc))
    N = len(steps)
    kread(0); vread(0)
    if N > 1: kread(1)
    a('s_waitcnt lgkmcnt(%d)' % (3 if N > 1 else 2))
    smfma(0)
    for n in range(N):
        o = OA if steps[n][0] == 0 else OB; s = SS[n % 2]; lo, hi = VB[n % 2]
        ex = lambda r: a('v_exp_f32 v%d, v%d' % (s + r, s + r))
        cv = lambda r: a('v_cvt_pk_bf16_f32 v%d, v%d, v%d' % (PP + r, s + 2 * r, s + 2 * r + 1))
        for r in range(4): ex(r)
        a('s_waitcnt lgkmcnt(0)')
        if n + 1 < N: smfma(n + 1)
        if n + 2 < N: kread(n + 2)
        for r in range(4, 8): ex(r)
        for r in range(4): cv(r)
        ex(8); ex(9)
        a('v_mfma_f32_32x32x16_bf16 v[%d:%d], v[%d:%d], v[%d:%d], v[%d:%d]' % (o, o + 15, lo, lo + 3, PP, PP + 3, o, o + 15))
        if n + 1 < N: vread(n + 1)
        for r in range(10, 16): ex(r)
        for r in range(4, 8): cv(r)
        a('v_mfma_f32_32x32x16_bf16 v[%d:%d], v[%d:%d], v[%d:%d], v[%d:%d]' % (o, o + 15, hi, hi + 3, PP + 4, PP + 7, o, o + 15))
        if hook: hook(n)

def two_variants(g, fn):
    a = g.a; L1 = a.newlabel('VAR1'); Lj = a.newlabel('VARJ')
    a('s_cmp_eq_u32 %s, 1' % sRH); a('s_cbranch_scc1 %s' % L1)
    fn(0); a('s_branch %s' % Lj)
    a.label(L1); fn(1)
    a.label(Lj)

def attention(g):
    a, opt = g.a, g.opt
    z_zero(g)
    a('v_add_u32 v186, %d, %s' % (IMG_KV, vT16))
    for i in range(4): a('ds_read_b128 v[%d:%d], v186 offset:%d' % (188 + 4 * i, 191 + 4 * i, i * 4096))
    a('s_lshl_b32 s25, %s, 4' % sBLK); a('s_add_u32 s25, s25, %s' % sHP); a('s_lshl_b32 s25, s25, 14')
    a('s_lshl_b32 s26, %s, 22' % sL); a('s_add_u32 s25, s25, s26'); a('s_add_u32 s25, s25, 0x%x' % WS_KV[0])
    a('''
    v_and_b32 v186, 31, v1
    v_lshrrev_b32 v187, 5, v1
    v_lshlrev_b32 v204, 11, v187
    v_lshl_add_u32 v204, v186, 4, v204
    ''')
    a('s_lshl_b32 s26, %s, 12' % sHD); a('s_add_u32 s26, s26, %d' % IMG_Q); a('s_lshl_b32 s27, %s, 9' % sRH)
    a('s_add_u32 s28, s26, s27'); a('v_add_u32 v205, s28, v204'); a('s_sub_u32 s28, s26, s27'); a('s_add_u32 s28, s28, %d' % (3 * 512)); a('v_add_u32 v206, s28, v204')
    a('ds_read_b128 v[%d:%d], v205' % (QA, QA + 3)); a('ds_read_b128 v[%d:%d], v206' % (QB, QB + 3))
    a('s_waitcnt lgkmcnt(2)')
    for i in range(4):
        a('s_add_u32 s26, s25, %d' % (i * 4096))
        a('buffer_store_dwordx4 v[%d:%d], %s, %s, s26 offen sc1' % (188 + 4 * i, 191 + 4 * i, vT16, SRD_WS))
    a('v_and_b32 v186, 31, v1'); a('v_lshrrev_b32 v187, 5, v1')
    a('v_and_b32 v205, 15, v186'); a('v_xor_b32 v206, v187, v205'); a('v_lshlrev_b32 v206, 4, v206'); a('v_lshl_add_u32 v205, v205, 8, v206')
    a('v_cmp_gt_u32 s[32:33], 16, v186'); a('v_lshlrev_b32 v209, 4, v187')
    make_masks(g)
    for r in range(16): a('v_mov_b32 v%d, 0' % (OA + r)); a('v_mov_b32 v%d, 0' % (OB + r))
    seg_addr(g, IMG_KV)
    def hook(n):
        if n == 3:
            a('s_waitcnt vmcnt(0)'); flag_store(g, FL_KV)
        z_hook(g, n)
    two_variants(g, lambda p: steps_code(g, [(0, t, t == p) for t in range(p + 1)] + [(1, t, t == 3 - p) for t in range(4 - p)], MBD, hook))
    g.ts(4)
    gu_frags(g)
    z_new(g)
    Lno = a.newlabel('NOHALO'); Lb = a.newlabel('HALOB'); Lend = a.newlabel('HALOE')
    a('s_cmp_eq_u32 %s, 0' % sBLK); a('s_cbranch_scc1 %s' % Lno)
    def wg_of(dst, delta):
        a('s_sub_u32 s25, %s, %d' % (sBLK, delta)); a('s_max_i32 s25, s25, 0')
        a('s_and_b32 s26, s25, 1'); a('s_lshl_b32 s27, %s, 1' % sHP); a('s_add_u32 s26, s26, s27'); a('s_lshl_b32 s26, s26, 3'); a('s_lshr_b32 s27, s25, 1'); a('s_add_u32 %s, s26, s27' % dst)
    wg_of('s29', 1); wg_of('s30', 2)
    a('s_lshl_b32 s29, s29, 7'); a('s_lshl_b32 s30, s30, 7')
    a('v_and_b32 v206, 3, v1'); a('v_lshlrev_b32 v206, 2, v206'); a('v_and_b32 v207, 4, v1'); a('v_cmp_eq_u32 vcc, 0, v207')
    a('v_mov_b32 v207, s30'); a('v_mov_b32 v210, s29'); a('v_cndmask_b32 v207, v207, v210, vcc'); a('v_add_u32 v206, v206, v207')
    a('s_lshl_b32 s27, %s, 15' % sL); a('s_add_u32 s27, s27, 0x%x' % FL(FL_KV))
    poll_leader(g, [('v206', 's27', 'f', 216)], 2)
    a('s_lshl_b32 s27, %s, 4' % sBLK); a('s_add_u32 s27, s27, %s' % sHP); a('s_sub_u32 s27, s27, 16'); a('s_lshl_b32 s27, s27, 14')
    a('s_lshl_b32 s26, %s, 22' % sL); a('s_add_u32 s27, s27, s26'); a('s_lshl_b32 s26, %s, 12' % sW); a('s_add_u32 s27, s27, s26'); a('s_add_u32 s27, s27, 0x%x' % WS_KV[0])
    a('s_add_u32 m0, s26, %d' % HALO_B)
    for i in range(4): a('buffer_load_dwordx4 %s, %s, s27 offen offset:%d sc1 lds' % (vL16, SRD_WS, i * 1024))
    a('s_cmp_eq_u32 %s, 1' % sBLK); a('s_cbranch_scc1 %s' % Lb)
    a('s_sub_u32 s27, s27, %d' % (16 * 16384)); a('s_add_u32 m0, s26, %d' % HALO_A)
    for i in range(4): a('buffer_load_dwordx4 %s, %s, s27 offen offset:%d sc1 lds' % (vL16, SRD_WS, i * 1024))
    a.label(Lb)
    wo_stage(g)
    seg_addr(g, HALO_B)
    a('s_waitcnt vmcnt(16)'); a('s_barrier')
    z_halo_patch(g)
    steps_code(g, [(n & 1, n >> 1, False) for n in range(8)], MBA)
    a('s_cmp_eq_u32 %s, 1' % sBLK); a('s_cbranch_scc1 %s' % Lend)
    seg_addr(g, HALO_A)
    two_variants(g, lambda p: steps_code(g, [(0, t, t == p) for t in range(p, 4)] + [(1, t, t == 3 - p) for t in range(3 - p, 4)], MBA))
    a('s_branch %s' % Lend)
    a.label(Lno)
    wo_stage(g)
    a.label(Lend)
    g.ts(5)
    for blk, o in ((0, OA), (1, OB)):
        Lok = a.newlabel('SMOK')
        a('s_mov_b32 s25, 0x21800000'); a('s_mov_b32 s26, 0x5d800000')
        a('v_cmp_nle_f32 vcc, s25, v%d' % (o + 8)); a('v_cmp_nge_f32 s[28:29], s26, v%d' % (o + 8)); a('s_or_b64 vcc, vcc, s[28:29]')
        if opt.force_slow: a('s_mov_b64 vcc, 1')
        a('s_cmp_eq_u64 vcc, 0'); a('s_cbranch_scc1 %s' % Lok)
        slow_softmax(g, blk, o)
        a.label(Lok)
    a('s_lshl_b32 s25, %s, 5' % sBLK); a('s_lshl_b32 s26, %s, 1' % sHP); a('s_add_u32 s25, s25, s26'); a('s_add_u32 s25, s25, %s' % sHD); a('s_lshl_b32 s25, s25, 12')
    a('s_lshl_b32 s26, %s, 21' % sL); a('s_add_u32 s25, s25, s26'); a('s_add_u32 s25, s25, 0x%x' % WS_O[0])
    a('s_lshl_b32 s26, %s, 10' % sRH); a('s_add_u32 s27, s25, s26'); a('s_sub_u32 s28, s25, s26'); a('s_add_u32 s28, s28, %d' % (3 * 1024))
    a('v_and_b32 v186, 31, v1'); a('v_lshrrev_b32 v187, 5, v1'); a('v_lshlrev_b32 v186, 5, v186'); a('v_lshl_add_u32 v186, v187, 4, v186')
    for blk, o, so, d in ((0, OA, 's27', 188), (1, OB, 's28', 192)):
        a('v_rcp_f32 v187, v%d' % (o + 8))
        for r in range(8): a('v_mul_f32 v%d, v187, v%d' % (o + r, o + r))
        for r in range(4): a('v_cvt_pk_bf16_f32 v%d, v%d, v%d' % (d + r, o + 2 * r, o + 2 * r + 1))
        a('v_permlane32_swap_b32 v%d, v%d' % (d, d + 2)); a('v_permlane32_swap_b32 v%d, v%d' % (d + 1, d + 3))
        a('buffer_store_dwordx4 v[%d:%d], v186, %s, %s offen sc1' % (d, d + 3, SRD_WS, so))
    a('s_waitcnt vmcnt(0)')
    flag_store(g, FL_O)
    g.ts(6)

def slow_softmax(g, blk, o):
    a = g.a
    q = QA if blk == 0 else QB
    S = 72; CM = 88; P = 104; K = 48; VL = 56; VH = 60; MX = 211
    make_masks(g)
    if blk == 0: a('s_mov_b32 s28, %s' % sRH)
    else: a('s_sub_u32 s28, 3, %s' % sRH)
    a('v_mov_b32 v%d, 0x%x' % (MX, NEGBIG))
    def loop(body, tag):
        L = a.newlabel('SL' + tag); Lskip = a.newlabel('SLK'); Lown = a.newlabel('SLO'); Lb = a.newlabel('SLB'); Lgo = a.newlabel('SLG')
        Lm = a.newlabel('SLM'); Lz = a.newlabel('SLZ'); Ld = a.newlabel('SLD')
        a('s_mov_b32 s30, 0'); a.label(L)
        a('s_cmp_le_u32 s30, s28'); a('s_cbranch_scc1 %s' % Lown)
        a('s_sub_u32 s31, s30, 1')
        a('s_cmp_lt_u32 s31, 4'); a('s_cbranch_scc0 %s' % Lb)
        a('s_cmp_lt_u32 %s, 2' % sBLK); a('s_cbranch_scc1 %s' % Lskip)
        a('s_mov_b32 s29, %d' % HALO_A); a('s_mov_b32 s27, s31'); a('s_cmp_eq_u32 s31, s28'); a('s_cselect_b32 s33, 2, 0'); a('s_mov_b32 s43, %d' % ONES_A); a('s_branch %s' % Lgo)
        a.label(Lb)
        a('s_cmp_lt_u32 %s, 1' % sBLK); a('s_cbranch_scc1 %s' % Lskip)
        a('s_mov_b32 s29, %d' % HALO_B); a('s_sub_u32 s27, s31, 4'); a('s_mov_b32 s33, 0'); a('s_mov_b32 s43, %d' % ONES_B); a('s_branch %s' % Lgo)
        a.label(Lown)
        a('s_mov_b32 s29, %d' % IMG_KV); a('s_mov_b32 s27, s30'); a('s_cmp_eq_u32 s30, s28'); a('s_cselect_b32 s33, 1, 0'); a('s_mov_b32 s43, %d' % ONES_O)
        a.label(Lgo)
        a('s_lshl_b32 s25, %s, 13' % sHD); a('s_add_u32 s29, s29, s25'); a('s_lshl_b32 s25, s27, 9'); a('s_add_u32 s25, s25, s29')
        a('v_add_u32 v210, s25, v204'); a('ds_read_b128 v[%d:%d], v210' % (K, K + 3))
        a('s_cmp_eq_u32 s33, 0'); a('s_cbranch_scc1 %s' % Lz)
        a('s_cmp_eq_u32 s33, 1'); a('s_cbranch_scc0 %s' % Lm)
        for r in range(16): a('v_mov_b32 v%d, v%d' % (CM + r, MBD + r))
        a('s_branch %s' % Ld)
        a.label(Lm)
        for r in range(16): a('v_mov_b32 v%d, v%d' % (CM + r, MBA + r))
        a('s_branch %s' % Ld)
        a.label(Lz)
        for r in range(16): a('v_mov_b32 v%d, 0' % (CM + r))
        a.label(Ld)
        body()
        a.label(Lskip)
        a('s_add_u32 s30, s30, 1'); a('s_cmp_lt_u32 s30, 9'); a('s_cbranch_scc1 %s' % L)
    def p1():
        a('s_waitcnt lgkmcnt(0)')
        a('v_mfma_f32_32x32x16_bf16 v[%d:%d], v[%d:%d], v[%d:%d], v[%d:%d]' % (S, S + 15, K, K + 3, q, q + 3, CM, CM + 15))
        a('s_nop 15')
        for r in range(0, 16, 2): a('v_max3_f32 v%d, v%d, v%d, v%d' % (MX, MX, S + r, S + r + 1))
    loop(p1, 'A')
    a('v_mov_b32 v210, v%d' % MX); a('s_nop 1'); a('v_permlane32_swap_b32 v%d, v210' % MX); a('v_max_f32 v%d, v%d, v210' % (MX, MX))
    for r in range(16): a('v_mov_b32 v%d, 0' % (o + r))
    def p2():
        for r in range(16): a('v_sub_f32 v%d, v%d, v%d' % (CM + r, CM + r, MX))
        a('s_add_u32 s29, s29, 4096'); a('s_lshl_b32 s25, s27, 6')
        a('v_add_u32 v210, s29, v205'); a('v_add_u32 v208, s43, v209')
        a('v_cndmask_b32 v210, v208, v210, s[70:71]'); a('v_xor_b32 v212, 32, v210')
        a('v_xor_b32 v210, s25, v210'); a('v_xor_b32 v212, s25, v212')
        a('ds_read_b128 v[%d:%d], v210' % (VL, VL + 3)); a('ds_read_b128 v[%d:%d], v212' % (VH, VH + 3))
        a('s_waitcnt lgkmcnt(0)')
        a('v_mfma_f32_32x32x16_bf16 v[%d:%d], v[%d:%d], v[%d:%d], v[%d:%d]' % (S, S + 15, K, K + 3, q, q + 3, CM, CM + 15))
        a('s_nop 15')
        for r in range(16): a('v_exp_f32 v%d, v%d' % (S + r, S + r))
        a('s_nop 0')
        for r in range(8): a('v_cvt_pk_bf16_f32 v%d, v%d, v%d' % (P + r, S + 2 * r, S + 2 * r + 1))
        a('s_nop 1')
        a('v_mfma_f32_32x32x16_bf16 v[%d:%d], v[%d:%d], v[%d:%d], v[%d:%d]' % (o, o + 15, VL, VL + 3, P, P + 3, o, o + 15))
        a('v_mfma_f32_32x32x16_bf16 v[%d:%d], v[%d:%d], v[%d:%d], v[%d:%d]' % (o, o + 15, VH, VH + 3, P + 4, P + 7, o, o + 15))
    a('v_and_b32 v210, 31, v1'); a('v_cmp_gt_u32 s[70:71], 16, v210')
    loop(p2, 'B')
    a('s_nop 15')

def wo_stage(g):
    a = g.a
    g.srd(12, P_WO, 512 * 1024)
    a('v_lshrrev_b32 v210, 3, v1'); a('v_lshlrev_b32 v210, 10, v210'); a('v_and_b32 v211, 7, v1')
    a('v_bfe_u32 v212, v1, 4, 1'); a('v_lshlrev_b32 v212, 1, v212'); a('v_xor_b32 v211, v211, v212'); a('v_lshl_add_u32 v210, v211, 4, v210')
    a('v_xor_b32 v211, 64, v210')
    a('s_and_b32 s25, %s, 7' % sI); a('s_lshl_b32 s25, s25, 7'); a('s_lshl_b32 s26, %s, 17' % sW); a('s_add_u32 s25, s25, s26')
    a('s_lshl_b32 s27, %s, 14' % sW); a('s_add_u32 s27, s27, %d' % WOST)
    for n in range(16):
        a('s_add_u32 m0, s27, %d' % (n * 1024)); a('s_add_u32 s26, s25, %d' % (n * 8192))
        a('buffer_load_dwordx4 v%d, %s, s26 offen lds' % (210 + (n & 1), SRD_T))

def gu_srd(g, ptr):
    g.srd(12, ptr, 512 * 3584)

def gu_setup(g):
    a = g.a
    gu_srd(g, P_WG)
    a('v_lshrrev_b32 v76, 2, v1'); a('s_mov_b32 s28, 3584'); a('v_mul_lo_u32 v76, v76, s28'); a('v_and_b32 v77, 3, v1')
    a('v_lshrrev_b32 v78, 5, v1'); a('v_lshlrev_b32 v78, 1, v78'); a('v_xor_b32 v77, v77, v78'); a('v_lshl_add_u32 v76, v77, 4, v76')
    a('s_lshl_b32 s30, %s, 6' % sFS); a('s_mul_i32 s29, %s, %d' % (sW, 128 * 3584)); a('s_add_u32 s30, s30, s29')
    a('s_lshl_b32 s31, %s, 13' % sW)

def gu_wait(g, n):
    a = g.a
    L0 = a.newlabel('GW0'); L2 = a.newlabel('GW2')
    a('s_cmp_lg_u32 s72, 1'); a('s_cbranch_scc1 %s' % L0)
    a('s_waitcnt vmcnt(%d)' % n); a('s_branch %s' % L2)
    a.label(L0); a('s_waitcnt vmcnt(0)')
    a.label(L2)

def gu_dma(g, n, base):
    a = g.a
    a('s_add_u32 m0, s31, %d' % (base + n * 1024)); a('s_add_u32 s29, s30, %d' % (n * 16 * 3584))
    a('buffer_load_dwordx4 v76, %s, s29 offen lds' % SRD_T)

def gu_frags(g):
    a = g.a
    L = a.newlabel('NOGF'); if_ffn(a, L, True)
    a('s_waitcnt vmcnt(0)'); a('s_barrier')
    a('v_lshlrev_b32 v210, 6, %s' % vTRB); a('v_add_u32 v210, v210, %s' % vTRC)
    a('v_and_b32 v211, 1, %s' % vG); a('v_xor_b32 v211, %s, v211' % sHD); a('v_lshl_add_u32 v210, v211, 5, v210')
    a('s_lshl_b32 s25, %s, 15' % sRH); a('v_add_u32 v210, s25, v210')
    for s in range(16):
        a('ds_read_b64_tr_b16 a[%d:%d], v210 offset:%d' % (192 + 4 * s, 193 + 4 * s, s * 2048)); a('ds_read_b64_tr_b16 a[%d:%d], v210 offset:%d' % (194 + 4 * s, 195 + 4 * s, s * 2048 + 256))
    a('s_waitcnt lgkmcnt(0)'); a('s_barrier')
    a.label(L)

def down_stage(g):
    a = g.a
    L = a.newlabel('NODW'); if_ffn(a, L, True)
    g.srd(12, P_WD, 1792 * 1024)
    a('s_lshl_b32 s25, %s, 15' % sFS); a('s_lshl_b32 s26, %s, 14' % sW); a('s_add_u32 s25, s25, s26'); a('s_add_u32 s27, s26, %d' % WOST)
    for n in range(16):
        f = (n & 3) | (((n >> 3) & 1) << 2)
        a('s_add_u32 m0, s27, %d' % (n * 1024)); a('s_add_u32 s26, s25, %d' % (n * 1024))
        a('v_xor_b32 v210, %d, %s' % (f * 32, vL16))
        a('buffer_load_dwordx4 v210, %s, s26 offen lds' % SRD_T)
    a.label(L)

def poll_yflags(g, soff, code):
    a = g.a
    a('v_min_u32 v206, 55, v1'); a('v_add_u32 v206, 8, v206'); a('v_lshlrev_b32 v206, 7, v206')
    poll(g, [('v206', soff, 'f4', 212)], code)

def own_check(g, L):
    a = g.a
    a('s_lshr_b32 s25, %s, 8' % sSEL); a('s_cmp_lg_u32 s25, %s' % sJ); a('s_cbranch_scc1 %s' % L)
    a('s_lshr_b32 s25, %s, 6' % sSEL); a('s_and_b32 s25, s25, 3'); a('s_lshr_b32 s26, %s, 3' % sI); a('s_cmp_lg_u32 s25, s26'); a('s_cbranch_scc1 %s' % L)

def y_fetch(g, ylayer, code, L):
    a = g.a
    own_check(g, L)
    if ylayer == 0:
        a('s_mov_b32 s27, 0x%x' % FL(FL_Y + ylayer))
        poll_yflags(g, 's27', code)
        a('s_and_b32 s25, %s, 7' % sI); a('s_lshl_b32 s25, s25, 8'); a('s_lshl_b32 s26, %s, 6' % sW); a('s_add_u32 s25, s25, s26'); a('s_add_u32 s25, s25, 0x%x' % WS_Y[ylayer])
        a('v_lshlrev_b32 v186, 4, %s' % vG)
        for rep in range(YR):
            a('s_add_u32 s26, s25, %d' % (rep * 2048)); a('buffer_load_dwordx4 v[%d:%d], v186, %s, s26 offen sc1' % (196 + 4 * rep, 199 + 4 * rep, SRD_WS))
        a('s_waitcnt vmcnt(0)')
        for rep in range(1, YR):
            for r in range(4): a('v_add_f32 v%d, v%d, v%d' % (196 + r, 196 + r, 196 + 4 * rep + r))
    else:
        Lp = a.newlabel('YTP'); Ld = a.newlabel('YTD')
        a('v_lshlrev_b32 v186, 3, v1'); a('s_lshl_b32 s25, %s, 12' % sW); a('v_add_u32 v186, s25, v186')
        a('s_and_b32 s25, %s, 7' % sI); a('s_lshl_b32 s25, s25, 9'); a('s_add_u32 s25, s25, 0x%x' % WS_YT)
        a('s_mov_b32 s76, 0'); a.label(Lp)
        for i in range(14):
            a('s_add_u32 s26, s25, %d' % (i * 16384)); a('buffer_load_dwordx2 v[%d:%d], v186, %s, s26 offen sc1' % (40 + 2 * i, 41 + 2 * i, SRD_WS))
        a('s_waitcnt vmcnt(0)')
        a('v_xor_b32 v219, %s, v41' % sT)
        for i in range(1, 14): a('v_xor_b32 v218, %s, v%d' % (sT, 41 + 2 * i)); a('v_or_b32 v219, v219, v218')
        a('v_cmp_ne_u32 vcc, 0, v219'); a('s_cmp_eq_u64 vcc, 0'); a('s_cbranch_scc1 %s' % Ld)
        a('s_add_u32 s76, s76, 1'); a('s_cmp_lt_u32 s76, 0x40000'); a('s_cbranch_scc1 %s' % Lp)
        timeout(g, code)
        a.label(Ld)
        for i in range(1, 14): a('v_add_f32 v40, v40, v%d' % (40 + 2 * i))
        a('s_lshl_b32 s25, %s, 8' % sW); a('s_add_u32 s25, s25, %d' % XROW); a('v_lshlrev_b32 v186, 2, v1'); a('v_add_u32 v186, s25, v186')
        a('ds_write_b32 v186, v40'); a('s_waitcnt lgkmcnt(0)'); a('s_barrier')
        a('s_lshl_b32 s25, %s, 6' % sW); a('s_add_u32 s25, s25, %d' % XROW); a('v_lshlrev_b32 v186, 4, %s' % vG); a('v_add_u32 v186, s25, v186')
        for k in range(4): a('ds_read_b128 v[%d:%d], v186 offset:%d' % (196 + 4 * k, 199 + 4 * k, k * 256))
        a('s_waitcnt lgkmcnt(0)')
        for k in range(1, 4):
            for r in range(4): a('v_add_f32 v%d, v%d, v%d' % (196 + r, 196 + r, 196 + 4 * k + r))

def blayer(g, dst, ylayer, code):
    a = g.a
    a('v_lshlrev_b32 v186, 4, %s' % vTOK); a('v_add_u32 v186, %d, v186' % LT)
    for tt in range(4): a('ds_read_b64 v[%d:%d], v186 offset:%d' % (188 + 2 * tt, 189 + 2 * tt, tt * 256))
    for tt in range(4):
        for k in range(2): unpack2(a, dst + 4 * tt + 2 * k, XT + 2 * tt + k)
    a('s_waitcnt lgkmcnt(0)')
    for tt in range(4):
        m, s = 188 + 2 * tt, 189 + 2 * tt
        a('v_mul_f32 v%d, v%d, v%d' % (m, m, s)); a('v_add_f32 v%d, 1.0, v%d' % (s, s))
        for r in range(4): a('v_fma_f32 v%d, v%d, v%d, -v%d' % (dst + 4 * tt + r, dst + 4 * tt + r, s, m))
    L = a.newlabel('NOY')
    if ylayer == 0:
        own_check(g, L)
        a('v_mov_b32 v196, v38'); a('v_mov_b32 v197, v39'); a('v_mov_b32 v198, v23'); a('v_mov_b32 v199, v24')
    else:
        y_fetch(g, 1, code, L)
    a('s_and_b32 s25, %s, 63' % sSEL)
    for tt in range(4):
        a('v_add_u32 v186, %d, %s' % (16 * tt, vTOK)); a('v_cmp_eq_u32 vcc, s25, v186'); a('v_cndmask_b32 v187, 0, 1.0, vcc')
        for r in range(4): a('v_fmac_f32 v%d, v187, v%d' % (dst + 4 * tt + r, 196 + r))
    a.label(L)

def tile_image_write(g, src):
    a = g.a
    a('v_lshrrev_b32 v186, 1, %s' % vG); a('s_lshl_b32 s25, %s, 1' % sW); a('v_add_u32 v186, s25, v186')
    a('v_lshrrev_b32 v187, 1, %s' % vTOK); a('v_xor_b32 v186, v186, v187'); a('v_lshlrev_b32 v186, 4, v186')
    a('v_lshl_add_u32 v186, %s, 7, v186' % vTOK); a('v_and_b32 v187, 1, %s' % vG); a('v_lshl_add_u32 v186, v187, 3, v186'); a('v_add_u32 v186, %d, v186' % IMG_Q)
    for tt in range(4): a('ds_write_b64 v186, v[%d:%d] offset:%d' % (src + 2 * tt, src + 2 * tt + 1, tt * 2048))

def outproj(g):
    a, opt = g.a, g.opt
    WO, FR, ACC = 40, 104, 136
    a('s_barrier')
    a('v_lshlrev_b32 v205, 7, %s' % vTRB); a('v_add_u32 v205, v205, %s' % vTRC)
    a('v_bfe_u32 v206, %s, 3, 1' % vTOK); a('v_and_b32 v207, 1, %s' % vG); a('v_lshl_or_b32 v206, v207, 1, v206'); a('v_xor_b32 v206, %s, v206' % sW)
    a('v_lshl_add_u32 v205, v206, 5, v205'); a('v_add_u32 v205, %d, v205' % WOST)
    for s in range(16):
        a('ds_read_b64_tr_b16 v[%d:%d], v205 offset:%d' % (WO + 4 * s, WO + 4 * s + 1, s * 4096)); a('ds_read_b64_tr_b16 v[%d:%d], v205 offset:%d' % (WO + 4 * s + 2, WO + 4 * s + 3, s * 4096 + 512))
    L0 = a.newlabel('OPL0')
    a('s_cmp_lg_u32 %s, 0' % sL); a('s_cbranch_scc1 %s' % L0)
    a('s_lshl_b32 s25, %s, 8' % sJ); a('s_lshr_b32 s26, %s, 3' % sI); a('s_lshl_b32 s26, s26, 6'); a('s_add_u32 s25, s25, s26'); a('s_lshl_b32 s25, s25, 10')
    a('s_and_b32 s26, %s, 7' % sI); a('s_lshl_b32 s26, s26, 7'); a('s_lshl_b32 s27, %s, 5' % sW); a('s_add_u32 s26, s26, s27'); a('s_add_u32 s25, s25, s26')
    a('v_lshlrev_b32 v186, 3, %s' % vG); a('v_lshl_add_u32 v187, %s, 10, v186' % vTOK)
    for tt in range(4):
        a('s_add_u32 s27, s25, %d' % (tt * 16384)); a('buffer_load_dwordx2 v[%d:%d], v187, %s, s27 offen' % (XT + 2 * tt, XT + 2 * tt + 1, SRD_X0))
    g.srd(12, P_WR, 1024)
    a('buffer_load_dwordx2 v[188:189], v186, %s, s26 offen' % SRD_T); a('buffer_load_dwordx4 v[192:195], %s, %s, 0 offen' % (vL16, SRD_T))
    a('s_waitcnt vmcnt(0)')
    for k in range(2): unpack2(a, WRS + 2 * k, 188 + k)
    for k in range(4): unpack2(a, 196 + 2 * k, 192 + k)
    for k in range(1, 8): a('v_add_f32 v196, v196, v%d' % (196 + k))
    allreduce(a, [196], 197)
    a('v_readfirstlane_b32 %s, v196' % sSW)
    a.label(L0)
    a('s_waitcnt lgkmcnt(0)'); a('s_barrier')
    Ly = a.newlabel('OPY')
    a('s_cmp_eq_u32 %s, 0' % sL); a('s_cbranch_scc1 %s' % Ly)
    y_fetch(g, 0, 4, Ly)
    a('v_mov_b32 v38, v196'); a('v_mov_b32 v39, v197'); a('v_mov_b32 v23, v198'); a('v_mov_b32 v24, v199')
    a.label(Ly)
    a('s_lshr_b32 s25, %s, 3' % sI)
    a('s_lshr_b32 s26, s25, 1'); a('s_lshl_b32 s26, s26, 10'); a('s_lshl_b32 s27, %s, 7' % sJ); a('s_add_u32 s27, s27, s26')
    a('s_lshl_b32 s26, %s, 15' % sL); a('s_add_u32 s27, s27, s26'); a('s_add_u32 s27, s27, 0x%x' % FL(FL_O))
    a('v_and_b32 v186, 3, v1'); a('v_lshlrev_b32 v186, 2, v186'); a('v_lshrrev_b32 v187, 2, v1'); a('v_lshl_add_u32 v186, v187, 11, v186')
    poll_leader(g, [('v186', 's27', 'f', 216)], 3)
    g.ts(7)
    a('s_lshl_b32 s26, %s, 1' % sJ); a('s_lshr_b32 s27, s25, 1'); a('s_add_u32 s26, s26, s27'); a('s_lshl_b32 s26, s26, 17')
    a('s_lshl_b32 s27, %s, 21' % sL); a('s_add_u32 s26, s26, s27'); a('s_and_b32 s27, s25, 1'); a('s_lshl_b32 s27, s27, 11'); a('s_add_u32 s26, s26, s27')
    a('s_lshl_b32 s28, %s, 12' % sRH); a('s_add_u32 s26, s26, s28'); a('s_lshl_b32 s28, %s, 10' % sHD); a('s_add_u32 s26, s26, s28'); a('s_add_u32 s26, s26, 0x%x' % WS_O[0])
    a('s_lshl_b32 s27, %s, 11' % sRH); a('s_add_u32 s27, s27, s28')
    for n in range(16):
        a('s_add_u32 m0, s27, %d' % (OST + n * 4096)); a('s_add_u32 s28, s26, %d' % (n * 8192))
        a('buffer_load_dwordx4 %s, %s, s28 offen sc1 lds' % (vL16, SRD_WS))
    a('v_lshrrev_b32 v186, 1, %s' % vG); a('v_lshlrev_b32 v186, 11, v186'); a('v_lshl_add_u32 v186, %s, 5, v186' % vTOK)
    a('v_and_b32 v187, 1, %s' % vG); a('v_lshl_add_u32 v186, v187, 4, v186')
    if OST: a('v_add_u32 v186, %d, v186' % OST)
    DO = 6
    def ord_(n):
        s, tt = n >> 2, n & 3; b = FR + 4 * (n & 7)
        a('ds_read_b128 v[%d:%d], v186 offset:%d' % (b, b + 3, s * 4096 + tt * 512))
    def omf(n):
        s, tt = n >> 2, n & 3; b = FR + 4 * (n & 7); o = ACC + 4 * tt
        a('v_mfma_f32_16x16x32_bf16 v[%d:%d], v[%d:%d], v[%d:%d], %s' % (o, o + 3, WO + 4 * s, WO + 4 * s + 3, b, b + 3, '0' if s == 0 else 'v[%d:%d]' % (o, o + 3)))
    a('s_waitcnt vmcnt(12)'); a('s_barrier')
    for n in range(DO): ord_(n)
    for n in range(64):
        m = n + DO
        if m < 64:
            if m % 16 == 0: a('s_waitcnt vmcnt(%d)' % (12 - 4 * (m // 16))); a('s_barrier')
            ord_(m); a('s_waitcnt lgkmcnt(%d)' % DO)
        else:
            a('s_waitcnt lgkmcnt(%d)' % (63 - n))
        omf(n)
    g.ts(8)
    BASE = 152
    Lb1 = a.newlabel('OPB1'); Lb2 = a.newlabel('OPB2')
    a('s_cmp_lg_u32 %s, 0' % sL); a('s_cbranch_scc1 %s' % Lb1)
    for tt in range(4):
        for k in range(2): unpack2(a, BASE + 4 * tt + 2 * k, XT + 2 * tt + k)
    a('s_branch %s' % Lb2)
    a.label(Lb1); blayer(g, BASE, 0, 4); a.label(Lb2)
    for i in range(16): a('v_add_f32 v%d, v%d, v%d' % (BASE + i, BASE + i, ACC + i))
    for tt in range(4):
        for k in range(2): a('v_cvt_pk_bf16_f32 v%d, v%d, v%d' % (XT + 2 * tt + k, BASE + 4 * tt + 2 * k, BASE + 4 * tt + 2 * k + 1))
    tile_image_write(g, XT)
    for tt in range(4):
        for k in range(2): unpack2(a, BASE + 4 * tt + 2 * k, XT + 2 * tt + k)
    for tt in range(4):
        x = BASE + 4 * tt
        a('v_add_f32 v%d, v%d, v%d' % (168 + tt, x, x + 1)); a('v_mul_f32 v%d, v%d, v%d' % (172 + tt, x, x)); a('v_mul_f32 v%d, v%d, v%d' % (176 + tt, x, WRS))
        a('v_add_f32 v%d, v%d, v%d' % (168 + tt, 168 + tt, x + 2)); a('v_fmac_f32 v%d, v%d, v%d' % (172 + tt, x + 1, x + 1)); a('v_fmac_f32 v%d, v%d, v%d' % (176 + tt, x + 1, WRS + 1))
        a('v_add_f32 v%d, v%d, v%d' % (168 + tt, 168 + tt, x + 3)); a('v_fmac_f32 v%d, v%d, v%d' % (172 + tt, x + 2, x + 2)); a('v_fmac_f32 v%d, v%d, v%d' % (176 + tt, x + 2, WRS + 2))
        a('v_fmac_f32 v%d, v%d, v%d' % (172 + tt, x + 3, x + 3)); a('v_fmac_f32 v%d, v%d, v%d' % (176 + tt, x + 3, WRS + 3))
    qs = (168, 172, 176)
    for q in qs: a('v_permlane32_swap_b32 v%d, v%d' % (q, q + 2)); a('v_permlane32_swap_b32 v%d, v%d' % (q + 1, q + 3))
    for q in qs: a('v_add_f32 v%d, v%d, v%d' % (q, q, q + 2)); a('v_add_f32 v%d, v%d, v%d' % (q + 1, q + 1, q + 3))
    for q in qs: a('v_permlane16_swap_b32 v%d, v%d' % (q, q + 1))
    for k, q in enumerate(qs): a('v_add_f32 v%d, v%d, v%d' % (180 + k, q, q + 1))
    a('v_mov_b32 v183, %s' % sT)
    a('s_lshl_b32 s25, %s, 10' % sW); a('s_add_u32 s25, s25, %d' % PART); a('v_add_u32 v186, s25, %s' % vL16); a('ds_write_b128 v186, v[180:183]')
    a('s_waitcnt lgkmcnt(0)'); a('s_barrier')
    Lw23 = a.newlabel('OPW23'); Lpubend = a.newlabel('OPPE')
    a('s_cmp_ge_u32 %s, 2' % sW); a('s_cbranch_scc1 %s' % Lw23)
    a('v_add_u32 v186, %d, %s' % (IMG_Q, vT16))
    for i in range(4): a('ds_read_b128 v[%d:%d], v186 offset:%d' % (152 + 4 * i, 155 + 4 * i, i * 2048))
    a('s_lshl_b32 s25, %s, 3' % sJ); a('s_and_b32 s26, %s, 7' % sI); a('s_add_u32 s25, s25, s26'); a('s_lshl_b32 s25, s25, 15')
    a('s_lshr_b32 s27, %s, 3' % sI); a('s_lshl_b32 s27, s27, 13'); a('s_add_u32 s25, s25, s27')
    a('s_lshl_b32 s27, %s, 21' % sL); a('s_add_u32 s25, s25, s27'); a('s_add_u32 s25, s25, 0x%x' % WS_X[0])
    a('s_lshl_b32 s27, %s, 9' % sW); a('s_add_u32 s27, s27, %d' % PART); a('v_add_u32 v187, s27, %s' % vL16)
    for k in range(4): a('ds_read_b128 v[%d:%d], v187 offset:%d' % (196 + 4 * k, 199 + 4 * k, k * 1024))
    a('s_lshl_b32 s29, %s, 8' % sJ); a('s_lshr_b32 s27, %s, 3' % sI); a('s_lshl_b32 s27, s27, 6'); a('s_add_u32 s29, s29, s27'); a('s_lshl_b32 s29, s29, 7')
    a('s_lshl_b32 s27, %s, 18' % sL); a('s_add_u32 s29, s29, s27'); a('s_add_u32 s29, s29, 0x%x' % WS_P[0])
    a('s_lshl_b32 s27, s26, 4'); a('s_add_u32 s30, s29, s27'); a('s_lshl_b32 s27, %s, 12' % sW); a('s_add_u32 s30, s30, s27')
    a('s_waitcnt lgkmcnt(0)')
    for k in range(1, 4):
        for r in range(3): a('v_add_f32 v%d, v%d, v%d' % (196 + r, 196 + r, 196 + 4 * k + r))
    a('v_lshlrev_b32 v187, 7, v1')
    a('s_mov_b32 exec_hi, 0')
    a('buffer_store_dwordx4 v[196:199], v187, %s, s30 offen sc1' % SRD_WS)
    a('s_mov_b64 exec, -1')
    for i in range(4):
        a('s_add_u32 s28, s25, %d' % (i * 2048)); a('buffer_store_dwordx4 v[%d:%d], %s, %s, s28 offen sc1' % (152 + 4 * i, 155 + 4 * i, vT16, SRD_WS))
    a('s_waitcnt vmcnt(0)')
    flag_store(g, FL_X)
    g.ts(9)
    a('s_mov_b32 s33, s29'); down_stage(g); a('s_mov_b32 s29, s33')
    for i in range(1, 4): a('s_add_u32 s%d, s29, %d' % (29 + i, i * 2048))
    poll(g, [(vT16, 's29', 'g', 188), (vT16, 's30', 'g', 192), (vT16, 's31', 'g', 196), (vT16, 's32', 'g', 200)], 5)
    bs = (188, 192, 196, 200)
    regs = [b + k for b in bs for k in range(3)]
    for pat in ('quad_perm:[1,0,3,2]', 'quad_perm:[2,3,0,1]', 'row_half_mirror'):
        for r in regs: a('v_add_f32_dpp v%d, v%d, v%d %s row_mask:0xf bank_mask:0xf' % (r, r, r, pat))
    a('s_mov_b32 s25, 0x3b000000'); a('s_mov_b32 s26, 0x3727c5ac')
    bt = [(b, 152 + 4 * i) for i, b in enumerate(bs)]
    for b, t in bt: a('v_mul_f32 v%d, s25, v%d' % (b, b)); a('v_mul_f32 v%d, s25, v%d' % (b + 1, b + 1))
    for b, t in bt: a('v_fma_f32 v%d, -v%d, v%d, v%d' % (b + 1, b, b, b + 1)); a('v_fma_f32 v%d, -v%d, %s, v%d' % (b + 3, b, sSW, b + 2))
    for b, t in bt: a('v_add_f32 v%d, s26, v%d' % (t, b + 1))
    for b, t in bt: a('v_rsq_f32 v%d, v%d' % (t + 1, t))
    for b, t in bt: a('v_add_f32 v%d, 1.0, v%d' % (t + 2, t + 1))
    for b, t in bt: a('v_mul_f32 v%d, v%d, v%d' % (b + 3, t + 1, b + 3)); a('v_mul_f32 v%d, v%d, v%d' % (t + 3, t + 2, t + 2))
    for b, t in bt: a('v_fma_f32 v%d, v%d, v%d, s26' % (t + 3, t + 3, b + 1))
    for b, t in bt: a('v_rsq_f32 v%d, v%d' % (t + 3, t + 3))
    for b, t in bt: a('v_mov_b32 v%d, v%d' % (b + 1, t + 1))
    for b, t in bt: a('v_mul_f32 v%d, v%d, v%d' % (b + 2, t + 2, t + 3))
    a('v_lshrrev_b32 v186, 3, v0'); a('v_lshlrev_b32 v186, 4, v186'); a('v_add_u32 v186, %d, v186' % LT)
    a('s_mov_b32 s28, 0x01010101'); a('s_mov_b32 s29, 0x01010101'); a('s_mov_b64 exec, s[28:29]')
    for i, b in enumerate(bs): a('ds_write_b128 v186, v[%d:%d] offset:%d' % (b, b + 3, i * 256))
    a('s_mov_b64 exec, -1')
    a('s_waitcnt lgkmcnt(0)')
    a('s_branch %s' % Lpubend)
    a.label(Lw23)
    a.label(Lpubend)
    if g.opt.bar23: a('s_barrier')
    Lp = a.newlabel('OPFS')
    a('s_and_b32 s25, %s, 7' % sI); a('s_cmp_lg_u32 s25, 0'); a('s_cbranch_scc1 %s' % Lp)
    a('s_barrier')
    a('s_cmp_lg_u32 %s, 0' % sW); a('s_cbranch_scc1 %s' % Lp)
    a('v_add_u32 v186, %d, %s' % (LT, vL16)); a('ds_read_b128 v[188:191], v186'); a('s_waitcnt lgkmcnt(0)')
    a('v_mov_b32 v192, v191'); a('v_mov_b32 v193, v191'); a('v_mov_b32 v191, %s' % sT)
    a('s_lshl_b32 s29, %s, 8' % sJ); a('s_lshr_b32 s27, %s, 3' % sI); a('s_lshl_b32 s27, s27, 6'); a('s_add_u32 s29, s29, s27')
    allreduce(a, [192], 194, op='v_max_f32')
    a('v_cmp_eq_f32 vcc, v192, v193'); a('s_ff1_i32_b64 s28, vcc'); a('s_add_u32 s28, s28, s29')
    a('v_mov_b32 v193, s28'); a('v_mov_b32 v194, %s' % sT); a('v_mov_b32 v195, %s' % sT)
    a('s_lshl_b32 s28, %s, 2' % sJ); a('s_lshr_b32 s27, %s, 3' % sI); a('s_add_u32 s28, s28, s27'); a('s_lshl_b32 s28, s28, 4')
    a('s_lshl_b32 s27, %s, 12' % sL); a('s_add_u32 s28, s28, s27'); a('s_add_u32 s28, s28, 0x%x' % WS_BM[0])
    a('s_mov_b64 exec, 1'); a('buffer_store_dwordx4 v[192:195], off, %s, s28 sc1' % SRD_WS); a('s_mov_b64 exec, -1')
    Lq = a.newlabel('OPFS1')
    a('s_cmp_lg_u32 %s, 0' % sL); a('s_cbranch_scc1 %s' % Lq)
    a('s_lshl_b32 s28, s29, 4'); a('s_add_u32 s28, s28, 0x%x' % WS_FS[1])
    a('buffer_store_dwordx4 v[188:191], %s, %s, s28 offen sc1' % (vL16, SRD_WS))
    a.label(Lq)
    a.label(Lp)
    g.ts(10)

def get_sel(g, layer, code):
    a = g.a
    a('v_and_b32 v186, 31, v1'); a('v_lshlrev_b32 v186, 4, v186'); a('s_mov_b32 s27, 0x%x' % WS_BM[layer])
    poll(g, [('v186', 's27', 'g', 188)], code)
    a('v_mov_b32 v192, v188'); allreduce(a, [192], 194, op='v_max_f32')
    a('v_cmp_eq_f32 vcc, v192, v188'); a('s_ff1_i32_b64 s28, vcc'); a('s_nop 3')
    a('v_readlane_b32 %s, v189, s28' % sSEL); a('v_readlane_b32 %s, v188, s28' % sRSEL)

def row_stats(g):
    a = g.a
    a('v_add_f32 v196, v188, v189'); a('v_mul_f32 v197, v188, v188'); a('v_fmac_f32 v197, v189, v189')
    for k in range(2, 8): a('v_add_f32 v196, v196, v%d' % (188 + k)); a('v_fmac_f32 v197, v%d, v%d' % (188 + k, 188 + k))
    allreduce(a, [196, 197], 198)
    a('s_mov_b32 s25, 0x3b000000'); a('s_mov_b32 s26, 0x3727c5ac')
    a('v_mul_f32 v196, s25, v196'); a('v_mul_f32 v197, s25, v197'); a('v_fma_f32 v197, -v196, v196, v197'); a('v_add_f32 v197, s26, v197'); a('v_rsq_f32 v197, v197')

def load_row(g, layer, code):
    a = g.a
    a('s_lshr_b32 s25, %s, 8' % sSEL); a('s_lshr_b32 s26, %s, 6' % sSEL); a('s_and_b32 s26, s26, 3')
    a('s_lshl_b32 s27, s26, 13'); a('s_lshl_b32 s28, s25, 7'); a('s_add_u32 s27, s27, s28'); a('s_add_u32 s27, s27, 0x%x' % FL(FL_X + layer))
    a('v_and_b32 v186, 15, v1'); a('v_lshrrev_b32 v187, 1, v186'); a('v_and_b32 v186, 1, v186'); a('v_lshlrev_b32 v186, 2, v186'); a('v_lshl_add_u32 v186, v187, 10, v186')
    poll(g, [('v186', 's27', 'f', 216)], code)
    a('s_and_b32 s26, %s, 255' % sSEL); a('s_lshl_b32 s27, s25, 18'); a('s_lshl_b32 s28, s26, 7'); a('s_add_u32 s27, s27, s28'); a('s_add_u32 s27, s27, 0x%x' % WS_X[layer])
    a('s_and_b32 s26, s26, 15'); a('s_lshr_b32 s26, s26, 1')
    a('v_and_b32 v186, 7, v1'); a('v_xor_b32 v186, s26, v186'); a('v_lshlrev_b32 v186, 4, v186'); a('v_lshrrev_b32 v187, 3, v1'); a('v_lshl_add_u32 v186, v187, 15, v186')
    a('buffer_load_dwordx4 v[200:203], v186, %s, s27 offen sc1' % SRD_WS); a('s_waitcnt vmcnt(0)')
    for k in range(4): unpack2(a, 188 + 2 * k, 200 + k)
    row_stats(g)

def norm_row_to_lds(g):
    a = g.a
    for k in range(8): a('v_sub_f32 v%d, v%d, v196' % (188 + k, 188 + k)); a('v_mul_f32 v%d, v%d, v197' % (188 + k, 188 + k))
    for k in range(4): a('v_cvt_pk_bf16_f32 v%d, v%d, v%d' % (200 + k, 188 + 2 * k, 189 + 2 * k))
    a('s_lshl_b32 s25, %s, 10' % sW); a('s_add_u32 s25, s25, %d' % XROW)
    a('v_add_u32 v186, s25, %s' % vL16); a('ds_write_b128 v186, v[200:203]')
    a('v_lshlrev_b32 v186, 4, %s' % vG); a('v_add_u32 v186, s25, v186'); a('s_waitcnt lgkmcnt(0)')


def sel_from_bm(g, r):
    a = g.a
    a('v_mov_b32 v192, v%d' % r); allreduce(a, [192], 194, op='v_max_f32')
    a('v_cmp_eq_f32 vcc, v192, v%d' % r); a('s_ff1_i32_b64 s28, vcc'); a('s_nop 3')
    a('v_readlane_b32 %s, v%d, s28' % (sSEL, r + 1)); a('v_readlane_b32 %s, v%d, s28' % (sRSEL, r))

def ffn_sel(g, layer, pre):
    a = g.a
    a('s_mov_b32 s33, 0x%x' % WS_BM[layer])
    if not pre: a('v_and_b32 v214, 31, v1'); a('v_lshlrev_b32 v214, 4, v214')
    poll_nodrain(g, [('v214', 's33', 'g', 204)], 7, pre)
    sel_from_bm(g, 204)

def poll_nodrain(g, loads, code, pre):
    a = g.a
    if not pre:
        poll(g, loads, code); return
    D = a.newlabel('PND')
    voff, soff, kind, dst = loads[0]
    w = dst + 3 if kind == 'g' else dst
    a('v_cmp_ne_u32 vcc, %s, v%d' % (sT, w)); a('s_cmp_eq_u64 vcc, 0'); a('s_cbranch_scc1 %s' % D)
    poll(g, loads, code)
    a.label(D)

def ffn_flags_issue(g, layer):
    a = g.a
    a('s_lshr_b32 s25, %s, 8' % sSEL); a('s_lshr_b32 s26, %s, 6' % sSEL); a('s_and_b32 s26, s26, 3')
    a('s_lshl_b32 s27, s26, 13'); a('s_lshl_b32 s28, s25, 7'); a('s_add_u32 s27, s27, s28'); a('s_add_u32 s31, s27, 0x%x' % FL(FL_X + layer))
    a('v_and_b32 v186, 15, v1'); a('v_lshrrev_b32 v187, 1, v186'); a('v_and_b32 v186, 1, v186'); a('v_lshlrev_b32 v186, 2, v186'); a('v_lshl_add_u32 v215, v187, 10, v186')
    a('buffer_load_dword v216, v215, %s, s31 offen sc1' % SRD_WS)

def ffn_flags_check(g, layer):
    a = g.a
    a('s_waitcnt vmcnt(0)')
    a('s_lshr_b32 s25, %s, 8' % sSEL); a('s_lshr_b32 s26, %s, 6' % sSEL); a('s_and_b32 s26, s26, 3')
    a('s_lshl_b32 s27, s26, 13'); a('s_lshl_b32 s28, s25, 7'); a('s_add_u32 s27, s27, s28'); a('s_add_u32 s31, s27, 0x%x' % FL(FL_X + layer))
    poll_nodrain(g, [('v215', 's31', 'f', 216)], 8, True)

def ffn_row_issue(g, layer, dst=200):
    a = g.a
    a('s_lshr_b32 s25, %s, 8' % sSEL); a('s_and_b32 s26, %s, 255' % sSEL); a('s_lshl_b32 s27, s25, 18'); a('s_lshl_b32 s28, s26, 7'); a('s_add_u32 s27, s27, s28'); a('s_add_u32 s27, s27, 0x%x' % WS_X[layer])
    a('s_and_b32 s26, s26, 15'); a('s_lshr_b32 s26, s26, 1')
    a('v_and_b32 v186, 7, v1'); a('v_xor_b32 v186, s26, v186'); a('v_lshlrev_b32 v186, 4, v186'); a('v_lshrrev_b32 v187, 3, v1'); a('v_lshl_add_u32 v186, v187, 15, v186')
    a('buffer_load_dwordx4 v[%d:%d], v186, %s, s27 offen sc1' % (dst, dst + 3, SRD_WS))

def ffn_gateup(g, src=200):
    a = g.a
    for k in range(4): unpack2(a, 188 + 2 * k, src + k)
    row_stats(g); norm_row_to_lds(g)
    F = 152
    for h in range(2):
        for s in range(8): a('ds_read_b128 v[%d:%d], v186 offset:%d' % (F + 4 * s, F + 4 * s + 3, (8 * h + s) * 64))
        a('s_waitcnt lgkmcnt(0)')
        for s in range(8):
            S = 8 * h + s
            a('v_mfma_f32_16x16x32_bf16 v[188:191], a[%d:%d], v[%d:%d], %s' % (192 + 4 * S, 195 + 4 * S, F + 4 * s, F + 4 * s + 3, '0' if S == 0 else 'v[188:191]'))
    a('s_lshl_b32 s25, %s, 6' % sW); a('s_add_u32 s25, s25, %d' % HBUF)
    a('v_lshlrev_b32 v186, 4, %s' % vG); a('v_add_u32 v186, s25, v186')
    a('s_mov_b32 s28, 0x00010001'); a('s_mov_b32 s29, 0x00010001'); a('s_mov_b64 exec, s[28:29]')
    a('ds_write_b128 v186, v[188:191]')
    a('s_mov_b64 exec, -1')
    a('s_waitcnt lgkmcnt(0)')

def ffn_down(g, layer, hb=None, D=152, T=None):
    a = g.a
    if hb is None: hb = HBUF
    a('v_lshlrev_b32 v186, 5, %s' % vG); a('v_add_u32 v186, %d, v186' % hb)
    a('ds_read_b128 v[168:171], v186'); a('ds_read_b128 v[172:175], v186 offset:16'); a('ds_read_b128 v[176:179], v186 offset:128'); a('ds_read_b128 v[180:183], v186 offset:144')
    a('s_mov_b32 s25, 0xbfb8aa3b')
    a('v_mov_b32 v196, %s' % sRSEL); a('v_mul_f32 v196, s25, v196')
    a('s_waitcnt lgkmcnt(0)')
    for k in range(8): a('v_mul_f32 v%d, s25, v%d' % (188 + k, 168 + k))
    for k in range(9): a('v_exp_f32 v%d, v%d' % (188 + k, 188 + k))
    for k in range(9): a('v_add_f32 v%d, 1.0, v%d' % (188 + k, 188 + k))
    for k in range(9): a('v_rcp_f32 v%d, v%d' % (188 + k, 188 + k))
    for k in range(8): a('v_mul_f32 v%d, v%d, v%d' % (168 + k, 168 + k, 176 + k))
    for k in range(8): a('v_mul_f32 v%d, v%d, v%d' % (168 + k, 168 + k, 188 + k))
    for k in range(4): a('v_cvt_pk_bf16_f32 v%d, v%d, v%d' % (184 + k, 168 + 2 * k, 169 + 2 * k))
    for t in range(8): a('v_mfma_f32_16x16x32_bf16 v[%d:%d], v[184:187], v[%d:%d], 0' % (D + 4 * t, D + 4 * t + 3, FDW + 4 * t, FDW + 4 * t + 3))
    a('v_cmp_le_u32 s[28:29], 1, %s' % vG); a('v_cmp_le_u32 s[30:31], 2, %s' % vG); a('v_cmp_le_u32 vcc, 3, %s' % vG)
    for i in range(2):
        d = D + 16 * i
        a('v_cndmask_b32 v%d, v%d, v%d, s[28:29]' % (190 + 2 * i, d, d + 4)); a('v_cndmask_b32 v%d, v%d, v%d, s[30:31]' % (190 + 2 * i, 190 + 2 * i, d + 8))
        a('v_cndmask_b32 v%d, v%d, v%d, vcc' % (190 + 2 * i, 190 + 2 * i, d + 12)); a('v_mul_f32 v%d, v196, v%d' % (190 + 2 * i, 190 + 2 * i))
    if layer == 0:
        a('s_and_b32 s25, %s, %d' % (sB, YR - 1)); a('s_lshl_b32 s25, s25, 11'); a('s_lshl_b32 s26, %s, 9' % sW); a('s_add_u32 s25, s25, s26'); a('s_add_u32 s25, s25, 0x%x' % WS_Y[0])
        a('v_lshlrev_b32 v186, 2, v1')
        a('buffer_atomic_add_f32 v190, v186, %s, s25 offen' % SRD_WS); a('buffer_atomic_add_f32 v192, v186, %s, s25 offen offset:256' % SRD_WS)
    else:
        a('s_lshl_b32 s25, %s, 12' % sFS); a('s_lshl_b32 s26, %s, 10' % sW); a('s_add_u32 s25, s25, s26'); a('s_add_u32 s25, s25, 0x%x' % WS_YT)
        a('v_lshlrev_b32 v186, 3, v1'); a('v_mov_b32 v191, %s' % sT); a('v_mov_b32 v193, %s' % sT)
        a('buffer_store_dwordx2 v[190:191], v186, %s, s25 offen sc1' % SRD_WS); a('buffer_store_dwordx2 v[192:193], v186, %s, s25 offen offset:512 sc1' % SRD_WS)

def ffn_flag(g, layer):
    a = g.a
    a('s_lshl_b32 s25, %s, 7' % sB); a('s_lshl_b32 s26, %s, 2' % sW); a('s_add_u32 s25, s25, s26'); a('s_add_u32 s25, s25, 0x%x' % FL(FL_Y + layer))
    a('v_mov_b32 v220, %s' % sT); a('s_mov_b64 exec, 1'); a('buffer_store_dword v220, off, %s, s25 sc1' % SRD_WS); a('s_mov_b64 exec, -1')

def ffn(g, layer):
    a = g.a
    L = a.newlabel('NOFFN'); if_ffn(a, L, False)
    ffn_sel(g, layer, pre=False)
    ffn_flags_issue(g, layer); ffn_flags_check(g, layer); ffn_row_issue(g, layer)
    a('s_waitcnt vmcnt(0)')
    ffn_gateup(g); a('s_barrier'); ffn_down(g, layer)
    a.label(L)

SELB = HBUF

def final_phase(g):
    a = g.a
    a('s_barrier')
    OUT = 152
    a('v_lshlrev_b32 v186, 4, %s' % vTOK); a('v_add_u32 v186, %d, v186' % LT)
    for tt in range(4): a('ds_read_b64 v[%d:%d], v186 offset:%d' % (188 + 2 * tt, 189 + 2 * tt, tt * 256))
    for tt in range(4):
        for k in range(2): unpack2(a, OUT + 4 * tt + 2 * k, XT + 2 * tt + k)
    a('s_waitcnt lgkmcnt(0)')
    for tt in range(4):
        m, s_ = 188 + 2 * tt, 189 + 2 * tt
        a('v_mul_f32 v%d, v%d, v%d' % (m, m, s_)); a('v_add_f32 v%d, 1.0, v%d' % (s_, s_))
        for r in range(4): a('v_fma_f32 v%d, v%d, v%d, -v%d' % (OUT + 4 * tt + r, OUT + 4 * tt + r, s_, m))
    for tt in range(4):
        for k in range(2): a('v_cvt_pk_bf16_f32 v%d, v%d, v%d' % (168 + 2 * tt + k, OUT + 4 * tt + 2 * k, OUT + 4 * tt + 2 * k + 1))
    tile_image_write(g, 168)
    a('s_waitcnt lgkmcnt(0)'); a('s_barrier')
    a('v_lshrrev_b32 v186, 3, v0'); a('v_and_b32 v187, 7, v0')
    a('v_and_b32 v188, 15, v186'); a('v_lshrrev_b32 v188, 1, v188'); a('v_xor_b32 v188, v187, v188'); a('v_lshlrev_b32 v188, 4, v188'); a('v_lshl_add_u32 v188, v186, 7, v188'); a('v_add_u32 v188, %d, v188' % IMG_Q)
    a('ds_read_b128 v[192:195], v188'); a('ds_read_b128 v[196:199], v188 offset:4096')
    a('v_lshlrev_b32 v187, 4, v187'); a('v_lshl_add_u32 v187, v186, 10, v187')
    g.srd(16, P_OUT, 2048 * 1024)
    a('s_lshl_b32 s25, %s, 8' % sJ); a('s_lshr_b32 s26, %s, 3' % sI); a('s_lshl_b32 s26, s26, 6'); a('s_add_u32 s25, s25, s26'); a('s_lshl_b32 s25, s25, 10')
    a('s_and_b32 s26, %s, 7' % sI); a('s_lshl_b32 s26, s26, 7'); a('s_add_u32 %s, s25, s26' % sXB); a('s_add_u32 s26, %s, 32768' % sXB)
    a('s_waitcnt lgkmcnt(0)')
    a('buffer_store_dwordx4 v[192:195], v187, %s, %s offen sc1' % (SRD_XS, sXB)); a('buffer_store_dwordx4 v[196:199], v187, %s, s26 offen sc1' % SRD_XS)
    Lw = a.newlabel('FSEL')
    a('s_cmp_lg_u32 %s, 0' % sW); a('s_cbranch_scc1 %s' % Lw)
    ffn_sel(g, 1, pre=False)
    a('v_mov_b32 v186, %d' % SELB); a('v_mov_b32 v188, %s' % sSEL); a('v_mov_b32 v189, %s' % sRSEL); a('ds_write_b64 v186, v[188:189]')
    Lr = a.newlabel('FROW'); if_ffn(a, Lr, False)
    ffn_flags_issue(g, 1); ffn_flags_check(g, 1); ffn_row_issue(g, 1); a('s_waitcnt vmcnt(0)')
    for k in range(4): unpack2(a, 188 + 2 * k, 200 + k)
    row_stats(g); norm_row_to_lds(g)
    a.label(Lr)
    Le = a.newlabel('NOE'); a('s_cmp_lg_u32 %s, 0' % sB); a('s_cbranch_scc1 %s' % Le)
    a('v_mov_b32 v220, %s' % sT); a('s_mov_b64 exec, 1'); a('buffer_store_dword v220, off, %s, 0 sc1' % SRD_WS); a('s_mov_b64 exec, -1')
    a.label(Le)
    a('s_waitcnt lgkmcnt(0)')
    a.label(Lw)
    a('s_waitcnt vmcnt(0)')
    a('s_barrier')
    a('v_mov_b32 v186, %d' % SELB); a('ds_read_b64 v[188:189], v186'); a('s_waitcnt lgkmcnt(0)')
    a('v_readfirstlane_b32 %s, v188' % sSEL); a('v_readfirstlane_b32 %s, v189' % sRSEL)
    Lf = a.newlabel('NOFFN'); if_ffn(a, Lf, False)
    a('v_lshlrev_b32 v186, 4, %s' % vG); a('v_add_u32 v186, %d, v186' % XROW)
    F = 40
    for q in range(16): a('ds_read_b128 v[%d:%d], v186 offset:%d' % (F + 4 * q, F + 4 * q + 3, q * 64))
    for q in range(16):
        a('s_waitcnt lgkmcnt(%d)' % min(15, 15 - q))
        a('v_mfma_f32_16x16x32_bf16 v[188:191], a[%d:%d], v[%d:%d], %s' % (192 + 4 * q, 195 + 4 * q, F + 4 * q, F + 4 * q + 3, '0' if q == 0 else 'v[188:191]'))
    a('s_lshl_b32 s25, %s, 6' % sW); a('s_add_u32 s25, s25, %d' % HBUF2); a('v_lshlrev_b32 v186, 4, %s' % vG); a('v_add_u32 v186, s25, v186')
    a('s_mov_b32 s28, 0x00010001'); a('s_mov_b32 s29, 0x00010001'); a('s_mov_b64 exec, s[28:29]')
    a('ds_write_b128 v186, v[188:191]'); a('s_mov_b64 exec, -1')
    a('s_waitcnt lgkmcnt(0)'); a('s_barrier')
    ffn_down(g, 1, hb=HBUF2, D=40, T=104)
    a.label(Lf)
    Lo = a.newlabel('NOOWN')
    y_fetch(g, 1, 13, Lo)
    a('s_lshr_b32 s25, %s, 4' % sSEL); a('s_and_b32 s25, s25, 3')
    for r in range(4): a('v_mov_b32 v%d, v%d' % (188 + r, OUT + r))
    for tt in range(1, 4):
        a('s_cmp_eq_u32 s25, %d' % tt); a('s_cselect_b64 vcc, -1, 0')
        for r in range(4): a('v_cndmask_b32 v%d, v%d, v%d, vcc' % (188 + r, 188 + r, OUT + 4 * tt + r))
    for r in range(4): a('v_add_f32 v%d, v%d, v%d' % (188 + r, 188 + r, 196 + r))
    a('v_cvt_pk_bf16_f32 v192, v188, v189'); a('v_cvt_pk_bf16_f32 v193, v190, v191')
    a('s_and_b32 s25, %s, 63' % sSEL); a('s_lshl_b32 s25, s25, 10'); a('s_add_u32 s25, s25, %s' % sXB); a('s_lshl_b32 s26, %s, 5' % sW); a('s_add_u32 s25, s25, s26')
    a('v_lshlrev_b32 v186, 3, %s' % vG); a('s_and_b32 s26, %s, 15' % sSEL); a('v_cmp_eq_u32 vcc, s26, %s' % vTOK)
    a('s_and_saveexec_b64 s[28:29], vcc')
    a('buffer_store_dwordx2 v[192:193], v186, %s, s25 offen sc1' % SRD_XS)
    a('s_mov_b64 exec, -1')
    a.label(Lo)
    g.ts(15)

def dump_lds(g, base, nbytes):
    a = g.a
    a('s_lshl_b32 s25, %s, 15' % sB); a('s_add_u32 s25, s25, 0x%x' % WS_DUMP); a('v_add_u32 v60, %d, %s' % (base, vT16))
    for i in range(nbytes // 4096):
        a('ds_read_b128 v[64:67], v60 offset:%d' % (i * 4096)); a('s_waitcnt lgkmcnt(0)'); a('v_add_u32 v61, %d, %s' % (i * 4096, vT16))
        a('buffer_store_dwordx4 v[64:67], v61, %s, s25 offen' % SRD_WS); a('s_waitcnt vmcnt(0)')

def build(opt):
    g = G(opt); a = g.a
    prologue(g)
    a('s_mov_b32 %s, 0' % sL)
    a.label('LAYER')
    gemm(g)
    if opt.stop == 'qkv':
        dump_lds(g, IMG_Q, 24576); a('s_branch K_END')
    attention(g)
    if opt.stop == 'attn': a('s_branch K_END')
    outproj(g)
    Lfin = a.newlabel('FINAL')
    a('s_cmp_lg_u32 %s, 0' % sL); a('s_cbranch_scc1 %s' % Lfin)
    a('s_and_b32 s25, %s, 1' % sI); a('s_lshl_b32 s27, s25, 14'); a('s_lshl_b32 s28, %s, 7' % sJ); a('s_add_u32 s27, s27, s28'); a('s_add_u32 s27, s27, 0x%x' % FL(FL_X))
    a('v_and_b32 v186, 31, v1'); a('v_lshrrev_b32 v187, 1, v186'); a('v_and_b32 v186, 1, v186'); a('v_lshlrev_b32 v186, 2, v186'); a('v_lshl_add_u32 v186, v187, 10, v186')
    poll_leader(g, [('v186', 's27', 'f', 216)], 14)
    g.ts(11)
    xsrc(g, 1)
    g.vm = []
    for k in range(4): x_dma(g, 0, k)
    a('s_mov_b32 %s, 1' % sL)
    a('s_branch LAYER')
    a.label(Lfin)
    final_phase(g)
    a.label('K_END'); a('s_endpgm')
    return g

def emit(opt):
    g = build(opt)
    nops = g.a.fix_hazards()
    head = open('cdna_kernels/%s.s.ref' % NAME).read().split('\n')
    out = []
    for l in head:
        if l.startswith('; @launch'):
            out.append('; @launch grid=(256,1,1) block=(256,1,1) lds=%d' % LDS_BYTES); continue
        out.append(l)
        if l.startswith(NAME + '_kernel:'): break
    out.append(g.a.text())
    out.append('''.section .rodata,"a"
.p2align 6
.amdhsa_kernel %s_kernel
  .amdhsa_next_free_vgpr 512
  .amdhsa_next_free_sgpr 100
  .amdhsa_accum_offset 256
  .amdhsa_group_segment_fixed_size 0
  .amdhsa_kernarg_size 88
  .amdhsa_user_sgpr_count 2
  .amdhsa_user_sgpr_kernarg_segment_ptr 1
  .amdhsa_system_sgpr_workgroup_id_x 1
  .amdhsa_float_denorm_mode_32 3
.end_amdhsa_kernel
''' % NAME)
    open(opt.o, 'w').write('\n'.join(out))
    print('instructions', len(g.a.ins), 'nops inserted', nops, file=sys.stderr)

if __name__ == '__main__':
    p = argparse.ArgumentParser()
    p.add_argument('-o', default='cdna_kernels/%s.s' % NAME)
    p.add_argument('--stop', default=''); p.add_argument('--ts', action='store_true'); p.add_argument('--tsd', action='store_true')
    p.add_argument('--hpx', type=int, default=0)
    p.add_argument('--sleep', type=int, default=4)
    p.add_argument('--tsf', action='store_true')
    p.add_argument('--budget', type=int, default=6)
    p.add_argument('--bar23', type=int, default=1)
    p.add_argument('--rot', type=int, default=0)
    p.add_argument('--dbg', action='store_true'); p.add_argument('--force_slow', action='store_true')
    emit(p.parse_args())
```

```python
import sys, argparse
sys.path.insert(0, 'gen')
from asmlib import Asm

NAME = "interleave_layers__sliding_block__moe_arch_mod__prompt"
NEGBIG = 0xF149F2CA

FL_BASE   = 0x1000
FL_KV, FL_O, FL_X, FL_Y = 0, 2, 4, 6
def FL(setno): return FL_BASE + setno * 0x8000
WS_FS     = [0x48000, 0x50000]
WS_P      = [0x60000, 0xA0000]
WS_BM     = [0xE0000, 0xE1000]
WS_Y      = [0xE2000, 0xE4000]
WS_YT     = 0x1100000
YR        = 2
WS_TS     = 0xF0000
WS_KV     = [0x100000, 0x500000]
WS_O      = [0x900000, 0xB00000]
WS_X      = [0xD00000, 0xF00000]
WS_USED   = 0x1200000
WS_DUMP   = 0x1200000
WS_SIZE_DBG = 0x2000000

XA     = 0
WST    = 32768
HALO_A, HALO_B = 0, 16384
DST    = 32768
WOST   = 65536
OST    = 0
FIXS   = 49152 + 8192
IMG_Q  = 131072
IMG_KV = 139264
MISC   = 155648
ONES_O, ONES_A, ONES_B = MISC, MISC + 256, MISC + 512
STAT   = MISC + 768
LT     = STAT + 1024
HBUF   = LT + 1024
XROW   = HBUF + 256
MERGE  = XROW + 4096
HBUF2  = MERGE
PART   = IMG_KV
LDS_BYTES = 163840
assert MERGE + 512 <= LDS_BYTES

sB, sJ, sI, sW, sT, sL = 's2', 's20', 's21', 's22', 's23', 's24'
SRD_X0, SRD_WS, SRD_T, SRD_XS = 's[4:7]', 's[8:11]', 's[12:15]', 's[16:19]'
sHD, sRH, sBLK, sHP = 's34', 's35', 's36', 's45'
sXB, sCD, sTS, sOFF = 's37', 's38', 's39', 's40'
sSEL, sRSEL, sSW, sFS = 's41', 's42', 's44', 's46'
P_X0, P_WQKV, P_WO, P_WR, P_WG, P_WU, P_WD, P_OUT, P_DBG, P_WS = 48, 50, 52, 56, 58, 60, 62, 64, 66, 68

vTID, vLANE, vXA, vXB, vFA0, vFA1, vL16, vT16 = 'v0', 'v1', 'v2', 'v3', 'v4', 'v5', 'v7', 'v8'
vTRB = 'v6'
vTRC = 'v9'
vQW, vVW = 'v11', 'v12'
vTOK, vG = 'v13', 'v25'
CSQ, CSK, CSV = 14, 18, 22
XT = 26
WRS = 34
FDW = 224

class G:
    def __init__(self, opt):
        self.a = Asm(); self.opt = opt; self.vm = []
    def vmi(self, text, tag): self.a(text); self.vm.append(tag)
    def vmwait(self, tag):
        last = max(i for i, t in enumerate(self.vm) if t == tag)
        n = len(self.vm) - 1 - last
        assert n <= 63
        self.a('s_waitcnt vmcnt(%d)' % n); self.vm = self.vm[last + 1:]
    def srd(self, base, ptr, size):
        a = self.a
        a('s_mov_b32 s%d, s%d' % (base, ptr)); a('s_and_b32 s%d, s%d, 0xffff' % (base + 1, ptr + 1))
        a('s_mov_b32 s%d, 0x%x' % (base + 2, size)); a('s_mov_b32 s%d, 0x20000' % (base + 3))
    def ts(self, idx, lay=False):
        if not self.opt.ts and not self.opt.tsd: return
        if lay and not self.opt.ts: return
        a = self.a; L = a.newlabel('TS')
        a('s_cmp_lg_u32 %s, 0' % sW); a('s_cbranch_scc1 %s' % L)
        a('s_memrealtime s[78:79]'); a('s_memtime s[80:81]'); a('s_waitcnt lgkmcnt(0)')
        a('v_mov_b32 v222, s78'); a('v_mov_b32 v223, s80')
        a('s_mov_b64 s[74:75], exec'); a('s_mov_b64 exec, 1')
        if self.opt.ts:
            a('s_lshl_b32 s77, %s, 8' % sB); a('s_add_u32 s77, s77, 0x%x' % (WS_TS + idx * 8))
            if idx >= 2 or lay: a('s_lshl_b32 s73, %s, 7' % sL); a('s_add_u32 s77, s77, s73')
            a('buffer_store_dwordx2 v[222:223], off, %s, s77' % SRD_WS)
            if idx == 0 and not lay:
                a('v_mov_b32 v222, s82'); a('s_add_u32 s77, s77, %d' % (14 * 8)); a('buffer_store_dwordx2 v[222:223], off, %s, s77' % SRD_WS)

        else:
            m0 = {0: 1, 1: 2, 12: 3, 2: 4, 6: 5, 9: 6, 11: 7}; m1 = {2: 8, 4: 9, 6: 10, 7: 11, 9: 12, 10: 13, 15: 14}
            w0 = m0.get(idx); w1 = m1.get(idx)
            a('s_mov_b32 s84, s%d' % P_DBG); a('s_and_b32 s85, s%d, 0xffff' % (P_DBG + 1)); a('s_mov_b32 s86, 256'); a('s_mov_b32 s87, 0x20000')
            a('s_cmp_eq_u32 %s, 0' % sL)
            a('s_cselect_b32 s77, %d, %d' % (4 * (w0 if w0 is not None else 40), 4 * (w1 if w1 is not None else 40)))
            if idx < 2: a('s_mov_b32 s77, %d' % (4 * (w0 if w0 is not None else 40)))
            a('buffer_atomic_umax v222, off, s[84:87], s77')
            if idx == 0:
                a('v_mov_b32 v223, s82'); a('v_not_b32 v223, v223'); a('buffer_atomic_umax v223, off, s[84:87], 0')
                a('v_mov_b32 v223, s82'); a('buffer_atomic_umax v223, off, s[84:87], 0 offset:60')
        a('s_mov_b64 exec, s[74:75]')
        a.label(L)

def unpack2(a, dst, src):
    a('v_lshlrev_b32 v%d, 16, v%d' % (dst, src)); a('v_and_b32 v%d, 0xffff0000, v%d' % (dst + 1, src))

def allreduce(a, regs, tmp, op='v_add_f32'):
    for pat in ('quad_perm:[1,0,3,2]', 'quad_perm:[2,3,0,1]', 'row_half_mirror', 'row_mirror'):
        for r in regs: a('%s_dpp v%d, v%d, v%d %s row_mask:0xf bank_mask:0xf' % (op, r, r, r, pat))
    for sw in ('v_permlane16_swap_b32', 'v_permlane32_swap_b32'):
        for k, r in enumerate(regs): a('v_mov_b32 v%d, v%d' % (tmp + k, r))
        for k, r in enumerate(regs): a('%s v%d, v%d' % (sw, r, tmp + k))
        for k, r in enumerate(regs): a('%s v%d, v%d, v%d' % (op, r, r, tmp + k))

def timeout(g, code):
    a = g.a
    g.srd(12, P_DBG, 256)
    a('v_mov_b32 v221, %d' % code); a('buffer_store_dword v221, off, %s, 0' % SRD_T); a('s_waitcnt vmcnt(0)')

def poll(g, loads, code, pre_issued=False):
    a = g.a
    L = a.newlabel('POLL'); D = a.newlabel('POLD'); C = a.newlabel('POLC')
    a('s_mov_b32 s76, 0')
    if pre_issued: a('s_branch %s' % C)
    a.label(L)
    for voff, soff, kind, dst in loads:
        if kind == 'f': a('buffer_load_dword v%d, %s, %s, %s offen sc1' % (dst, voff, SRD_WS, soff))
        else: a('buffer_load_dwordx4 v[%d:%d], %s, %s, %s offen sc1' % (dst, dst + 3, voff, SRD_WS, soff))
    if pre_issued: a.label(C)
    a('s_waitcnt vmcnt(0)')
    first = True
    for voff, soff, kind, dst in loads:
        words = [dst] if kind == 'f' else ([dst + 3] if kind == 'g' else [dst, dst + 1, dst + 2, dst + 3])
        for w in words:
            if first: a('v_xor_b32 v219, %s, v%d' % (sT, w)); first = False
            else: a('v_xor_b32 v218, %s, v%d' % (sT, w)); a('v_or_b32 v219, v219, v218')
    a('v_cmp_ne_u32 vcc, 0, v219'); a('s_cmp_eq_u64 vcc, 0'); a('s_cbranch_scc1 %s' % D)
    if g.opt.sleep: a('s_sleep %d' % g.opt.sleep)
    a('s_add_u32 s76, s76, 1'); a('s_cmp_lt_u32 s76, 0x40000'); a('s_cbranch_scc1 %s' % L)
    timeout(g, code)
    a.label(D)

def poll_leader(g, loads, code):
    a = g.a
    L = a.newlabel('PLD')
    a('s_cmp_lg_u32 %s, 0' % sW); a('s_cbranch_scc1 %s' % L)
    poll(g, loads, code)
    a.label(L); a('s_barrier')

def flag_store(g, setno, layered=True):
    a = g.a
    a('s_lshl_b32 s25, %s, 7' % sB); a('s_lshl_b32 s26, %s, 2' % sW); a('s_add_u32 s25, s25, s26')
    if layered: a('s_lshl_b32 s26, %s, 15' % sL); a('s_add_u32 s25, s25, s26')
    a('s_add_u32 s25, s25, 0x%x' % FL(setno))
    a('v_mov_b32 v220, %s' % sT); a('s_mov_b64 exec, 1')
    a('buffer_store_dword v220, off, %s, s25 sc1' % SRD_WS)
    a('s_mov_b64 exec, -1')

def if_ffn(a, L, layer0_only):
    if layer0_only: a('s_cmp_lg_u32 %s, 0' % sL); a('s_cbranch_scc1 %s' % L)
    a('s_sub_u32 s3, %s, 8' % sB); a('s_cmp_ge_u32 s3, 56'); a('s_cbranch_scc1 %s' % L)

def xsrc(g, layer):
    a = g.a
    if layer == 0:
        a('s_mov_b32 s16, s4'); a('s_mov_b32 s17, s5'); a('s_mov_b32 s18, s6'); a('s_mov_b32 s19, 0x20000')
        a('s_lshl_b32 s25, %s, 7' % sBLK); a('s_lshl_b32 s26, %s, 6' % sRH); a('s_add_u32 s25, s25, s26'); a('s_lshl_b32 s25, s25, 10')
        a('s_lshl_b32 s26, %s, 9' % sHD); a('s_add_u32 %s, s25, s26' % sXB)
        a('s_mov_b32 %s, 128' % sTS); a('s_mov_b32 %s, %d' % (sCD, 16 * 1024 - 4 * 128))
    else:
        a('s_mov_b32 s16, s8'); a('s_mov_b32 s17, s9'); a('s_mov_b32 s18, s10'); a('s_mov_b32 s19, 0x20000')
        a('s_lshl_b32 s25, %s, 18' % sJ); a('s_and_b32 s26, %s, 1' % sI); a('s_lshl_b32 s26, s26, 14'); a('s_add_u32 s25, s25, s26')
        a('s_lshl_b32 s26, %s, 13' % sRH); a('s_add_u32 s25, s25, s26'); a('s_lshl_b32 s26, %s, 17' % sHD); a('s_add_u32 s25, s25, s26')
        a('s_add_u32 %s, s25, 0x%x' % (sXB, WS_X[0]))
        a('s_mov_b32 %s, 32768' % sTS); a('s_mov_b32 %s, 0x%x' % (sCD, (2048 - 4 * 32768) & 0xffffffff))
        a('v_mov_b32 %s, %s' % (vXA, vL16)); a('v_mov_b32 %s, %s' % (vXB, vL16))
    a('s_mov_b32 %s, %s' % (sOFF, sXB))
    a('s_lshl_b32 s47, %s, 14' % sRH); a('s_lshl_b32 s25, %s, 13' % sHD); a('s_add_u32 s47, s47, s25')

def x_dma(g, c, k):
    a = g.a
    a('s_add_u32 m0, s47, %d' % (c * 32768 + k * 2048))
    g.vmi('buffer_load_dwordx4 %s, %s, %s offen sc1 lds' % (vXA, SRD_XS, sOFF), 'X%d' % c)
    g.vmi('buffer_load_dwordx4 %s, %s, %s offen offset:1024 sc1 lds' % (vXB, SRD_XS, sOFF), 'X%d' % c)
    a('s_add_u32 %s, %s, %s' % (sOFF, sOFF, sTS))
    if k == 3: a('s_add_u32 %s, %s, %s' % (sOFF, sOFF, sCD))

def late_prefetch(g, which):
    a = g.a
    if which == 'all':
        a('s_cmp_eq_u32 %s, 1' % sW); a('s_cselect_b32 s12, s%d, s%d' % (P_WU, P_WG)); a('s_cselect_b32 s13, s%d, s%d' % (P_WU + 1, P_WG + 1))
        a('s_cmp_eq_u32 %s, 2' % sW); a('s_cselect_b32 s12, s%d, s12' % P_WD); a('s_cselect_b32 s13, s%d, s13' % (P_WD + 1))
        a('s_cmp_eq_u32 %s, 3' % sW); a('s_cselect_b32 s12, s%d, s12' % P_WO); a('s_cselect_b32 s13, s%d, s13' % (P_WO + 1))
        a('s_mov_b32 s14, 0x1c0000'); a('s_cselect_b32 s14, 0x80000, s14'); a('s_mov_b32 s25, 7168'); a('s_cselect_b32 s25, 0x800, s25'); a('s_and_b32 s13, s13, 0xffff'); a('s_mov_b32 s15, 0x20000')
        a('s_mul_i32 s26, %s, s25' % sB); a('v_lshlrev_b32 v53, 7, v1'); a('s_sub_u32 s25, s25, 128'); a('v_min_u32 v53, s25, v53')
        g.vmi('buffer_load_dword v221, v53, %s, s26 offen' % SRD_T, 'tlb')
        return
    p0, p1 = (P_WG, P_WU) if which == 'gu' else (P_WD, P_WO)
    a('s_cmp_ge_u32 %s, 2' % sW); a('s_cselect_b32 s12, s%d, s%d' % (p1, p0)); a('s_cselect_b32 s13, s%d, s%d' % (p1 + 1, p0 + 1))
    if which == 'gu':
        a('s_mov_b32 s14, 0x1c0000'); a('s_mov_b32 s25, 3584')
    else:
        a('s_mov_b32 s14, 0x1c0000'); a('s_cselect_b32 s14, 0x80000, s14'); a('s_mov_b32 s25, 3584'); a('s_cselect_b32 s25, 0x400, s25')
    a('s_and_b32 s13, s13, 0xffff'); a('s_mov_b32 s15, 0x20000')
    a('s_lshl_b32 s26, %s, 1' % sB); a('s_add_u32 s26, s26, %s' % sHD); a('s_mul_i32 s26, s26, s25')
    r = 49 if which == 'gu' else 211
    a('v_lshlrev_b32 v%d, 7, v1' % r); a('s_sub_u32 s25, s25, 128'); a('v_min_u32 v%d, s25, v%d' % (r, r))
    t = 'buffer_load_dword v%d, v%d, %s, s26 offen' % (221, r, SRD_T)
    if which == 'gu': g.vmi(t, 'tlb')
    else: a(t)

def prologue(g):
    a, opt = g.a, g.opt
    a.label('K_START')
    a('s_cmp_ge_u32 s2, 256'); a('s_cbranch_scc1 K_END')
    if opt.ts or opt.tsd: a('s_memrealtime s[82:83]')
    a('s_load_dwordx16 s[48:63], s[0:1], 0'); a('s_load_dwordx4 s[64:67], s[0:1], 64'); a('s_load_dwordx2 s[68:69], s[0:1], 80')
    a('s_getpc_b64 s[70:71]')
    a.label('K_PC')
    a('v_lshlrev_b32 v50, 7, v0'); a('s_mov_b32 s25, K_END-K_PC'); a('v_min_u32 v51, s25, v50')
    g.vmi('global_load_dword v221, v51, s[70:71]', 'pf')
    a('v_add_u32 v50, 0x8000, v50'); a('v_min_u32 v51, s25, v50')
    g.vmi('global_load_dword v221, v51, s[70:71]', 'pf')
    a('''
    v_and_b32 v1, 63, v0
    v_lshrrev_b32 v40, 6, v0
    s_and_b32 s20, s2, 7
    v_readfirstlane_b32 s22, v40
    s_lshr_b32 s21, s2, 3
    v_and_b32 v13, 15, v1
    v_lshrrev_b32 v25, 4, v1
    v_lshlrev_b32 v7, 4, v1
    v_lshlrev_b32 v8, 4, v0
    s_and_b32 s34, s22, 1
    s_lshr_b32 s35, s22, 1
    s_and_b32 s25, s21, 1
    s_lshl_b32 s36, s20, 1
    s_add_u32 s36, s36, s25
    s_lshr_b32 s45, s21, 1
    s_xor_b32 s45, s45, %d
    s_mul_i32 s46, s20, 7
    s_add_u32 s46, s46, s21
    s_sub_u32 s46, s46, 1
    v_lshrrev_b32 v40, 3, v1
    v_lshlrev_b32 v40, 10, v40
    v_and_b32 v41, 7, v1
    v_xor_b32 v42, v41, v25
    v_lshl_add_u32 v2, v42, 4, v40
    v_xor_b32 v42, 4, v42
    v_lshl_add_u32 v3, v42, 4, v40
    v_add_u32 v3, 7168, v3
    v_lshrrev_b32 v40, 1, v13
    v_xor_b32 v40, v40, v25
    v_lshlrev_b32 v40, 4, v40
    v_lshl_add_u32 v40, v13, 7, v40
    s_lshl_b32 s25, s35, 14
    v_add_u32 v4, s25, v40
    v_xor_b32 v5, 64, v4
    v_lshrrev_b32 v40, 2, v13
    v_lshl_add_u32 v6, v25, 3, v40
    v_and_b32 v40, 3, v13
    v_lshlrev_b32 v9, 3, v40
    ''' % opt.hpx)
    a('''
    v_lshrrev_b32 v40, 1, v25
    v_lshlrev_b32 v40, 11, v40
    v_and_b32 v41, 1, v25
    v_lshl_add_u32 v40, v41, 3, v40
    v_lshl_add_u32 v40, v13, 4, v40
    s_lshl_b32 s25, s34, 12
    s_lshl_b32 s26, s35, 10
    s_add_u32 s25, s25, s26
    s_add_u32 s25, s25, %d
    v_add_u32 v11, s25, v40
    ''' % IMG_Q)
    a('''
    s_lshl_b32 s25, s35, 3
    v_and_b32 v41, 1, v25
    v_add_u32 v41, s25, v41
    v_xor_b32 v41, v41, v13
    v_lshlrev_b32 v41, 4, v41
    v_lshl_add_u32 v41, v13, 8, v41
    v_lshrrev_b32 v40, 1, v25
    v_lshl_add_u32 v41, v40, 3, v41
    s_lshl_b32 s25, s34, 13
    s_add_u32 s25, s25, %d
    v_add_u32 v12, s25, v41
    ''' % (IMG_KV + 4096))
    a('s_waitcnt lgkmcnt(0)')
    if opt.ts: a('s_memrealtime s[88:89]')
    g.srd(4, P_X0, 2048 * 1024); g.srd(8, P_WS, WS_SIZE_DBG if opt.dbg else WS_USED); g.srd(12, P_WQKV, 512 * 3072)
    if opt.pfpos == 0:
        late_prefetch(g, 'all'); g.srd(12, P_WQKV, 512 * 3072)
    if opt.wpf:
        a('s_mul_i32 s25, %s, 48' % sB); a('s_mul_i32 s26, %s, 12' % sW); a('s_add_u32 s25, s25, s26'); a('s_lshl_b32 s25, s25, 7')
        a('v_min_u32 v53, 11, v1'); a('v_lshlrev_b32 v53, 7, v53')
        g.vmi('buffer_load_dword v221, v53, %s, s25 offen' % SRD_T, 'pf')
    a('s_lshl_b32 s25, %s, 8' % sJ); a('s_lshl_b32 s26, %s, 3' % sI); a('s_add_u32 s25, s25, s26'); a('s_lshl_b32 s26, %s, 1' % sW); a('s_add_u32 s43, s25, s26'); a('s_lshl_b32 s25, s43, 10')
    g.vmi('buffer_load_dwordx4 v[40:43], %s, %s, s25 offen' % (vL16, SRD_X0), 'st')
    g.vmi('buffer_load_dwordx4 v[44:47], %s, %s, s25 offen offset:1024' % (vL16, SRD_X0), 'st')
    g.vmi('buffer_load_dword v48, off, %s, 0 sc1' % SRD_WS, 'E')
    if opt.pfpos == 2:
        late_prefetch(g, 'all'); g.srd(12, P_WQKV, 512 * 3072)
    a('v_lshrrev_b32 v52, 2, v1'); a('s_mov_b32 s25, 3072'); a('v_mul_lo_u32 v52, v52, s25'); a('v_and_b32 v53, 3, v1')
    a('v_lshrrev_b32 v54, 5, v1'); a('v_lshlrev_b32 v54, 1, v54'); a('v_xor_b32 v53, v53, v54'); a('v_lshl_add_u32 v52, v53, 4, v52')
    if opt.rot == 1: a('s_add_u32 s29, %s, %s' % (sW, sJ)); a('s_and_b32 s29, s29, 3')
    elif opt.rot == 2: a('s_add_u32 s29, %s, %s' % (sW, sHP)); a('s_and_b32 s29, s29, 3')
    elif opt.rot == 3: a('s_add_u32 s29, %s, %s' % (sW, sJ)); a('s_add_u32 s29, s29, %s' % sHP); a('s_and_b32 s29, s29, 3')
    else: a('s_mov_b32 s29, %s' % sW)
    a('s_mul_i32 s26, s29, %d' % (4 * 32 * 3072)); a('s_lshl_b32 s27, %s, 6' % sHP); a('s_add_u32 s26, s26, s27')
    a('s_lshl_b32 s27, s29, 13'); a('s_add_u32 s27, s27, %d' % WST)
    for i in range(4):
        for m in range(3):
            for hf in range(2):
                a('s_add_u32 m0, s27, %d' % (m * 32768 + i * 2048 + hf * 1024))
                a('s_add_u32 s28, s26, %d' % ((i * 32 + hf * 16) * 3072 + m * 1024))
                g.vmi('buffer_load_dwordx4 v52, %s, s28 offen lds' % SRD_T, 'W')
    if opt.ts: a('s_memrealtime s[90:91]')
    xsrc(g, 0)
    for k in range(4): x_dma(g, 0, k)
    a('v_lshlrev_b32 v53, 21, v1'); a('v_mov_b32 v215, 0')
    g.vmi('buffer_load_dword v221, v53, %s, 0 offen' % SRD_WS, 'tlb')
    for ptr, size in ((P_WR, 1024), (P_OUT, 2048 * 1024)):
        g.srd(12, ptr, size)
        g.vmi('buffer_load_dword v221, off, %s, 0' % SRD_T, 'tlb')
    if opt.pfpos == 1: late_prefetch(g, 'all')
    if opt.pfpos == 4: late_prefetch(g, 'gu')
    g.ts(0)
    g.vmwait('E')
    if opt.tsp: a('s_memrealtime s[92:93]')
    a('v_readfirstlane_b32 s25, v48'); a('s_mul_i32 s25, s25, 0x9E3779B1'); a('s_add_u32 %s, s25, 0x7F4A7C15' % sT)
    for i in range(4): unpack2(a, 56 + 2 * i, 40 + i); unpack2(a, 64 + 2 * i, 44 + i)
    for (u, s, q) in ((56, 72, 73), (64, 74, 75)):
        a('v_add_f32 v%d, v%d, v%d' % (s, u, u + 1)); a('v_mul_f32 v%d, v%d, v%d' % (q, u, u)); a('v_fmac_f32 v%d, v%d, v%d' % (q, u + 1, u + 1))
        for i in range(2, 8):
            a('v_add_f32 v%d, v%d, v%d' % (s, s, u + i)); a('v_fmac_f32 v%d, v%d, v%d' % (q, u + i, u + i))
    allreduce(a, [72, 73, 74, 75], 76)
    a('s_mov_b32 s25, 0x3b000000'); a('s_mov_b32 s26, 0x3727c5ac')
    for (s, q, o) in ((72, 73, 80), (74, 75, 84)):
        a('v_mul_f32 v%d, s25, v%d' % (o, s)); a('v_mul_f32 v%d, s25, v%d' % (q, q)); a('v_fma_f32 v%d, -v%d, v%d, v%d' % (q, o, o, q))
        a('v_add_f32 v%d, s26, v%d' % (q, q)); a('v_rsq_f32 v%d, v%d' % (o + 1, q)); a('v_mov_b32 v%d, %s' % (o + 3, sT)); a('v_mov_b32 v%d, v%d' % (o + 2, o + 1))
    a('v_cmp_eq_u32 vcc, 1, v1')
    for i in range(3): a('v_cndmask_b32 v%d, v%d, v%d, vcc' % (80 + i, 80 + i, 84 + i))
    a('s_lshl_b32 s25, s43, 4'); a('s_add_u32 s25, s25, 0x%x' % WS_FS[0])
    a('s_mov_b64 exec, 3')
    g.vmi('buffer_store_dwordx4 v[80:83], %s, %s, s25 offen sc1' % (vL16, SRD_WS), 'st0')
    a('s_mov_b64 exec, 15')
    for r in range(84, 88): a('v_mov_b32 v%d, 0' % r)
    a('s_lshl_b32 s25, %s, 6' % sB); a('s_add_u32 s25, s25, 0x%x' % WS_Y[0])
    g.vmi('buffer_store_dwordx4 v[84:87], %s, %s, s25 offen sc1' % (vL16, SRD_WS), 'yz')
    a('s_mov_b64 exec, -1')
    a('v_lshlrev_b32 v52, 6, %s' % vTRB); a('v_add_u32 v52, v52, %s' % vTRC)
    a('v_and_b32 v53, 1, %s' % vG); a('v_xor_b32 v53, %s, v53' % sHD); a('v_lshl_add_u32 v52, v53, 5, v52'); a('v_add_u32 v52, %d, v52' % WST)
    g.vmwait('W')
    if opt.tsp: a('s_memrealtime s[94:95]')
    a('s_barrier')
    for m in range(3):
        for s in range(16):
            base = 12 * s + 4 * m
            a('ds_read_b64_tr_b16 a[%d:%d], v52 offset:%d' % (base, base + 1, s * 2048))
            a('ds_read_b64_tr_b16 a[%d:%d], v52 offset:%d' % (base + 2, base + 3, s * 2048 + 256))
        if m < 2: a('v_add_u32 v52, 32768, v52')
    for r in range(52, 56): a('v_mov_b32 v%d, 0x3f803f80' % r)
    a('v_add_u32 v56, %d, %s' % (ONES_O, vL16))
    a('ds_write_b128 v56, v[52:55]')
    a('s_waitcnt lgkmcnt(0)')
    a('s_barrier')
    g.ts(1)
    if opt.tsp:
        a('s_mov_b64 exec, 1'); a('s_lshl_b32 s77, %s, 8' % sB); a('s_add_u32 s77, s77, 0x%x' % (WS_TS + 0x10000))
        for k, r in enumerate((82, 88, 90, 92, 94)):
            a('v_mov_b32 v222, s%d' % r); a('buffer_store_dword v222, off, %s, s77 offset:%d' % (SRD_WS, 4 * k))
        a('s_mov_b64 exec, -1')


class Rec:
    def __init__(self, real): self.l = []; self.real = real
    def __call__(self, t):
        for x in t.split('\n'):
            x = x.strip()
            if x and not x.startswith(';'): self.l.append(x)
    def label(self, n): self.l.append(n + ':')
    def newlabel(self, b='L'): return self.real.newlabel(b)

def atoms(lines):
    out = []; i = 0
    while i < len(lines):
        x = lines[i]
        if (x.startswith('s_mov_b64 exec') and not x.endswith('-1')) or x.startswith('s_mov_b32 exec'):
            j = i
            while not lines[j].startswith('s_mov_b64 exec, -1'): j += 1
            out.append(lines[i:j + 1]); i = j + 1
        elif x.startswith('s_cmp'):
            j = i
            while not (lines[j].startswith('s_cbranch') or lines[j].startswith('s_cselect')): j += 1
            while j + 1 < len(lines) and lines[j + 1].startswith('s_cselect'): j += 1
            out.append(lines[i:j + 1]); i = j + 1
        else:
            out.append([x]); i += 1
    return out

def ffn_stream(g):
    real = g.a; st = []; tail = []
    def rec(fn):
        r = Rec(real); g.a = r
        try: fn()
        finally: g.a = real
        for grp in atoms(r.l):
            if len(grp) == 1 and grp[0] == 's_waitcnt lgkmcnt(0)': st.append(('lw', None))
            else: st.append(('i', grp))
    def check(regword, fallback):
        F = real.newlabel('FFB'); R = real.newlabel('FFR')
        st.append(('i', ['v_cmp_ne_u32 vcc, %s, v%d' % (sT, regword)]))
        st.append(('i', ['s_cmp_eq_u64 vcc, 0', 's_cbranch_scc0 %s' % F, R + ':']))
        tail.append((F, R, fallback))
    a = None
    check(207, lambda: (g.a('s_mov_b32 s33, 0x%x' % WS_BM[0]), poll(g, [('v214', 's33', 'g', 204)], 7)))
    rec(lambda: sel_from_bm(g, 204))
    def addr_flags():
        a = g.a
        a('s_lshr_b32 s25, %s, 8' % sSEL); a('s_lshr_b32 s26, %s, 6' % sSEL); a('s_and_b32 s26, s26, 3')
        a('s_lshl_b32 s27, s26, 13'); a('s_lshl_b32 s28, s25, 7'); a('s_add_u32 s27, s27, s28'); a('s_add_u32 s31, s27, 0x%x' % FL(FL_X))
        a('v_and_b32 v186, 15, v1'); a('v_lshrrev_b32 v187, 1, v186'); a('v_and_b32 v186, 1, v186'); a('v_lshlrev_b32 v186, 2, v186'); a('v_lshl_add_u32 v215, v187, 10, v186')
        a('s_lshl_b32 s30, %s, 4' % sSEL); a('s_add_u32 s30, s30, 0x%x' % WS_FS[1])
    rec(addr_flags)
    st.append(('vm', ('buffer_load_dword v216, v215, %s, s31 offen sc1' % SRD_WS, 'ff')))
    st.append(('vm', ('buffer_load_dwordx4 v[76:79], off, %s, s30 sc1' % SRD_WS, 'ff')))
    st.append(('gap', 11)); st.append(('vw', 'ff'))
    check(216, lambda: poll(g, [('v215', 's31', 'f', 216)], 8))
    def fs_fb():
        a = g.a; L = a.newlabel('FSP')
        a('v_mov_b32 v217, 0'); poll(g, [('v217', 's30', 'g', 76)], 16)
    check(79, fs_fb)
    def addr_row():
        a = g.a
        a('s_lshr_b32 s25, %s, 8' % sSEL); a('s_and_b32 s26, %s, 255' % sSEL); a('s_lshl_b32 s27, s25, 18'); a('s_lshl_b32 s28, s26, 7'); a('s_add_u32 s27, s27, s28'); a('s_add_u32 s27, s27, 0x%x' % WS_X[0])
        a('s_and_b32 s26, s26, 15'); a('s_lshr_b32 s26, s26, 1')
        a('v_and_b32 v186, 7, v1'); a('v_xor_b32 v186, s26, v186'); a('v_lshlrev_b32 v186, 4, v186'); a('v_lshrrev_b32 v187, 3, v1'); a('v_lshl_add_u32 v186, v187, 15, v186')
    rec(addr_row)
    st.append(('vm', ('buffer_load_dwordx4 v[72:75], v186, %s, s27 offen sc1' % SRD_WS, 'fr')))
    st.append(('gap', 11)); st.append(('vw', 'fr'))
    def norm():
        a = g.a
        for k in range(4): unpack2(a, 188 + 2 * k, 72 + k)
        a('v_mul_f32 v76, v76, v77')
        for k in range(8): a('v_fma_f32 v%d, v%d, v77, -v76' % (188 + k, 188 + k))
        for k in range(4): a('v_cvt_pk_bf16_f32 v%d, v%d, v%d' % (200 + k, 188 + 2 * k, 189 + 2 * k))
        a('s_lshl_b32 s25, %s, 10' % sW); a('s_add_u32 s25, s25, %d' % XROW)
        a('v_add_u32 v186, s25, %s' % vL16); a('ds_write_b128 v186, v[200:203]')
        a('v_lshlrev_b32 v186, 4, %s' % vG); a('v_add_u32 v186, s25, v186'); a('s_waitcnt lgkmcnt(0)')
        F = 152
        for h in range(2):
            for q in range(8): a('ds_read_b128 v[%d:%d], v186 offset:%d' % (F + 4 * q, F + 4 * q + 3, (8 * h + q) * 64))
            a('s_waitcnt lgkmcnt(0)')
            for q in range(8):
                S = 8 * h + q
                a('v_mfma_f32_16x16x32_bf16 v[188:191], a[%d:%d], v[%d:%d], %s' % (192 + 4 * S, 195 + 4 * S, F + 4 * q, F + 4 * q + 3, '0' if S == 0 else 'v[188:191]'))
        a('s_lshl_b32 s25, %s, 6' % sW); a('s_add_u32 s25, s25, %d' % HBUF)
        a('v_lshlrev_b32 v186, 4, %s' % vG); a('v_add_u32 v186, s25, v186')
        a('s_mov_b32 s28, 0x00010001'); a('s_mov_b32 s29, 0x00010001'); a('s_mov_b64 exec, s[28:29]')
        a('ds_write_b128 v186, v[188:191]')
        a('s_mov_b64 exec, -1')
        a('s_waitcnt lgkmcnt(0)'); a('s_barrier')
    rec(norm)
    rec(lambda: ffn_down(g, 0))
    return st, tail

def gemm(g):
    a, opt = g.a, g.opt
    FA, FB, ACC = 40, 72, 104
    def when_ffn1(fn):
        L = a.newlabel('FN1'); a('s_cmp_eq_u32 %s, 0' % sL); a('s_cbranch_scc1 %s' % L); if_ffn(a, L, False); fn(); a.label(L)
    g.vm = ['X0'] * 8
    for k in range(4): x_dma(g, 1, k)
    a('s_lshl_b32 s25, %s, 11' % sBLK); a('s_lshl_b32 s26, %s, 15' % sL); a('s_add_u32 s25, s25, s26'); a('s_add_u32 s43, s25, 0x%x' % WS_FS[0])
    a('v_and_b32 v212, 127, v0'); a('v_lshlrev_b32 v213, 4, v212')
    a('v_and_b32 v214, 31, v1'); a('v_lshlrev_b32 v214, 4, v214')
    a('s_mov_b32 s33, 0x%x' % WS_BM[0])
    g.vmi('buffer_load_dwordx4 v[204:207], v214, %s, s33 offen sc1' % SRD_WS, 'BM')
    g.vmwait('X0'); a('s_barrier')
    g.ts(12)
    def gd():
        a('v_lshlrev_b32 v152, 10, %s' % vTRB); a('v_add_u32 v152, v152, %s' % vTRC); a('s_lshl_b32 s25, %s, 8' % sW); a('s_add_u32 s25, s25, %d' % WOST); a('v_add_u32 v152, s25, v152')
        a('v_bfe_u32 v153, %s, 2, 2' % vTOK); a('v_and_b32 v154, 1, %s' % vG); a('v_lshl_or_b32 v153, v154, 2, v153'); a('v_lshl_add_u32 v152, v153, 5, v152')
        for t in range(8):
            a('v_xor_b32 v153, %d, v152' % (t * 32))
            a('ds_read_b64_tr_b16 v[%d:%d], v153' % (FDW + 4 * t, FDW + 4 * t + 1)); a('ds_read_b64_tr_b16 v[%d:%d], v153 offset:4096' % (FDW + 4 * t + 2, FDW + 4 * t + 3))
        a('s_waitcnt lgkmcnt(0)'); a('s_barrier')
    when_ffn1(gd)
    Lq = a.newlabel('GUS'); Lq2 = a.newlabel('GUS2')
    a('s_mov_b32 s72, 0'); if_ffn(a, Lq, False); a('s_mov_b32 s72, 2')
    a('s_cmp_lg_u32 %s, 0' % sL); a('s_cbranch_scc1 %s' % Lq)
    a('s_mov_b32 s72, 1'); gu_setup(g); a.label(Lq)
    D = 6
    def rd(n):
        c, s = n >> 4, n & 15
        b = FA + 4 * (n & 7)
        a('ds_read_b128 v[%d:%d], %s offset:%d' % (b, b + 3, vFA1 if s & 1 else vFA0, (c & 1) * 32768 + (s >> 1) * 2048))
    def mf3(n):
        c, s = n >> 4, n & 15; b = FA + 4 * (n & 7); f = 'v[%d:%d]' % (b, b + 3); q = ACC + 12 * c
        C = lambda r: '0' if s == 0 else 'v[%d:%d]' % (r, r + 3)
        a('v_mfma_f32_16x16x32_bf16 v[%d:%d], a[%d:%d], %s, %s' % (q, q + 3, 12 * s, 12 * s + 3, f, C(q)))
        a('v_mfma_f32_16x16x32_bf16 v[%d:%d], a[%d:%d], %s, %s' % (q + 4, q + 7, 12 * s + 4, 12 * s + 7, f, C(q + 4)))
        a('v_mfma_f32_16x16x32_bf16 v[%d:%d], %s, a[%d:%d], %s' % (q + 8, q + 11, f, 12 * s + 8, 12 * s + 11, C(q + 8)))
    def body(gu, ffn=False):
        g.vm = list(vm0)
        st_, tail = ffn_stream(g) if ffn else ([], [])
        W = dict(pos=0, notbefore=10, since=0)
        def weave(n, budget):
            while W['pos'] < len(st_) and budget > 0 and n >= W['notbefore']:
                kind, pay = st_[W['pos']]; W['pos'] += 1
                if kind == 'gap': W['notbefore'] = n + pay
                elif kind == 'vm': g.vmi(pay[0], pay[1]); budget -= 1
                elif kind == 'vw':
                    if pay in g.vm: g.vmwait(pay)
                elif kind == 'lw':
                    a('s_waitcnt lgkmcnt(%d)' % min(15, W['since'])); budget -= 1
                    if n < 64 and W['since'] < 2: W['notbefore'] = n
                else:
                    for x in pay:
                        if x.endswith(':'): a.label(x[:-1])
                        else: a(x)
                        if x.startswith('ds_'): W['since'] = 0
                    budget -= len(pay)
                    nxt = st_[W['pos']][0] if W['pos'] < len(st_) else None
                    if nxt == 'lw' and n < 63: W['notbefore'] = n + 2; break
        for n in range(D): rd(n)
        for n in range(64):
            c, s = n >> 4, n & 15
            m = n + D
            if m < 64:
                if m % 16 == 0:
                    st = m // 16
                    if st == 3:
                        g.vm = []; a('s_waitcnt vmcnt(%d)' % (7 if gu else 0))
                    else:
                        g.vmwait('BM' if st == 1 else 'X%d' % st)
                    a('s_barrier')
                    if st == 2: a('v_add_u32 %s, 0x10000, %s' % (vFA0, vFA0)); a('v_add_u32 %s, 0x10000, %s' % (vFA1, vFA1))
                    if st == 3:
                        a('buffer_load_dwordx4 v[208:211], v213, %s, s43 offen sc1' % SRD_WS)
                        if gu: gu_srd(g, P_WU)
                rd(m); W['since'] += 1
                a('s_waitcnt lgkmcnt(%d)' % D)
            else:
                a('s_waitcnt lgkmcnt(%d)' % (63 - n))
            mf3(n)
            if c < 2 and (s & 3) == 1: x_dma(g, c + 2, s >> 2)
            if ffn:
                if g.opt.tsf and n in (0, 2, 5, 9, 13):
                    k = (0, 2, 5, 9, 13).index(n)
                    a('s_waitcnt lgkmcnt(0)'); a('s_memrealtime s[90:91]'); a('s_waitcnt lgkmcnt(0)'); a('s_mov_b32 s%d, s90' % (92 + k))
                weave(n, g.opt.budget)
            if gu and 27 <= n <= 41 and n & 1: gu_dma(g, (n - 27) // 2, 0)
            if gu and 43 <= n <= 57 and n & 1: gu_dma(g, (n - 43) // 2, 32768)
            if n == 15 and not ffn:
                Ls = a.newlabel('CSS')
                if not gu: a('s_cmp_lg_u32 %s, 0' % sL); a('s_cbranch_scc1 %s' % Ls)
                for k in range(4): a('v_mov_b32 v%d, 0x3f803f80' % (156 + k))
                for s2 in range(16):
                    C = lambda r: ('0' if s2 == 0 else 'v[%d:%d]' % (r, r + 3))
                    a('v_mfma_f32_16x16x32_bf16 v[14:17], a[%d:%d], v[156:159], %s' % (12 * s2, 12 * s2 + 3, C(14)))
                    a('v_mfma_f32_16x16x32_bf16 v[18:21], a[%d:%d], v[156:159], %s' % (12 * s2 + 4, 12 * s2 + 7, C(18)))
                    a('v_mfma_f32_16x16x32_bf16 v[160:163], v[156:159], a[%d:%d], %s' % (12 * s2 + 8, 12 * s2 + 11, C(160)))
                a('s_nop 7'); a('v_mov_b32 v22, v160')
                a.label(Ls)
        if ffn:
            W['notbefore'] = 0
            weave(64, 10 ** 6)
            if g.opt.tsf:
                a('s_waitcnt lgkmcnt(0)'); a('s_memrealtime s[90:91]'); a('s_waitcnt lgkmcnt(0)'); a('s_mov_b32 s97, s90')
                a('s_mov_b64 exec, 1'); a('s_lshl_b32 s77, %s, 8' % sB); a('s_add_u32 s77, s77, 0x%x' % (WS_TS + 0x10000))
                for k in range(6):
                    a('v_mov_b32 v222, s%d' % (92 + k)); a('buffer_store_dword v222, off, %s, s77 offset:%d' % (SRD_WS, 4 * k))
                a('s_mov_b64 exec, -1')
            a('s_branch %s' % Lge)
            for F, R, fb in tail:
                a.label(F); fb(); a('s_branch %s' % R)
    vm0 = list(g.vm)
    Lgu = a.newlabel('GEMMGU'); Lge = a.newlabel('GEMME'); Lff = a.newlabel('GEMMFF')
    a('s_cmp_eq_u32 s72, 1'); a('s_cbranch_scc1 %s' % Lgu)
    a('s_cmp_eq_u32 s72, 2'); a('s_cbranch_scc1 %s' % Lff)
    body(False)
    a('s_branch %s' % Lge)
    a.label(Lgu)
    body(True)
    a('s_branch %s' % Lge)
    a.label(Lff)
    body(False, True)
    a.label(Lge)
    g.ts(13)
    a('v_subrev_u32 %s, 0x10000, %s' % (vFA0, vFA0)); a('v_subrev_u32 %s, 0x10000, %s' % (vFA1, vFA1))
    L1 = a.newlabel('GP1'); L2 = a.newlabel('GP2')
    a('s_cmp_lg_u32 %s, 0' % sL); a('s_cbranch_scc1 %s' % L1)
    gu_wait(g, 8)
    poll_nodrain(g, [('v213', 's43', 'g', 208)], 1, True)
    a('s_branch %s' % L2)
    a.label(L1)
    a('s_mov_b32 s33, 0x%x' % WS_BM[0])
    poll(g, [('v213', 's43', 'g', 208), ('v214', 's33', 'g', 204)], 15, pre_issued=True)
    when_ffn1(lambda: ffn_flag(g, 0))
    sel_from_bm(g, 204)
    a.label(L2)
    a('v_lshlrev_b32 v212, 3, v212'); a('v_add_u32 v212, %d, v212' % STAT); a('v_mov_b32 v209, v210')
    a('ds_write_b64 v212, v[208:209]')
    a('s_waitcnt lgkmcnt(0)'); a('s_barrier')
    g.vm = []
    g.ts(2)
    a('s_mov_b32 s25, 0x3eb8aa3b')
    a('s_lshl_b32 s26, %s, 9' % sRH); a('s_add_u32 s26, s26, %d' % STAT)
    a('v_lshl_add_u32 v152, %s, 3, s26' % vTOK); a('v_lshl_add_u32 v153, %s, 5, s26' % vG)
    for c in range(4):
        a('ds_read_b64 v[%d:%d], v152 offset:%d' % (156 + 2 * c, 157 + 2 * c, c * 128))
        a('ds_read_b128 v[%d:%d], v153 offset:%d' % (164 + 8 * c, 167 + 8 * c, c * 128))
        a('ds_read_b128 v[%d:%d], v153 offset:%d' % (168 + 8 * c, 171 + 8 * c, c * 128 + 16))
    a('v_add_u32 v210, %d, %s' % (IMG_KV - IMG_Q, vQW)); a('s_lshl_b32 s26, %s, 12' % sHD); a('v_add_u32 v210, s26, v210')
    for c in range(4):
        q = ACC + 12 * c; m = 156 + 2 * c; sg = m + 1; vs = 164 + 8 * c
        a('s_waitcnt lgkmcnt(9)')
        a('v_mul_f32 v196, s25, v%d' % sg)
        for r in range(0, 4, 2):
            a('v_pk_fma_f32 v[%d:%d], v[%d:%d], v[%d:%d], v[%d:%d] op_sel_hi:[1,0,1] neg_lo:[0,1,0] neg_hi:[0,1,0]' % (q + r, q + r + 1, CSQ + r, CSQ + r + 1, m, m + 1, q + r, q + r + 1))
            a('v_pk_fma_f32 v[%d:%d], v[%d:%d], v[%d:%d], v[%d:%d] op_sel_hi:[1,0,1] neg_lo:[0,1,0] neg_hi:[0,1,0]' % (q + 4 + r, q + 5 + r, CSK + r, CSK + r + 1, m, m + 1, q + 4 + r, q + 5 + r))
        for r in range(4): a('v_fma_f32 v%d, -v%d, v%d, v%d' % (q + 8 + r, vs + 2 * r, CSV, q + 8 + r))
        for r in range(0, 4, 2):
            a('v_pk_mul_f32 v[%d:%d], v[%d:%d], v[196:197] op_sel_hi:[1,0]' % (q + r, q + r + 1, q + r, q + r + 1))
            a('v_pk_mul_f32 v[%d:%d], v[%d:%d], v[%d:%d] op_sel:[0,1] op_sel_hi:[1,1]' % (q + 4 + r, q + 5 + r, q + 4 + r, q + 5 + r, m, m + 1))
        for r in range(4): a('v_mul_f32 v%d, v%d, v%d' % (q + 8 + r, vs + 2 * r + 1, q + 8 + r))
        d = 198 + 6 * (c & 1)
        for k in range(3):
            a('v_cvt_pk_bf16_f32 v%d, v%d, v%d' % (d + 2 * k, q + 4 * k, q + 4 * k + 1)); a('v_cvt_pk_bf16_f32 v%d, v%d, v%d' % (d + 1 + 2 * k, q + 4 * k + 2, q + 4 * k + 3))
        a('ds_write_b64 %s, v[%d:%d] offset:%d' % (vQW, d, d + 1, c * 256))
        a('ds_write_b64 v210, v[%d:%d] offset:%d' % (d + 2, d + 3, c * 256))
        a('v_xor_b32 v197, %d, %s' % (32 * c, vVW)); a('ds_write_b64 v197, v[%d:%d]' % (d + 4, d + 5))
    a('s_waitcnt lgkmcnt(0)'); a('s_barrier')
    g.ts(3)

QA, QB, K0, K1 = 40, 44, 48, 52
VB = [(56, 60), (64, 68)]
SS = [72, 88]; PP = 104; OA, OB = 112, 128; MBD, MBA = 144, 160
VA0, VA1, VKA = 176, 180, 184

def ones_of(base): return {IMG_KV: ONES_O, HALO_A: ONES_A, HALO_B: ONES_B}[base]

def seg_addr(g, base):
    a = g.a
    a('s_lshl_b32 s25, %s, 13' % sHD); a('s_add_u32 s25, s25, %d' % base)
    a('v_add_u32 v%d, s25, v204' % VKA)
    a('s_add_u32 s25, s25, 4096')
    a('v_add_u32 v206, s25, v205'); a('v_add_u32 v208, %d, v209' % ones_of(base))
    a('v_cndmask_b32 v206, v208, v206, s[32:33]'); a('v_xor_b32 v207, 32, v206')
    for t in range(4):
        a('v_xor_b32 v%d, %d, v206' % (VA0 + t, 64 * t)); a('v_xor_b32 v%d, %d, v207' % (VA1 + t, 64 * t))

def make_masks(g):
    a = g.a
    a('v_and_b32 v210, 31, v1'); a('v_lshrrev_b32 v206, 5, v1'); a('v_lshlrev_b32 v206, 2, v206'); a('v_sub_u32 v210, v210, v206')
    a('v_mov_b32 v206, 0x%x' % NEGBIG); a('v_mov_b32 v207, 0')
    for r0 in range(0, 16, 2):
        for k in range(2):
            r = r0 + k; key = (r & 3) + 8 * (r >> 2)
            a('v_cmp_le_i32 s[%d:%d], %d, v210' % (28 + 2 * k, 29 + 2 * k, key))
        for k in range(2):
            r = r0 + k
            a('v_cndmask_b32 v%d, v206, v207, s[%d:%d]' % (MBD + r, 28 + 2 * k, 29 + 2 * k)); a('v_cndmask_b32 v%d, v207, v206, s[%d:%d]' % (MBA + r, 28 + 2 * k, 29 + 2 * k))

sZD = 's47'

def key_pos(g):
    a = g.a
    a('s_and_b32 s29, %s, 127' % sSEL)
    a('s_lshr_b32 s30, s29, 4'); a('s_lshl_b32 s30, s30, 1'); a('s_lshr_b32 s28, s29, 2'); a('s_and_b32 s28, s28, 1'); a('s_add_u32 s30, s30, s28')
    a('s_lshr_b32 s31, s29, 3'); a('s_and_b32 s31, s31, 1'); a('s_lshl_b32 s31, s31, 2'); a('s_and_b32 s28, s29, 3'); a('s_add_u32 s31, s31, s28'); a('s_lshl_b32 s31, s31, 1')

def img_select(g, dst, own, b, a_):
    a = g.a
    a('s_mov_b32 %s, %d' % (dst, own)); a('s_cmp_eq_u32 %s, 1' % sZD); a('s_cselect_b32 %s, %d, %s' % (dst, b, dst)); a('s_cmp_eq_u32 %s, 2' % sZD); a('s_cselect_b32 %s, %d, %s' % (dst, a_, dst))

def write_key(g, kregs, vreg, ones_val):
    a = g.a
    key_pos(g)
    img_select(g, 's27', IMG_KV, HALO_B, HALO_A); a('s_lshl_b32 s26, %s, 13' % sHD); a('s_add_u32 s27, s27, s26')
    a('v_lshrrev_b32 v186, 1, %s' % vG); a('v_lshlrev_b32 v186, 11, v186'); a('v_and_b32 v187, 1, %s' % vG); a('v_lshl_add_u32 v186, v187, 3, v186')
    a('s_lshl_b32 s26, s29, 4'); a('s_add_u32 s26, s26, s27'); a('v_add_u32 v187, s26, v186')
    a('s_mov_b32 vcc_lo, 0x00010001'); a('s_mov_b32 vcc_hi, 0x00010001'); a('s_mov_b64 exec, vcc')
    a('ds_write_b64 v187, v[%d:%d]' % (kregs, kregs + 1))
    a('s_mov_b64 exec, 0xffff')
    a('v_xor_b32 v187, s30, %s' % vTOK); a('v_lshlrev_b32 v187, 4, v187'); a('v_lshl_add_u32 v187, %s, 8, v187' % vTOK); a('s_add_u32 s26, s27, 4096'); a('s_add_u32 s26, s26, s31'); a('v_add_u32 v187, s26, v187')
    a('ds_write_b16 v187, v%d' % vreg)
    img_select(g, 's27', ONES_O, ONES_B, ONES_A); a('s_lshl_b32 s26, s30, 4'); a('s_add_u32 s27, s27, s26'); a('s_add_u32 s27, s27, s31')
    a('v_mov_b32 v187, s27'); a('v_mov_b32 v185, 0x%x' % ones_val); a('ds_write_b16 v187, v185')
    a('s_mov_b64 exec, -1')

def z_zero(g):
    a = g.a
    L = a.newlabel('ZZ'); L2 = a.newlabel('ZZW')
    a('s_mov_b32 %s, 3' % sZD)
    a('s_cmp_eq_u32 %s, 0' % sL); a('s_cbranch_scc1 %s' % L)
    a('s_lshr_b32 s25, %s, 7' % sSEL); a('s_sub_u32 s25, %s, s25' % sBLK); a('s_cmp_gt_u32 s25, 2'); a('s_cbranch_scc1 %s' % L)
    a('s_mov_b32 %s, s25' % sZD)
    a('s_cmp_eq_u32 s25, 0'); a('s_cbranch_scc0 %s' % L)
    a('s_cmp_lg_u32 %s, 0' % sRH); a('s_cbranch_scc1 %s' % L2)
    a('v_mov_b32 v188, 0'); a('v_mov_b32 v189, 0')
    write_key(g, 188, 188, 0)
    a('s_waitcnt lgkmcnt(0)')
    a.label(L2); a('s_barrier')
    a.label(L)

sZOK = 's72'
def z_loads(g):
    a = g.a
    a('v_lshlrev_b32 v186, 5, v1')
    for rep in range(YR):
        a('s_mov_b32 s26, 0x%x' % (WS_Y[0] + rep * 2048))
        a('buffer_load_dwordx4 v[%d:%d], v186, %s, s26 offen sc1' % (188 + 8 * rep, 191 + 8 * rep, SRD_WS)); a('buffer_load_dwordx4 v[%d:%d], v186, %s, s26 offen offset:16 sc1' % (192 + 8 * rep, 195 + 8 * rep, SRD_WS))
    a('s_lshr_b32 s25, %s, 8' % sSEL); a('s_and_b32 s26, %s, 255' % sSEL); a('s_lshl_b32 s27, s25, 18'); a('s_lshl_b32 s28, s26, 7'); a('s_add_u32 s27, s27, s28'); a('s_add_u32 s27, s27, 0x%x' % WS_X[0])
    a('s_and_b32 s26, s26, 15'); a('s_lshr_b32 s26, s26, 1')
    a('v_and_b32 v186, 7, v1'); a('v_xor_b32 v186, s26, v186'); a('v_lshlrev_b32 v186, 4, v186'); a('v_lshrrev_b32 v187, 3, v1'); a('v_lshl_add_u32 v186, v187, 15, v186')
    a('buffer_load_dwordx4 v[212:215], v186, %s, s27 offen sc1' % SRD_WS)
    a('s_lshl_b32 s26, %s, 4' % sSEL); a('s_add_u32 s26, s26, 0x%x' % WS_FS[1])
    a('buffer_load_dwordx2 v[206:207], off, %s, s26 sc1' % SRD_WS)

def z_hook(g, n):
    a = g.a
    if n == 0:
        L = a.newlabel('ZH0'); a('s_mov_b32 %s, 0' % sZOK); a('s_cmp_eq_u32 %s, 3' % sZD); a('s_cbranch_scc1 %s' % L)
        a('v_min_u32 v210, 55, v1'); a('v_add_u32 v210, 8, v210'); a('v_lshlrev_b32 v210, 7, v210'); a('s_mov_b32 s27, 0x%x' % FL(FL_Y))
        a('buffer_load_dwordx4 v[212:215], v210, %s, s27 offen sc1' % SRD_WS)
        a.label(L)
    if n == 3:
        L = a.newlabel('ZH3'); a('s_cmp_eq_u32 %s, 3' % sZD); a('s_cbranch_scc1 %s' % L)
        for k in range(4): a('v_xor_b32 v%d, %s, v%d' % (212 + k, sT, 212 + k))
        a('v_or_b32 v212, v212, v213'); a('v_or3_b32 v212, v212, v214, v215'); a('v_cmp_ne_u32 vcc, 0, v212'); a('s_cmp_eq_u64 vcc, 0'); a('s_cbranch_scc0 %s' % L)
        z_loads(g); a('s_mov_b32 %s, 1' % sZOK)
        a.label(L)

def z_new(g):
    a = g.a
    assert YR == 2
    L = a.newlabel('ZN'); Lk = a.newlabel('ZNK')
    a('s_cmp_eq_u32 %s, 3' % sZD); a('s_cbranch_scc1 %s' % L)
    a('s_cmp_eq_u32 %s, 1' % sZOK); a('s_cbranch_scc1 %s' % Lk)
    a('s_mov_b32 s27, 0x%x' % FL(FL_Y)); poll_yflags(g, 's27', 10); z_loads(g)
    a.label(Lk)
    a('s_waitcnt vmcnt(0)')
    if g.opt.tsz: g.ts(0, True)
    a('v_mul_f32 v206, v206, v207'); a('v_add_f32 v207, 1.0, v207')
    for k in range(8): a('v_add_f32 v%d, v%d, v%d' % (188 + k, 188 + k, 196 + k))
    for k in range(4): unpack2(a, 196 + 2 * k, 212 + k)
    for k in range(8): a('v_fma_f32 v%d, v%d, v207, -v206' % (196 + k, 196 + k))
    for k in range(8): a('v_add_f32 v%d, v%d, v%d' % (188 + k, 188 + k, 196 + k))
    for k in range(4): a('v_cvt_pk_bf16_f32 v%d, v%d, v%d' % (200 + k, 188 + 2 * k, 189 + 2 * k))
    for k in range(4): unpack2(a, 188 + 2 * k, 200 + k)
    row_stats(g); norm_row_to_lds(g)
    F = 72
    for h in range(2):
        for s in range(8): a('ds_read_b128 v[%d:%d], v186 offset:%d' % (F + 4 * s, F + 4 * s + 3, (8 * h + s) * 64))
        for s in range(8):
            S = 8 * h + s; f = 'v[%d:%d]' % (F + 4 * s, F + 4 * s + 3); Cc = lambda r: '0' if S == 0 else 'v[%d:%d]' % (r, r + 3)
            a('s_waitcnt lgkmcnt(%d)' % (7 - s))
            a('v_mfma_f32_16x16x32_bf16 v[104:107], a[%d:%d], %s, %s' % (12 * S, 12 * S + 3, f, Cc(104)))
            a('v_mfma_f32_16x16x32_bf16 v[108:111], a[%d:%d], %s, %s' % (12 * S + 4, 12 * S + 7, f, Cc(108)))
            a('v_mfma_f32_16x16x32_bf16 v[48:51], %s, a[%d:%d], %s' % (f, 12 * S + 8, 12 * S + 11, Cc(48)))
    a('s_mov_b32 s25, 0x3eb8aa3b')
    for r in range(4): a('v_mul_f32 v%d, s25, v%d' % (104 + r, 104 + r))
    a('v_cvt_pk_bf16_f32 v52, v104, v105'); a('v_cvt_pk_bf16_f32 v53, v106, v107'); a('v_cvt_pk_bf16_f32 v54, v108, v109'); a('v_cvt_pk_bf16_f32 v55, v110, v111')
    a('v_cvt_pk_bf16_f32 v56, v48, v48'); a('v_lshlrev_b32 v57, 16, v56')
    if g.opt.tsz: g.ts(1, True)
    a('s_cmp_lg_u32 %s, 0' % sZD); a('s_cbranch_scc1 %s' % L)
    a('s_barrier')
    Lp = a.newlabel('ZNP')
    a('s_cmp_lg_u32 %s, 0' % sRH); a('s_cbranch_scc1 %s' % Lp)
    write_key(g, 54, 56, 0x3f80)
    a('s_lshl_b32 s25, %s, 6' % sHD); a('s_add_u32 s25, s25, %d' % MERGE); a('v_lshl_add_u32 v187, %s, 2, s25' % vTOK)
    a('s_mov_b64 exec, 0xffff'); a('ds_write_b32 v187, v57'); a('s_mov_b64 exec, -1')
    a('s_lshl_b32 s25, %s, 12' % sHD); a('s_lshl_b32 s26, s29, 4'); a('s_add_u32 s25, s25, s26'); a('s_add_u32 s25, s25, %d' % IMG_Q); a('v_add_u32 v187, s25, v186')
    a('s_mov_b32 vcc_lo, 0x00010001'); a('s_mov_b32 vcc_hi, 0x00010001'); a('s_mov_b64 exec, vcc')
    a('ds_write_b64 v187, v[52:53]'); a('s_mov_b64 exec, -1')
    a('s_waitcnt lgkmcnt(0)')
    a.label(Lp)
    a('s_barrier')
    key_pos(g)
    a('s_lshl_b32 s26, %s, 12' % sHD); a('s_add_u32 s26, s26, %d' % IMG_Q); a('s_lshl_b32 s27, %s, 9' % sRH)
    a('s_add_u32 s28, s26, s27'); a('v_add_u32 v186, s28, v204'); a('s_sub_u32 s28, s26, s27'); a('s_add_u32 s28, s28, %d' % (3 * 512)); a('v_add_u32 v187, s28, v204')
    a('ds_read_b128 v[%d:%d], v186' % (QA, QA + 3)); a('ds_read_b128 v[%d:%d], v187' % (QB, QB + 3))
    a('s_lshl_b32 s27, %s, 13' % sHD); a('s_add_u32 s27, s27, %d' % IMG_KV); a('s_lshl_b32 s26, s29, 4'); a('s_add_u32 s27, s27, s26')
    a('v_lshrrev_b32 v185, 5, v1'); a('v_lshlrev_b32 v186, 11, v185'); a('v_add_u32 v186, s27, v186'); a('ds_read_b128 v[52:55], v186')
    a('s_lshl_b32 s25, %s, 6' % sHD); a('s_add_u32 s25, s25, %d' % MERGE); a('v_add_u32 v186, s25, v209')
    a('ds_read_b128 v[56:59], v186'); a('ds_read_b128 v[60:63], v186 offset:32')
    a('v_and_b32 v187, 27, v1'); a('v_cmp_eq_u32 s[70:71], 0, v187')
    a('v_and_b32 v187, 31, v1'); a('v_subrev_u32 v187, s29, v187')
    a('s_lshl_b32 s26, %s, 5' % sRH); a('v_add_u32 v210, s26, v187'); a('s_sub_u32 s26, 96, s26'); a('v_add_u32 v211, s26, v187')
    a('s_mov_b32 s43, 0x100')
    a('s_waitcnt lgkmcnt(0)')
    for r in range(4): a('v_cndmask_b32 v%d, 0, v%d, s[70:71]' % (52 + r, 52 + r))
    for blk, q in ((0, QA), (1, QB)): a('v_mfma_f32_32x32x16_bf16 v[%d:%d], v[52:55], v[%d:%d], 0' % (72 + 16 * blk, 87 + 16 * blk, q, q + 3))
    a('s_lshl_b32 s25, %s, 12' % sHD); a('s_lshl_b32 s26, s29, 4'); a('s_add_u32 s25, s25, s26'); a('s_add_u32 s25, s25, %d' % IMG_Q)
    a('v_lshlrev_b32 v186, 11, v185'); a('v_add_u32 v186, s25, v186'); a('ds_read_b128 v[48:51], v186')
    for blk, o in ((0, OA), (1, OB)):
        a('v_cmp_gt_u32 vcc, s43, v%d' % (210 + blk))
        a('v_exp_f32 v186, v%d' % (72 + 16 * blk)); a('s_nop 1'); a('v_cndmask_b32 v186, 0, v186, vcc')
        for r in range(8): a('v_fmac_f32 v%d, v186, v%d' % (o + r, 56 + r))
        a('v_add_f32 v%d, v%d, v186' % (o + 8, o + 8))
    if g.opt.tsz: g.ts(14, True)
    a('s_lshr_b32 s25, s29, 5'); a('s_sub_u32 s26, 3, s25'); a('s_min_u32 s26, s26, s25'); a('s_cmp_lg_u32 s26, %s' % sRH); a('s_cbranch_scc1 %s' % L)
    a('v_and_b32 v187, 31, v1')
    a('v_lshrrev_b32 v186, 4, v187'); a('v_lshlrev_b32 v188, 5, v186'); a('v_bfe_u32 v186, v187, 2, 1'); a('v_lshl_add_u32 v188, v186, 4, v188')
    a('v_bfe_u32 v186, v187, 3, 1'); a('v_lshl_add_u32 v188, v186, 3, v188'); a('v_and_b32 v186, 3, v187'); a('v_lshl_add_u32 v188, v186, 1, v188')
    a('s_lshl_b32 s25, %s, 10' % sW); a('s_add_u32 s25, s25, %d' % (XROW + 512)); a('v_add_u32 v188, s25, v188'); a('v_add_u32 v189, s25, v209')
    a('v_sub_u32 v190, s29, v187')
    seg_addr(g, IMG_KV)
    for t in range(4): a('ds_read_b128 v[%d:%d], v%d offset:%d' % (56 + 4 * t, 59 + 4 * t, VKA, t * 512))
    a('s_waitcnt lgkmcnt(0)')
    for r in range(4): a('v_cndmask_b32 v%d, 0, v%d, s[70:71]' % (48 + r, 48 + r))
    for t in range(4):
        sb = 72 + 16 * (t & 1)
        a('v_mfma_f32_32x32x16_bf16 v[%d:%d], v[48:51], v[%d:%d], 0' % (sb, sb + 15, 56 + 4 * t, 59 + 4 * t))
        if t >= 1:
            tp = t - 1; sp = 72 + 16 * (tp & 1)
            a('v_exp_f32 v%d, v%d' % (192 + tp, sp))
    a('v_exp_f32 v195, v88')
    for t in range(4):
        a('v_subrev_u32 v191, %d, v190' % (32 * t)); a('v_cmp_gt_u32 vcc, s43, v191'); a('v_cndmask_b32 v%d, 0, v%d, vcc' % (192 + t, 192 + t)); a('v_cvt_pk_bf16_f32 v%d, v%d, v%d' % (192 + t, 192 + t, 192 + t))
    a('s_mov_b32 exec_hi, 0')
    for t in range(4): a('ds_write_b16 v188, v%d offset:%d' % (192 + t, t * 64))
    a('s_mov_b64 exec, -1')
    for t in range(4): a('ds_read_b128 v[%d:%d], v%d' % (56 + 4 * t, 59 + 4 * t, VA0 + t))
    for t in range(4): a('ds_read_b128 v[%d:%d], v%d' % (88 + 4 * t, 91 + 4 * t, VA1 + t))
    for t in range(2): a('ds_read_b128 v[%d:%d], v189 offset:%d' % (188 + 8 * t + 4, 191 + 8 * t + 4, 0)) if False else None
    a('s_waitcnt lgkmcnt(8)')
    for t in range(4): a('ds_read_b128 v[%d:%d], v189 offset:%d' % (144 + 4 * t, 147 + 4 * t, t * 64))
    a('s_waitcnt lgkmcnt(0)')
    for t in range(4): a('v_mfma_f32_32x32x16_bf16 v[72:87], v[%d:%d], v[%d:%d], %s' % (56 + 4 * t, 59 + 4 * t, 144 + 4 * t, 147 + 4 * t, '0' if t == 0 else 'v[72:87]'))
    for t in range(4): a('ds_read_b128 v[%d:%d], v189 offset:%d' % (144 + 4 * t, 147 + 4 * t, t * 64 + 32))
    a('s_waitcnt lgkmcnt(0)')
    for t in range(4): a('v_mfma_f32_32x32x16_bf16 v[72:87], v[%d:%d], v[%d:%d], v[72:87]' % (88 + 4 * t, 91 + 4 * t, 144 + 4 * t, 147 + 4 * t))
    a('s_and_b32 s26, s29, 31'); a('v_and_b32 v187, 31, v1'); a('v_cmp_eq_u32 vcc, s26, v187'); a('s_lshr_b32 s25, s29, 5')
    for blk, o in ((0, OA), (1, OB)):
        Ls = a.newlabel('ZRO')
        if blk == 0: a('s_cmp_eq_u32 s25, %s' % sRH)
        else: a('s_sub_u32 s26, 3, %s' % sRH); a('s_cmp_eq_u32 s25, s26')
        a('s_cbranch_scc0 %s' % Ls)
        for r in range(9): a('v_cndmask_b32 v%d, v%d, v%d, vcc' % (o + r, o + r, 72 + r))
        a.label(Ls)
    a.label(L)

def z_halo_patch(g):
    a = g.a
    L = a.newlabel('ZHP'); L2 = a.newlabel('ZHW')
    a('s_cmp_eq_u32 %s, 3' % sZD); a('s_cbranch_scc1 %s' % L); a('s_cmp_eq_u32 %s, 0' % sZD); a('s_cbranch_scc1 %s' % L)
    a('s_cmp_lg_u32 %s, 0' % sRH); a('s_cbranch_scc1 %s' % L2)
    write_key(g, 54, 56, 0x3f80)
    a('s_waitcnt lgkmcnt(0)')
    a.label(L2); a('s_barrier')
    a.label(L)

def steps_code(g, steps, maskreg, hook=None):
    a = g.a
    def kread(n):
        b = K0 if n % 2 == 0 else K1
        a('ds_read_b128 v[%d:%d], v%d offset:%d' % (b, b + 3, VKA, steps[n][1] * 512))
    def vread(n):
        lo, hi = VB[n % 2]; t = steps[n][1]
        a('ds_read_b128 v[%d:%d], v%d' % (lo, lo + 3, VA0 + t)); a('ds_read_b128 v[%d:%d], v%d' % (hi, hi + 3, VA1 + t))
    def smfma(n):
        blk, t, mk = steps[n]
        b = K0 if n % 2 == 0 else K1; q = QA if blk == 0 else QB; s = SS[n % 2]
        cc = 'v[%d:%d]' % (maskreg, maskreg + 15) if mk else '0'
        a('v_mfma_f32_32x32x16_bf16 v[%d:%d], v[%d:%d], v[%d:%d], %s' % (s, s + 15, b, b + 3, q, q + 3, cc))
    N = len(steps)
    kread(0); vread(0)
    if N > 1: kread(1)
    a('s_waitcnt lgkmcnt(%d)' % (3 if N > 1 else 2))
    smfma(0)
    for n in range(N):
        o = OA if steps[n][0] == 0 else OB; s = SS[n % 2]; lo, hi = VB[n % 2]
        ex = lambda r: a('v_exp_f32 v%d, v%d' % (s + r, s + r))
        cv = lambda r: a('v_cvt_pk_bf16_f32 v%d, v%d, v%d' % (PP + r, s + 2 * r, s + 2 * r + 1))
        for r in range(4): ex(r)
        a('s_waitcnt lgkmcnt(0)')
        if n + 1 < N: smfma(n + 1)
        if n + 2 < N: kread(n + 2)
        for r in range(4, 8): ex(r)
        for r in range(4): cv(r)
        ex(8); ex(9)
        a('v_mfma_f32_32x32x16_bf16 v[%d:%d], v[%d:%d], v[%d:%d], v[%d:%d]' % (o, o + 15, lo, lo + 3, PP, PP + 3, o, o + 15))
        if n + 1 < N: vread(n + 1)
        for r in range(10, 16): ex(r)
        for r in range(4, 8): cv(r)
        a('v_mfma_f32_32x32x16_bf16 v[%d:%d], v[%d:%d], v[%d:%d], v[%d:%d]' % (o, o + 15, hi, hi + 3, PP + 4, PP + 7, o, o + 15))
        if hook: hook(n)

def two_variants(g, fn):
    a = g.a; L1 = a.newlabel('VAR1'); Lj = a.newlabel('VARJ')
    a('s_cmp_eq_u32 %s, 1' % sRH); a('s_cbranch_scc1 %s' % L1)
    fn(0); a('s_branch %s' % Lj)
    a.label(L1); fn(1)
    a.label(Lj)

def attention(g):
    a, opt = g.a, g.opt
    z_zero(g)
    a('v_add_u32 v186, %d, %s' % (IMG_KV, vT16))
    for i in range(4): a('ds_read_b128 v[%d:%d], v186 offset:%d' % (188 + 4 * i, 191 + 4 * i, i * 4096))
    a('s_lshl_b32 s25, %s, 4' % sBLK); a('s_add_u32 s25, s25, %s' % sHP); a('s_lshl_b32 s25, s25, 14')
    a('s_lshl_b32 s26, %s, 22' % sL); a('s_add_u32 s25, s25, s26'); a('s_add_u32 s25, s25, 0x%x' % WS_KV[0])
    a('''
    v_and_b32 v186, 31, v1
    v_lshrrev_b32 v187, 5, v1
    v_lshlrev_b32 v204, 11, v187
    v_lshl_add_u32 v204, v186, 4, v204
    ''')
    a('s_lshl_b32 s26, %s, 12' % sHD); a('s_add_u32 s26, s26, %d' % IMG_Q); a('s_lshl_b32 s27, %s, 9' % sRH)
    a('s_add_u32 s28, s26, s27'); a('v_add_u32 v205, s28, v204'); a('s_sub_u32 s28, s26, s27'); a('s_add_u32 s28, s28, %d' % (3 * 512)); a('v_add_u32 v206, s28, v204')
    a('ds_read_b128 v[%d:%d], v205' % (QA, QA + 3)); a('ds_read_b128 v[%d:%d], v206' % (QB, QB + 3))
    a('s_waitcnt lgkmcnt(2)')
    for i in range(4):
        a('s_add_u32 s26, s25, %d' % (i * 4096))
        a('buffer_store_dwordx4 v[%d:%d], %s, %s, s26 offen sc1' % (188 + 4 * i, 191 + 4 * i, vT16, SRD_WS))
    a('v_and_b32 v186, 31, v1'); a('v_lshrrev_b32 v187, 5, v1')
    a('v_and_b32 v205, 15, v186'); a('v_xor_b32 v206, v187, v205'); a('v_lshlrev_b32 v206, 4, v206'); a('v_lshl_add_u32 v205, v205, 8, v206')
    a('v_cmp_gt_u32 s[32:33], 16, v186'); a('v_lshlrev_b32 v209, 4, v187')
    make_masks(g)
    for r in range(16): a('v_mov_b32 v%d, 0' % (OA + r)); a('v_mov_b32 v%d, 0' % (OB + r))
    seg_addr(g, IMG_KV)
    def hook(n):
        if n == 3:
            a('s_waitcnt vmcnt(0)'); flag_store(g, FL_KV)
            if opt.pfpos == 4:
                Lh = a.newlabel('PFH'); a('s_cmp_lg_u32 %s, 0' % sL); a('s_cbranch_scc1 %s' % Lh); late_prefetch(g, 'dw'); a.label(Lh)
        z_hook(g, n)
    two_variants(g, lambda p: steps_code(g, [(0, t, t == p) for t in range(p + 1)] + [(1, t, t == 3 - p) for t in range(4 - p)], MBD, hook))
    g.ts(4)
    gu_frags(g)
    z_new(g)
    Lno = a.newlabel('NOHALO'); Lb = a.newlabel('HALOB'); Lend = a.newlabel('HALOE')
    a('s_cmp_eq_u32 %s, 0' % sBLK); a('s_cbranch_scc1 %s' % Lno)
    def wg_of(dst, delta):
        a('s_sub_u32 s25, %s, %d' % (sBLK, delta)); a('s_max_i32 s25, s25, 0')
        a('s_and_b32 s26, s25, 1'); a('s_lshl_b32 s27, %s, 1' % sHP); a('s_add_u32 s26, s26, s27'); a('s_lshl_b32 s26, s26, 3'); a('s_lshr_b32 s27, s25, 1'); a('s_add_u32 %s, s26, s27' % dst)
    wg_of('s29', 1); wg_of('s30', 2)
    a('s_lshl_b32 s29, s29, 7'); a('s_lshl_b32 s30, s30, 7')
    a('v_and_b32 v206, 3, v1'); a('v_lshlrev_b32 v206, 2, v206'); a('v_and_b32 v207, 4, v1'); a('v_cmp_eq_u32 vcc, 0, v207')
    a('v_mov_b32 v207, s30'); a('v_mov_b32 v210, s29'); a('v_cndmask_b32 v207, v207, v210, vcc'); a('v_add_u32 v206, v206, v207')
    a('s_lshl_b32 s27, %s, 15' % sL); a('s_add_u32 s27, s27, 0x%x' % FL(FL_KV))
    poll_leader(g, [('v206', 's27', 'f', 216)], 2)
    a('s_lshl_b32 s27, %s, 4' % sBLK); a('s_add_u32 s27, s27, %s' % sHP); a('s_sub_u32 s27, s27, 16'); a('s_lshl_b32 s27, s27, 14')
    a('s_lshl_b32 s26, %s, 22' % sL); a('s_add_u32 s27, s27, s26'); a('s_lshl_b32 s26, %s, 12' % sW); a('s_add_u32 s27, s27, s26'); a('s_add_u32 s27, s27, 0x%x' % WS_KV[0])
    a('s_add_u32 m0, s26, %d' % HALO_B)
    for i in range(4): a('buffer_load_dwordx4 %s, %s, s27 offen offset:%d sc1 lds' % (vL16, SRD_WS, i * 1024))
    a('s_cmp_eq_u32 %s, 1' % sBLK); a('s_cbranch_scc1 %s' % Lb)
    a('s_sub_u32 s27, s27, %d' % (16 * 16384)); a('s_add_u32 m0, s26, %d' % HALO_A)
    for i in range(4): a('buffer_load_dwordx4 %s, %s, s27 offen offset:%d sc1 lds' % (vL16, SRD_WS, i * 1024))
    a.label(Lb)
    wo_stage(g)
    seg_addr(g, HALO_B)
    a('s_waitcnt vmcnt(16)'); a('s_barrier')
    z_halo_patch(g)
    steps_code(g, [(n & 1, n >> 1, False) for n in range(8)], MBA)
    a('s_cmp_eq_u32 %s, 1' % sBLK); a('s_cbranch_scc1 %s' % Lend)
    seg_addr(g, HALO_A)
    two_variants(g, lambda p: steps_code(g, [(0, t, t == p) for t in range(p, 4)] + [(1, t, t == 3 - p) for t in range(3 - p, 4)], MBA))
    a('s_branch %s' % Lend)
    a.label(Lno)
    wo_stage(g)
    a.label(Lend)
    g.ts(5)
    for blk, o in ((0, OA), (1, OB)):
        Lok = a.newlabel('SMOK')
        a('s_mov_b32 s25, 0x21800000'); a('s_mov_b32 s26, 0x5d800000')
        a('v_cmp_nle_f32 vcc, s25, v%d' % (o + 8)); a('v_cmp_nge_f32 s[28:29], s26, v%d' % (o + 8)); a('s_or_b64 vcc, vcc, s[28:29]')
        if opt.force_slow: a('s_mov_b64 vcc, 1')
        a('s_cmp_eq_u64 vcc, 0'); a('s_cbranch_scc1 %s' % Lok)
        slow_softmax(g, blk, o)
        a.label(Lok)
    a('s_lshl_b32 s25, %s, 5' % sBLK); a('s_lshl_b32 s26, %s, 1' % sHP); a('s_add_u32 s25, s25, s26'); a('s_add_u32 s25, s25, %s' % sHD); a('s_lshl_b32 s25, s25, 12')
    a('s_lshl_b32 s26, %s, 21' % sL); a('s_add_u32 s25, s25, s26'); a('s_add_u32 s25, s25, 0x%x' % WS_O[0])
    a('s_lshl_b32 s26, %s, 10' % sRH); a('s_add_u32 s27, s25, s26'); a('s_sub_u32 s28, s25, s26'); a('s_add_u32 s28, s28, %d' % (3 * 1024))
    a('v_and_b32 v186, 31, v1'); a('v_lshrrev_b32 v187, 5, v1'); a('v_lshlrev_b32 v186, 5, v186'); a('v_lshl_add_u32 v186, v187, 4, v186')
    for blk, o, so, d in ((0, OA, 's27', 188), (1, OB, 's28', 192)):
        a('v_rcp_f32 v187, v%d' % (o + 8))
        for r in range(8): a('v_mul_f32 v%d, v187, v%d' % (o + r, o + r))
        for r in range(4): a('v_cvt_pk_bf16_f32 v%d, v%d, v%d' % (d + r, o + 2 * r, o + 2 * r + 1))
        a('v_permlane32_swap_b32 v%d, v%d' % (d, d + 2)); a('v_permlane32_swap_b32 v%d, v%d' % (d + 1, d + 3))
        a('buffer_store_dwordx4 v[%d:%d], v186, %s, %s offen sc1' % (d, d + 3, SRD_WS, so))
    a('s_waitcnt vmcnt(0)')
    flag_store(g, FL_O)
    g.ts(6)

def slow_softmax(g, blk, o):
    a = g.a
    q = QA if blk == 0 else QB
    S = 72; CM = 88; P = 104; K = 48; VL = 56; VH = 60; MX = 211
    make_masks(g)
    if blk == 0: a('s_mov_b32 s28, %s' % sRH)
    else: a('s_sub_u32 s28, 3, %s' % sRH)
    a('v_mov_b32 v%d, 0x%x' % (MX, NEGBIG))
    def loop(body, tag):
        L = a.newlabel('SL' + tag); Lskip = a.newlabel('SLK'); Lown = a.newlabel('SLO'); Lb = a.newlabel('SLB'); Lgo = a.newlabel('SLG')
        Lm = a.newlabel('SLM'); Lz = a.newlabel('SLZ'); Ld = a.newlabel('SLD')
        a('s_mov_b32 s30, 0'); a.label(L)
        a('s_cmp_le_u32 s30, s28'); a('s_cbranch_scc1 %s' % Lown)
        a('s_sub_u32 s31, s30, 1')
        a('s_cmp_lt_u32 s31, 4'); a('s_cbranch_scc0 %s' % Lb)
        a('s_cmp_lt_u32 %s, 2' % sBLK); a('s_cbranch_scc1 %s' % Lskip)
        a('s_mov_b32 s29, %d' % HALO_A); a('s_mov_b32 s27, s31'); a('s_cmp_eq_u32 s31, s28'); a('s_cselect_b32 s33, 2, 0'); a('s_mov_b32 s43, %d' % ONES_A); a('s_branch %s' % Lgo)
        a.label(Lb)
        a('s_cmp_lt_u32 %s, 1' % sBLK); a('s_cbranch_scc1 %s' % Lskip)
        a('s_mov_b32 s29, %d' % HALO_B); a('s_sub_u32 s27, s31, 4'); a('s_mov_b32 s33, 0'); a('s_mov_b32 s43, %d' % ONES_B); a('s_branch %s' % Lgo)
        a.label(Lown)
        a('s_mov_b32 s29, %d' % IMG_KV); a('s_mov_b32 s27, s30'); a('s_cmp_eq_u32 s30, s28'); a('s_cselect_b32 s33, 1, 0'); a('s_mov_b32 s43, %d' % ONES_O)
        a.label(Lgo)
        a('s_lshl_b32 s25, %s, 13' % sHD); a('s_add_u32 s29, s29, s25'); a('s_lshl_b32 s25, s27, 9'); a('s_add_u32 s25, s25, s29')
        a('v_add_u32 v210, s25, v204'); a('ds_read_b128 v[%d:%d], v210' % (K, K + 3))
        a('s_cmp_eq_u32 s33, 0'); a('s_cbranch_scc1 %s' % Lz)
        a('s_cmp_eq_u32 s33, 1'); a('s_cbranch_scc0 %s' % Lm)
        for r in range(16): a('v_mov_b32 v%d, v%d' % (CM + r, MBD + r))
        a('s_branch %s' % Ld)
        a.label(Lm)
        for r in range(16): a('v_mov_b32 v%d, v%d' % (CM + r, MBA + r))
        a('s_branch %s' % Ld)
        a.label(Lz)
        for r in range(16): a('v_mov_b32 v%d, 0' % (CM + r))
        a.label(Ld)
        body()
        a.label(Lskip)
        a('s_add_u32 s30, s30, 1'); a('s_cmp_lt_u32 s30, 9'); a('s_cbranch_scc1 %s' % L)
    def p1():
        a('s_waitcnt lgkmcnt(0)')
        a('v_mfma_f32_32x32x16_bf16 v[%d:%d], v[%d:%d], v[%d:%d], v[%d:%d]' % (S, S + 15, K, K + 3, q, q + 3, CM, CM + 15))
        a('s_nop 15')
        for r in range(0, 16, 2): a('v_max3_f32 v%d, v%d, v%d, v%d' % (MX, MX, S + r, S + r + 1))
    loop(p1, 'A')
    a('v_mov_b32 v210, v%d' % MX); a('s_nop 1'); a('v_permlane32_swap_b32 v%d, v210' % MX); a('v_max_f32 v%d, v%d, v210' % (MX, MX))
    for r in range(16): a('v_mov_b32 v%d, 0' % (o + r))
    def p2():
        for r in range(16): a('v_sub_f32 v%d, v%d, v%d' % (CM + r, CM + r, MX))
        a('s_add_u32 s29, s29, 4096'); a('s_lshl_b32 s25, s27, 6')
        a('v_add_u32 v210, s29, v205'); a('v_add_u32 v208, s43, v209')
        a('v_cndmask_b32 v210, v208, v210, s[70:71]'); a('v_xor_b32 v212, 32, v210')
        a('v_xor_b32 v210, s25, v210'); a('v_xor_b32 v212, s25, v212')
        a('ds_read_b128 v[%d:%d], v210' % (VL, VL + 3)); a('ds_read_b128 v[%d:%d], v212' % (VH, VH + 3))
        a('s_waitcnt lgkmcnt(0)')
        a('v_mfma_f32_32x32x16_bf16 v[%d:%d], v[%d:%d], v[%d:%d], v[%d:%d]' % (S, S + 15, K, K + 3, q, q + 3, CM, CM + 15))
        a('s_nop 15')
        for r in range(16): a('v_exp_f32 v%d, v%d' % (S + r, S + r))
        a('s_nop 0')
        for r in range(8): a('v_cvt_pk_bf16_f32 v%d, v%d, v%d' % (P + r, S + 2 * r, S + 2 * r + 1))
        a('s_nop 1')
        a('v_mfma_f32_32x32x16_bf16 v[%d:%d], v[%d:%d], v[%d:%d], v[%d:%d]' % (o, o + 15, VL, VL + 3, P, P + 3, o, o + 15))
        a('v_mfma_f32_32x32x16_bf16 v[%d:%d], v[%d:%d], v[%d:%d], v[%d:%d]' % (o, o + 15, VH, VH + 3, P + 4, P + 7, o, o + 15))
    a('v_and_b32 v210, 31, v1'); a('v_cmp_gt_u32 s[70:71], 16, v210')
    loop(p2, 'B')
    a('s_nop 15')

def wo_stage(g):
    a = g.a
    g.srd(12, P_WO, 512 * 1024)
    a('v_lshrrev_b32 v210, 3, v1'); a('v_lshlrev_b32 v210, 10, v210'); a('v_and_b32 v211, 7, v1')
    a('v_bfe_u32 v212, v1, 4, 1'); a('v_lshlrev_b32 v212, 1, v212'); a('v_xor_b32 v211, v211, v212'); a('v_lshl_add_u32 v210, v211, 4, v210')
    a('v_xor_b32 v211, 64, v210')
    a('s_and_b32 s25, %s, 7' % sI); a('s_lshl_b32 s25, s25, 7'); a('s_lshl_b32 s26, %s, 17' % sW); a('s_add_u32 s25, s25, s26')
    a('s_lshl_b32 s27, %s, 14' % sW); a('s_add_u32 s27, s27, %d' % WOST)
    for n in range(16):
        a('s_add_u32 m0, s27, %d' % (n * 1024)); a('s_add_u32 s26, s25, %d' % (n * 8192))
        a('buffer_load_dwordx4 v%d, %s, s26 offen lds' % (210 + (n & 1), SRD_T))

def gu_srd(g, ptr):
    g.srd(12, ptr, 512 * 3584)

def gu_setup(g):
    a = g.a
    gu_srd(g, P_WG)
    a('v_lshrrev_b32 v76, 2, v1'); a('s_mov_b32 s28, 3584'); a('v_mul_lo_u32 v76, v76, s28'); a('v_and_b32 v77, 3, v1')
    a('v_lshrrev_b32 v78, 5, v1'); a('v_lshlrev_b32 v78, 1, v78'); a('v_xor_b32 v77, v77, v78'); a('v_lshl_add_u32 v76, v77, 4, v76')
    a('s_lshl_b32 s30, %s, 6' % sFS); a('s_mul_i32 s29, %s, %d' % (sW, 128 * 3584)); a('s_add_u32 s30, s30, s29')
    a('s_lshl_b32 s31, %s, 13' % sW)

def gu_wait(g, n):
    a = g.a
    L0 = a.newlabel('GW0'); L2 = a.newlabel('GW2')
    a('s_cmp_lg_u32 s72, 1'); a('s_cbranch_scc1 %s' % L0)
    a('s_waitcnt vmcnt(%d)' % n); a('s_branch %s' % L2)
    a.label(L0); a('s_waitcnt vmcnt(0)')
    a.label(L2)

def gu_dma(g, n, base):
    a = g.a
    a('s_add_u32 m0, s31, %d' % (base + n * 1024)); a('s_add_u32 s29, s30, %d' % (n * 16 * 3584))
    a('buffer_load_dwordx4 v76, %s, s29 offen lds' % SRD_T)

def gu_frags(g):
    a = g.a
    L = a.newlabel('NOGF'); if_ffn(a, L, True)
    a('s_waitcnt vmcnt(0)'); a('s_barrier')
    a('v_lshlrev_b32 v210, 6, %s' % vTRB); a('v_add_u32 v210, v210, %s' % vTRC)
    a('v_and_b32 v211, 1, %s' % vG); a('v_xor_b32 v211, %s, v211' % sHD); a('v_lshl_add_u32 v210, v211, 5, v210')
    a('s_lshl_b32 s25, %s, 15' % sRH); a('v_add_u32 v210, s25, v210')
    for s in range(16):
        a('ds_read_b64_tr_b16 a[%d:%d], v210 offset:%d' % (192 + 4 * s, 193 + 4 * s, s * 2048)); a('ds_read_b64_tr_b16 a[%d:%d], v210 offset:%d' % (194 + 4 * s, 195 + 4 * s, s * 2048 + 256))
    a('s_waitcnt lgkmcnt(0)'); a('s_barrier')
    a.label(L)

def down_stage(g):
    a = g.a
    L = a.newlabel('NODW'); if_ffn(a, L, True)
    g.srd(12, P_WD, 1792 * 1024)
    a('s_lshl_b32 s25, %s, 15' % sFS); a('s_lshl_b32 s26, %s, 14' % sW); a('s_add_u32 s25, s25, s26'); a('s_add_u32 s27, s26, %d' % WOST)
    for n in range(16):
        f = (n & 3) | (((n >> 3) & 1) << 2)
        a('s_add_u32 m0, s27, %d' % (n * 1024)); a('s_add_u32 s26, s25, %d' % (n * 1024))
        a('v_xor_b32 v210, %d, %s' % (f * 32, vL16))
        a('buffer_load_dwordx4 v210, %s, s26 offen lds' % SRD_T)
    a.label(L)

def poll_yflags(g, soff, code):
    a = g.a
    a('v_min_u32 v206, 55, v1'); a('v_add_u32 v206, 8, v206'); a('v_lshlrev_b32 v206, 7, v206')
    poll(g, [('v206', soff, 'f4', 212)], code)

def own_check(g, L):
    a = g.a
    a('s_lshr_b32 s25, %s, 8' % sSEL); a('s_cmp_lg_u32 s25, %s' % sJ); a('s_cbranch_scc1 %s' % L)
    a('s_lshr_b32 s25, %s, 6' % sSEL); a('s_and_b32 s25, s25, 3'); a('s_lshr_b32 s26, %s, 3' % sI); a('s_cmp_lg_u32 s25, s26'); a('s_cbranch_scc1 %s' % L)

def y_fetch(g, ylayer, code, L):
    a = g.a
    own_check(g, L)
    if ylayer == 0:
        a('s_mov_b32 s27, 0x%x' % FL(FL_Y + ylayer))
        poll_yflags(g, 's27', code)
        a('s_and_b32 s25, %s, 7' % sI); a('s_lshl_b32 s25, s25, 8'); a('s_lshl_b32 s26, %s, 6' % sW); a('s_add_u32 s25, s25, s26'); a('s_add_u32 s25, s25, 0x%x' % WS_Y[ylayer])
        a('v_lshlrev_b32 v186, 4, %s' % vG)
        for rep in range(YR):
            a('s_add_u32 s26, s25, %d' % (rep * 2048)); a('buffer_load_dwordx4 v[%d:%d], v186, %s, s26 offen sc1' % (196 + 4 * rep, 199 + 4 * rep, SRD_WS))
        a('s_waitcnt vmcnt(0)')
        for rep in range(1, YR):
            for r in range(4): a('v_add_f32 v%d, v%d, v%d' % (196 + r, 196 + r, 196 + 4 * rep + r))
    else:
        Lp = a.newlabel('YTP'); Ld = a.newlabel('YTD')
        a('v_lshlrev_b32 v186, 3, v1'); a('s_lshl_b32 s25, %s, 12' % sW); a('v_add_u32 v186, s25, v186')
        a('s_and_b32 s25, %s, 7' % sI); a('s_lshl_b32 s25, s25, 9'); a('s_add_u32 s25, s25, 0x%x' % WS_YT)
        a('s_mov_b32 s76, 0'); a.label(Lp)
        for i in range(14):
            a('s_add_u32 s26, s25, %d' % (i * 16384)); a('buffer_load_dwordx2 v[%d:%d], v186, %s, s26 offen sc1' % (40 + 2 * i, 41 + 2 * i, SRD_WS))
        a('s_waitcnt vmcnt(0)')
        a('v_xor_b32 v219, %s, v41' % sT)
        for i in range(1, 14): a('v_xor_b32 v218, %s, v%d' % (sT, 41 + 2 * i)); a('v_or_b32 v219, v219, v218')
        a('v_cmp_ne_u32 vcc, 0, v219'); a('s_cmp_eq_u64 vcc, 0'); a('s_cbranch_scc1 %s' % Ld)
        a('s_add_u32 s76, s76, 1'); a('s_cmp_lt_u32 s76, 0x40000'); a('s_cbranch_scc1 %s' % Lp)
        timeout(g, code)
        a.label(Ld)
        for i in range(1, 14): a('v_add_f32 v40, v40, v%d' % (40 + 2 * i))
        a('s_lshl_b32 s25, %s, 8' % sW); a('s_add_u32 s25, s25, %d' % XROW); a('v_lshlrev_b32 v186, 2, v1'); a('v_add_u32 v186, s25, v186')
        a('ds_write_b32 v186, v40'); a('s_waitcnt lgkmcnt(0)'); a('s_barrier')
        a('s_lshl_b32 s25, %s, 6' % sW); a('s_add_u32 s25, s25, %d' % XROW); a('v_lshlrev_b32 v186, 4, %s' % vG); a('v_add_u32 v186, s25, v186')
        for k in range(4): a('ds_read_b128 v[%d:%d], v186 offset:%d' % (196 + 4 * k, 199 + 4 * k, k * 256))
        a('s_waitcnt lgkmcnt(0)')
        for k in range(1, 4):
            for r in range(4): a('v_add_f32 v%d, v%d, v%d' % (196 + r, 196 + r, 196 + 4 * k + r))

def blayer(g, dst, ylayer, code):
    a = g.a
    a('v_lshlrev_b32 v186, 4, %s' % vTOK); a('v_add_u32 v186, %d, v186' % LT)
    for tt in range(4): a('ds_read_b64 v[%d:%d], v186 offset:%d' % (188 + 2 * tt, 189 + 2 * tt, tt * 256))
    for tt in range(4):
        for k in range(2): unpack2(a, dst + 4 * tt + 2 * k, XT + 2 * tt + k)
    a('s_waitcnt lgkmcnt(0)')
    for tt in range(4):
        m, s = 188 + 2 * tt, 189 + 2 * tt
        a('v_mul_f32 v%d, v%d, v%d' % (m, m, s)); a('v_add_f32 v%d, 1.0, v%d' % (s, s))
        for r in range(4): a('v_fma_f32 v%d, v%d, v%d, -v%d' % (dst + 4 * tt + r, dst + 4 * tt + r, s, m))
    L = a.newlabel('NOY')
    if ylayer == 0:
        own_check(g, L)
        a('v_mov_b32 v196, v38'); a('v_mov_b32 v197, v39'); a('v_mov_b32 v198, v23'); a('v_mov_b32 v199, v24')
    else:
        y_fetch(g, 1, code, L)
    a('s_and_b32 s25, %s, 63' % sSEL)
    for tt in range(4):
        a('v_add_u32 v186, %d, %s' % (16 * tt, vTOK)); a('v_cmp_eq_u32 vcc, s25, v186'); a('v_cndmask_b32 v187, 0, 1.0, vcc')
        for r in range(4): a('v_fmac_f32 v%d, v187, v%d' % (dst + 4 * tt + r, 196 + r))
    a.label(L)

def tile_image_write(g, src):
    a = g.a
    a('v_lshrrev_b32 v186, 1, %s' % vG); a('s_lshl_b32 s25, %s, 1' % sW); a('v_add_u32 v186, s25, v186')
    a('v_lshrrev_b32 v187, 1, %s' % vTOK); a('v_xor_b32 v186, v186, v187'); a('v_lshlrev_b32 v186, 4, v186')
    a('v_lshl_add_u32 v186, %s, 7, v186' % vTOK); a('v_and_b32 v187, 1, %s' % vG); a('v_lshl_add_u32 v186, v187, 3, v186'); a('v_add_u32 v186, %d, v186' % IMG_Q)
    for tt in range(4): a('ds_write_b64 v186, v[%d:%d] offset:%d' % (src + 2 * tt, src + 2 * tt + 1, tt * 2048))

def outproj(g):
    a, opt = g.a, g.opt
    WO, FR, ACC = 40, 104, 136
    a('s_barrier')
    a('v_lshlrev_b32 v205, 7, %s' % vTRB); a('v_add_u32 v205, v205, %s' % vTRC)
    a('v_bfe_u32 v206, %s, 3, 1' % vTOK); a('v_and_b32 v207, 1, %s' % vG); a('v_lshl_or_b32 v206, v207, 1, v206'); a('v_xor_b32 v206, %s, v206' % sW)
    a('v_lshl_add_u32 v205, v206, 5, v205'); a('v_add_u32 v205, %d, v205' % WOST)
    for s in range(16):
        a('ds_read_b64_tr_b16 v[%d:%d], v205 offset:%d' % (WO + 4 * s, WO + 4 * s + 1, s * 4096)); a('ds_read_b64_tr_b16 v[%d:%d], v205 offset:%d' % (WO + 4 * s + 2, WO + 4 * s + 3, s * 4096 + 512))
    L0 = a.newlabel('OPL0')
    a('s_cmp_lg_u32 %s, 0' % sL); a('s_cbranch_scc1 %s' % L0)
    a('s_lshl_b32 s25, %s, 8' % sJ); a('s_lshr_b32 s26, %s, 3' % sI); a('s_lshl_b32 s26, s26, 6'); a('s_add_u32 s25, s25, s26'); a('s_lshl_b32 s25, s25, 10')
    a('s_and_b32 s26, %s, 7' % sI); a('s_lshl_b32 s26, s26, 7'); a('s_lshl_b32 s27, %s, 5' % sW); a('s_add_u32 s26, s26, s27'); a('s_add_u32 s25, s25, s26')
    a('v_lshlrev_b32 v186, 3, %s' % vG); a('v_lshl_add_u32 v187, %s, 10, v186' % vTOK)
    for tt in range(4):
        a('s_add_u32 s27, s25, %d' % (tt * 16384)); a('buffer_load_dwordx2 v[%d:%d], v187, %s, s27 offen' % (XT + 2 * tt, XT + 2 * tt + 1, SRD_X0))
    g.srd(12, P_WR, 1024)
    a('buffer_load_dwordx2 v[188:189], v186, %s, s26 offen' % SRD_T); a('buffer_load_dwordx4 v[192:195], %s, %s, 0 offen' % (vL16, SRD_T))
    a('s_waitcnt vmcnt(0)')
    for k in range(2): unpack2(a, WRS + 2 * k, 188 + k)
    for k in range(4): unpack2(a, 196 + 2 * k, 192 + k)
    for k in range(1, 8): a('v_add_f32 v196, v196, v%d' % (196 + k))
    allreduce(a, [196], 197)
    a('v_readfirstlane_b32 %s, v196' % sSW)
    a.label(L0)
    a('s_waitcnt lgkmcnt(0)'); a('s_barrier')
    Ly = a.newlabel('OPY')
    a('s_cmp_eq_u32 %s, 0' % sL); a('s_cbranch_scc1 %s' % Ly)
    y_fetch(g, 0, 4, Ly)
    a('v_mov_b32 v38, v196'); a('v_mov_b32 v39, v197'); a('v_mov_b32 v23, v198'); a('v_mov_b32 v24, v199')
    a.label(Ly)
    a('s_lshr_b32 s25, %s, 3' % sI)
    a('s_lshr_b32 s26, s25, 1'); a('s_lshl_b32 s26, s26, 10'); a('s_lshl_b32 s27, %s, 7' % sJ); a('s_add_u32 s27, s27, s26')
    a('s_lshl_b32 s26, %s, 15' % sL); a('s_add_u32 s27, s27, s26'); a('s_add_u32 s27, s27, 0x%x' % FL(FL_O))
    a('v_and_b32 v186, 3, v1'); a('v_lshlrev_b32 v186, 2, v186'); a('v_lshrrev_b32 v187, 2, v1'); a('v_lshl_add_u32 v186, v187, 11, v186')
    poll_leader(g, [('v186', 's27', 'f', 216)], 3)
    g.ts(7)
    a('s_lshl_b32 s26, %s, 1' % sJ); a('s_lshr_b32 s27, s25, 1'); a('s_add_u32 s26, s26, s27'); a('s_lshl_b32 s26, s26, 17')
    a('s_lshl_b32 s27, %s, 21' % sL); a('s_add_u32 s26, s26, s27'); a('s_and_b32 s27, s25, 1'); a('s_lshl_b32 s27, s27, 11'); a('s_add_u32 s26, s26, s27')
    a('s_lshl_b32 s28, %s, 12' % sRH); a('s_add_u32 s26, s26, s28'); a('s_lshl_b32 s28, %s, 10' % sHD); a('s_add_u32 s26, s26, s28'); a('s_add_u32 s26, s26, 0x%x' % WS_O[0])
    a('s_lshl_b32 s27, %s, 11' % sRH); a('s_add_u32 s27, s27, s28')
    for n in range(16):
        a('s_add_u32 m0, s27, %d' % (OST + n * 4096)); a('s_add_u32 s28, s26, %d' % (n * 8192))
        a('buffer_load_dwordx4 %s, %s, s28 offen sc1 lds' % (vL16, SRD_WS))
    a('v_lshrrev_b32 v186, 1, %s' % vG); a('v_lshlrev_b32 v186, 11, v186'); a('v_lshl_add_u32 v186, %s, 5, v186' % vTOK)
    a('v_and_b32 v187, 1, %s' % vG); a('v_lshl_add_u32 v186, v187, 4, v186')
    if OST: a('v_add_u32 v186, %d, v186' % OST)
    DO = 6
    def ord_(n):
        s, tt = n >> 2, n & 3; b = FR + 4 * (n & 7)
        a('ds_read_b128 v[%d:%d], v186 offset:%d' % (b, b + 3, s * 4096 + tt * 512))
    def omf(n):
        s, tt = n >> 2, n & 3; b = FR + 4 * (n & 7); o = ACC + 4 * tt
        a('v_mfma_f32_16x16x32_bf16 v[%d:%d], v[%d:%d], v[%d:%d], %s' % (o, o + 3, WO + 4 * s, WO + 4 * s + 3, b, b + 3, '0' if s == 0 else 'v[%d:%d]' % (o, o + 3)))
    a('s_waitcnt vmcnt(12)'); a('s_barrier')
    for n in range(DO): ord_(n)
    for n in range(64):
        m = n + DO
        if m < 64:
            if m % 16 == 0: a('s_waitcnt vmcnt(%d)' % (12 - 4 * (m // 16))); a('s_barrier')
            ord_(m); a('s_waitcnt lgkmcnt(%d)' % DO)
        else:
            a('s_waitcnt lgkmcnt(%d)' % (63 - n))
        omf(n)
    g.ts(8)
    BASE = 152
    Lb1 = a.newlabel('OPB1'); Lb2 = a.newlabel('OPB2')
    a('s_cmp_lg_u32 %s, 0' % sL); a('s_cbranch_scc1 %s' % Lb1)
    for tt in range(4):
        for k in range(2): unpack2(a, BASE + 4 * tt + 2 * k, XT + 2 * tt + k)
    a('s_branch %s' % Lb2)
    a.label(Lb1); blayer(g, BASE, 0, 4); a.label(Lb2)
    for i in range(16): a('v_add_f32 v%d, v%d, v%d' % (BASE + i, BASE + i, ACC + i))
    for tt in range(4):
        for k in range(2): a('v_cvt_pk_bf16_f32 v%d, v%d, v%d' % (XT + 2 * tt + k, BASE + 4 * tt + 2 * k, BASE + 4 * tt + 2 * k + 1))
    tile_image_write(g, XT)
    for tt in range(4):
        for k in range(2): unpack2(a, BASE + 4 * tt + 2 * k, XT + 2 * tt + k)
    for tt in range(4):
        x = BASE + 4 * tt
        a('v_add_f32 v%d, v%d, v%d' % (168 + tt, x, x + 1)); a('v_mul_f32 v%d, v%d, v%d' % (172 + tt, x, x)); a('v_mul_f32 v%d, v%d, v%d' % (176 + tt, x, WRS))
        a('v_add_f32 v%d, v%d, v%d' % (168 + tt, 168 + tt, x + 2)); a('v_fmac_f32 v%d, v%d, v%d' % (172 + tt, x + 1, x + 1)); a('v_fmac_f32 v%d, v%d, v%d' % (176 + tt, x + 1, WRS + 1))
        a('v_add_f32 v%d, v%d, v%d' % (168 + tt, 168 + tt, x + 3)); a('v_fmac_f32 v%d, v%d, v%d' % (172 + tt, x + 2, x + 2)); a('v_fmac_f32 v%d, v%d, v%d' % (176 + tt, x + 2, WRS + 2))
        a('v_fmac_f32 v%d, v%d, v%d' % (172 + tt, x + 3, x + 3)); a('v_fmac_f32 v%d, v%d, v%d' % (176 + tt, x + 3, WRS + 3))
    qs = (168, 172, 176)
    for q in qs: a('v_permlane32_swap_b32 v%d, v%d' % (q, q + 2)); a('v_permlane32_swap_b32 v%d, v%d' % (q + 1, q + 3))
    for q in qs: a('v_add_f32 v%d, v%d, v%d' % (q, q, q + 2)); a('v_add_f32 v%d, v%d, v%d' % (q + 1, q + 1, q + 3))
    for q in qs: a('v_permlane16_swap_b32 v%d, v%d' % (q, q + 1))
    for k, q in enumerate(qs): a('v_add_f32 v%d, v%d, v%d' % (180 + k, q, q + 1))
    a('v_mov_b32 v183, %s' % sT)
    a('s_lshl_b32 s25, %s, 10' % sW); a('s_add_u32 s25, s25, %d' % PART); a('v_add_u32 v186, s25, %s' % vL16); a('ds_write_b128 v186, v[180:183]')
    a('s_waitcnt lgkmcnt(0)'); a('s_barrier')
    Lw23 = a.newlabel('OPW23'); Lpubend = a.newlabel('OPPE')
    a('s_cmp_ge_u32 %s, 2' % sW); a('s_cbranch_scc1 %s' % Lw23)
    a('v_add_u32 v186, %d, %s' % (IMG_Q, vT16))
    for i in range(4): a('ds_read_b128 v[%d:%d], v186 offset:%d' % (152 + 4 * i, 155 + 4 * i, i * 2048))
    a('s_lshl_b32 s25, %s, 3' % sJ); a('s_and_b32 s26, %s, 7' % sI); a('s_add_u32 s25, s25, s26'); a('s_lshl_b32 s25, s25, 15')
    a('s_lshr_b32 s27, %s, 3' % sI); a('s_lshl_b32 s27, s27, 13'); a('s_add_u32 s25, s25, s27')
    a('s_lshl_b32 s27, %s, 21' % sL); a('s_add_u32 s25, s25, s27'); a('s_add_u32 s25, s25, 0x%x' % WS_X[0])
    a('s_lshl_b32 s27, %s, 9' % sW); a('s_add_u32 s27, s27, %d' % PART); a('v_add_u32 v187, s27, %s' % vL16)
    for k in range(4): a('ds_read_b128 v[%d:%d], v187 offset:%d' % (196 + 4 * k, 199 + 4 * k, k * 1024))
    a('s_lshl_b32 s29, %s, 8' % sJ); a('s_lshr_b32 s27, %s, 3' % sI); a('s_lshl_b32 s27, s27, 6'); a('s_add_u32 s29, s29, s27'); a('s_lshl_b32 s29, s29, 7')
    a('s_lshl_b32 s27, %s, 18' % sL); a('s_add_u32 s29, s29, s27'); a('s_add_u32 s29, s29, 0x%x' % WS_P[0])
    a('s_lshl_b32 s27, s26, 4'); a('s_add_u32 s30, s29, s27'); a('s_lshl_b32 s27, %s, 12' % sW); a('s_add_u32 s30, s30, s27')
    a('s_waitcnt lgkmcnt(0)')
    for k in range(1, 4):
        for r in range(3): a('v_add_f32 v%d, v%d, v%d' % (196 + r, 196 + r, 196 + 4 * k + r))
    a('v_lshlrev_b32 v187, 7, v1')
    a('s_mov_b32 exec_hi, 0')
    a('buffer_store_dwordx4 v[196:199], v187, %s, s30 offen sc1' % SRD_WS)
    a('s_mov_b64 exec, -1')
    for i in range(4):
        a('s_add_u32 s28, s25, %d' % (i * 2048)); a('buffer_store_dwordx4 v[%d:%d], %s, %s, s28 offen sc1' % (152 + 4 * i, 155 + 4 * i, vT16, SRD_WS))
    a('s_waitcnt vmcnt(0)')
    flag_store(g, FL_X)
    g.ts(9)
    a('s_mov_b32 s33, s29'); down_stage(g); a('s_mov_b32 s29, s33')
    for i in range(1, 4): a('s_add_u32 s%d, s29, %d' % (29 + i, i * 2048))
    poll(g, [(vT16, 's29', 'g', 188), (vT16, 's30', 'g', 192), (vT16, 's31', 'g', 196), (vT16, 's32', 'g', 200)], 5)
    bs = (188, 192, 196, 200)
    regs = [b + k for b in bs for k in range(3)]
    for pat in ('quad_perm:[1,0,3,2]', 'quad_perm:[2,3,0,1]', 'row_half_mirror'):
        for r in regs: a('v_add_f32_dpp v%d, v%d, v%d %s row_mask:0xf bank_mask:0xf' % (r, r, r, pat))
    a('s_mov_b32 s25, 0x3b000000'); a('s_mov_b32 s26, 0x3727c5ac')
    bt = [(b, 152 + 4 * i) for i, b in enumerate(bs)]
    for b, t in bt: a('v_mul_f32 v%d, s25, v%d' % (b, b)); a('v_mul_f32 v%d, s25, v%d' % (b + 1, b + 1))
    for b, t in bt: a('v_fma_f32 v%d, -v%d, v%d, v%d' % (b + 1, b, b, b + 1)); a('v_fma_f32 v%d, -v%d, %s, v%d' % (b + 3, b, sSW, b + 2))
    for b, t in bt: a('v_add_f32 v%d, s26, v%d' % (t, b + 1))
    for b, t in bt: a('v_rsq_f32 v%d, v%d' % (t + 1, t))
    for b, t in bt: a('v_add_f32 v%d, 1.0, v%d' % (t + 2, t + 1))
    for b, t in bt: a('v_mul_f32 v%d, v%d, v%d' % (b + 3, t + 1, b + 3)); a('v_mul_f32 v%d, v%d, v%d' % (t + 3, t + 2, t + 2))
    for b, t in bt: a('v_fma_f32 v%d, v%d, v%d, s26' % (t + 3, t + 3, b + 1))
    for b, t in bt: a('v_rsq_f32 v%d, v%d' % (t + 3, t + 3))
    for b, t in bt: a('v_mov_b32 v%d, v%d' % (b + 1, t + 1))
    for b, t in bt: a('v_mul_f32 v%d, v%d, v%d' % (b + 2, t + 2, t + 3))
    a('v_lshrrev_b32 v186, 3, v0'); a('v_lshlrev_b32 v186, 4, v186'); a('v_add_u32 v186, %d, v186' % LT)
    a('s_mov_b32 s28, 0x01010101'); a('s_mov_b32 s29, 0x01010101'); a('s_mov_b64 exec, s[28:29]')
    for i, b in enumerate(bs): a('ds_write_b128 v186, v[%d:%d] offset:%d' % (b, b + 3, i * 256))
    a('s_mov_b64 exec, -1')
    a('s_waitcnt lgkmcnt(0)')
    a('s_branch %s' % Lpubend)
    a.label(Lw23)
    a.label(Lpubend)
    if g.opt.bar23: a('s_barrier')
    Lp = a.newlabel('OPFS')
    a('s_and_b32 s25, %s, 7' % sI); a('s_cmp_lg_u32 s25, 0'); a('s_cbranch_scc1 %s' % Lp)
    a('s_barrier')
    a('s_cmp_lg_u32 %s, 0' % sW); a('s_cbranch_scc1 %s' % Lp)
    a('v_add_u32 v186, %d, %s' % (LT, vL16)); a('ds_read_b128 v[188:191], v186'); a('s_waitcnt lgkmcnt(0)')
    a('v_mov_b32 v192, v191'); a('v_mov_b32 v193, v191'); a('v_mov_b32 v191, %s' % sT)
    a('s_lshl_b32 s29, %s, 8' % sJ); a('s_lshr_b32 s27, %s, 3' % sI); a('s_lshl_b32 s27, s27, 6'); a('s_add_u32 s29, s29, s27')
    allreduce(a, [192], 194, op='v_max_f32')
    a('v_cmp_eq_f32 vcc, v192, v193'); a('s_ff1_i32_b64 s28, vcc'); a('s_add_u32 s28, s28, s29')
    a('v_mov_b32 v193, s28'); a('v_mov_b32 v194, %s' % sT); a('v_mov_b32 v195, %s' % sT)
    a('s_lshl_b32 s28, %s, 2' % sJ); a('s_lshr_b32 s27, %s, 3' % sI); a('s_add_u32 s28, s28, s27'); a('s_lshl_b32 s28, s28, 4')
    a('s_lshl_b32 s27, %s, 12' % sL); a('s_add_u32 s28, s28, s27'); a('s_add_u32 s28, s28, 0x%x' % WS_BM[0])
    a('s_mov_b64 exec, 1'); a('buffer_store_dwordx4 v[192:195], off, %s, s28 sc1' % SRD_WS); a('s_mov_b64 exec, -1')
    Lq = a.newlabel('OPFS1')
    a('s_cmp_lg_u32 %s, 0' % sL); a('s_cbranch_scc1 %s' % Lq)
    a('s_lshl_b32 s28, s29, 4'); a('s_add_u32 s28, s28, 0x%x' % WS_FS[1])
    a('buffer_store_dwordx4 v[188:191], %s, %s, s28 offen sc1' % (vL16, SRD_WS))
    a.label(Lq)
    a.label(Lp)
    g.ts(10)

def get_sel(g, layer, code):
    a = g.a
    a('v_and_b32 v186, 31, v1'); a('v_lshlrev_b32 v186, 4, v186'); a('s_mov_b32 s27, 0x%x' % WS_BM[layer])
    poll(g, [('v186', 's27', 'g', 188)], code)
    a('v_mov_b32 v192, v188'); allreduce(a, [192], 194, op='v_max_f32')
    a('v_cmp_eq_f32 vcc, v192, v188'); a('s_ff1_i32_b64 s28, vcc'); a('s_nop 3')
    a('v_readlane_b32 %s, v189, s28' % sSEL); a('v_readlane_b32 %s, v188, s28' % sRSEL)

def row_stats(g):
    a = g.a
    a('v_add_f32 v196, v188, v189'); a('v_mul_f32 v197, v188, v188'); a('v_fmac_f32 v197, v189, v189')
    for k in range(2, 8): a('v_add_f32 v196, v196, v%d' % (188 + k)); a('v_fmac_f32 v197, v%d, v%d' % (188 + k, 188 + k))
    allreduce(a, [196, 197], 198)
    a('s_mov_b32 s25, 0x3b000000'); a('s_mov_b32 s26, 0x3727c5ac')
    a('v_mul_f32 v196, s25, v196'); a('v_mul_f32 v197, s25, v197'); a('v_fma_f32 v197, -v196, v196, v197'); a('v_add_f32 v197, s26, v197'); a('v_rsq_f32 v197, v197')

def load_row(g, layer, code):
    a = g.a
    a('s_lshr_b32 s25, %s, 8' % sSEL); a('s_lshr_b32 s26, %s, 6' % sSEL); a('s_and_b32 s26, s26, 3')
    a('s_lshl_b32 s27, s26, 13'); a('s_lshl_b32 s28, s25, 7'); a('s_add_u32 s27, s27, s28'); a('s_add_u32 s27, s27, 0x%x' % FL(FL_X + layer))
    a('v_and_b32 v186, 15, v1'); a('v_lshrrev_b32 v187, 1, v186'); a('v_and_b32 v186, 1, v186'); a('v_lshlrev_b32 v186, 2, v186'); a('v_lshl_add_u32 v186, v187, 10, v186')
    poll(g, [('v186', 's27', 'f', 216)], code)
    a('s_and_b32 s26, %s, 255' % sSEL); a('s_lshl_b32 s27, s25, 18'); a('s_lshl_b32 s28, s26, 7'); a('s_add_u32 s27, s27, s28'); a('s_add_u32 s27, s27, 0x%x' % WS_X[layer])
    a('s_and_b32 s26, s26, 15'); a('s_lshr_b32 s26, s26, 1')
    a('v_and_b32 v186, 7, v1'); a('v_xor_b32 v186, s26, v186'); a('v_lshlrev_b32 v186, 4, v186'); a('v_lshrrev_b32 v187, 3, v1'); a('v_lshl_add_u32 v186, v187, 15, v186')
    a('buffer_load_dwordx4 v[200:203], v186, %s, s27 offen sc1' % SRD_WS); a('s_waitcnt vmcnt(0)')
    for k in range(4): unpack2(a, 188 + 2 * k, 200 + k)
    row_stats(g)

def norm_row_to_lds(g):
    a = g.a
    for k in range(8): a('v_sub_f32 v%d, v%d, v196' % (188 + k, 188 + k)); a('v_mul_f32 v%d, v%d, v197' % (188 + k, 188 + k))
    for k in range(4): a('v_cvt_pk_bf16_f32 v%d, v%d, v%d' % (200 + k, 188 + 2 * k, 189 + 2 * k))
    a('s_lshl_b32 s25, %s, 10' % sW); a('s_add_u32 s25, s25, %d' % XROW)
    a('v_add_u32 v186, s25, %s' % vL16); a('ds_write_b128 v186, v[200:203]')
    a('v_lshlrev_b32 v186, 4, %s' % vG); a('v_add_u32 v186, s25, v186'); a('s_waitcnt lgkmcnt(0)')


def sel_from_bm(g, r):
    a = g.a
    a('v_mov_b32 v192, v%d' % r); allreduce(a, [192], 194, op='v_max_f32')
    a('v_cmp_eq_f32 vcc, v192, v%d' % r); a('s_ff1_i32_b64 s28, vcc'); a('s_nop 3')
    a('v_readlane_b32 %s, v%d, s28' % (sSEL, r + 1)); a('v_readlane_b32 %s, v%d, s28' % (sRSEL, r))

def ffn_sel(g, layer, pre):
    a = g.a
    a('s_mov_b32 s33, 0x%x' % WS_BM[layer])
    if not pre: a('v_and_b32 v214, 31, v1'); a('v_lshlrev_b32 v214, 4, v214')
    poll_nodrain(g, [('v214', 's33', 'g', 204)], 7, pre)
    sel_from_bm(g, 204)

def poll_nodrain(g, loads, code, pre):
    a = g.a
    if not pre:
        poll(g, loads, code); return
    D = a.newlabel('PND')
    voff, soff, kind, dst = loads[0]
    w = dst + 3 if kind == 'g' else dst
    a('v_cmp_ne_u32 vcc, %s, v%d' % (sT, w)); a('s_cmp_eq_u64 vcc, 0'); a('s_cbranch_scc1 %s' % D)
    poll(g, loads, code)
    a.label(D)

def ffn_flags_issue(g, layer):
    a = g.a
    a('s_lshr_b32 s25, %s, 8' % sSEL); a('s_lshr_b32 s26, %s, 6' % sSEL); a('s_and_b32 s26, s26, 3')
    a('s_lshl_b32 s27, s26, 13'); a('s_lshl_b32 s28, s25, 7'); a('s_add_u32 s27, s27, s28'); a('s_add_u32 s31, s27, 0x%x' % FL(FL_X + layer))
    a('v_and_b32 v186, 15, v1'); a('v_lshrrev_b32 v187, 1, v186'); a('v_and_b32 v186, 1, v186'); a('v_lshlrev_b32 v186, 2, v186'); a('v_lshl_add_u32 v215, v187, 10, v186')
    a('buffer_load_dword v216, v215, %s, s31 offen sc1' % SRD_WS)

def ffn_flags_check(g, layer):
    a = g.a
    a('s_waitcnt vmcnt(0)')
    a('s_lshr_b32 s25, %s, 8' % sSEL); a('s_lshr_b32 s26, %s, 6' % sSEL); a('s_and_b32 s26, s26, 3')
    a('s_lshl_b32 s27, s26, 13'); a('s_lshl_b32 s28, s25, 7'); a('s_add_u32 s27, s27, s28'); a('s_add_u32 s31, s27, 0x%x' % FL(FL_X + layer))
    poll_nodrain(g, [('v215', 's31', 'f', 216)], 8, True)

def ffn_row_issue(g, layer, dst=200):
    a = g.a
    a('s_lshr_b32 s25, %s, 8' % sSEL); a('s_and_b32 s26, %s, 255' % sSEL); a('s_lshl_b32 s27, s25, 18'); a('s_lshl_b32 s28, s26, 7'); a('s_add_u32 s27, s27, s28'); a('s_add_u32 s27, s27, 0x%x' % WS_X[layer])
    a('s_and_b32 s26, s26, 15'); a('s_lshr_b32 s26, s26, 1')
    a('v_and_b32 v186, 7, v1'); a('v_xor_b32 v186, s26, v186'); a('v_lshlrev_b32 v186, 4, v186'); a('v_lshrrev_b32 v187, 3, v1'); a('v_lshl_add_u32 v186, v187, 15, v186')
    a('buffer_load_dwordx4 v[%d:%d], v186, %s, s27 offen sc1' % (dst, dst + 3, SRD_WS))

def ffn_gateup(g, src=200):
    a = g.a
    for k in range(4): unpack2(a, 188 + 2 * k, src + k)
    row_stats(g); norm_row_to_lds(g)
    F = 152
    for h in range(2):
        for s in range(8): a('ds_read_b128 v[%d:%d], v186 offset:%d' % (F + 4 * s, F + 4 * s + 3, (8 * h + s) * 64))
        a('s_waitcnt lgkmcnt(0)')
        for s in range(8):
            S = 8 * h + s
            a('v_mfma_f32_16x16x32_bf16 v[188:191], a[%d:%d], v[%d:%d], %s' % (192 + 4 * S, 195 + 4 * S, F + 4 * s, F + 4 * s + 3, '0' if S == 0 else 'v[188:191]'))
    a('s_lshl_b32 s25, %s, 6' % sW); a('s_add_u32 s25, s25, %d' % HBUF)
    a('v_lshlrev_b32 v186, 4, %s' % vG); a('v_add_u32 v186, s25, v186')
    a('s_mov_b32 s28, 0x00010001'); a('s_mov_b32 s29, 0x00010001'); a('s_mov_b64 exec, s[28:29]')
    a('ds_write_b128 v186, v[188:191]')
    a('s_mov_b64 exec, -1')
    a('s_waitcnt lgkmcnt(0)')

def ffn_down(g, layer, hb=None, D=152, T=None):
    a = g.a
    if hb is None: hb = HBUF
    a('v_lshlrev_b32 v186, 5, %s' % vG); a('v_add_u32 v186, %d, v186' % hb)
    a('ds_read_b128 v[168:171], v186'); a('ds_read_b128 v[172:175], v186 offset:16'); a('ds_read_b128 v[176:179], v186 offset:128'); a('ds_read_b128 v[180:183], v186 offset:144')
    a('s_mov_b32 s25, 0xbfb8aa3b')
    a('v_mov_b32 v196, %s' % sRSEL); a('v_mul_f32 v196, s25, v196')
    a('s_waitcnt lgkmcnt(0)')
    for k in range(8): a('v_mul_f32 v%d, s25, v%d' % (188 + k, 168 + k))
    for k in range(9): a('v_exp_f32 v%d, v%d' % (188 + k, 188 + k))
    for k in range(9): a('v_add_f32 v%d, 1.0, v%d' % (188 + k, 188 + k))
    for k in range(9): a('v_rcp_f32 v%d, v%d' % (188 + k, 188 + k))
    for k in range(8): a('v_mul_f32 v%d, v%d, v%d' % (168 + k, 168 + k, 176 + k))
    for k in range(8): a('v_mul_f32 v%d, v%d, v%d' % (168 + k, 168 + k, 188 + k))
    for k in range(4): a('v_cvt_pk_bf16_f32 v%d, v%d, v%d' % (184 + k, 168 + 2 * k, 169 + 2 * k))
    for t in range(8): a('v_mfma_f32_16x16x32_bf16 v[%d:%d], v[184:187], v[%d:%d], 0' % (D + 4 * t, D + 4 * t + 3, FDW + 4 * t, FDW + 4 * t + 3))
    a('v_cmp_le_u32 s[28:29], 1, %s' % vG); a('v_cmp_le_u32 s[30:31], 2, %s' % vG); a('v_cmp_le_u32 vcc, 3, %s' % vG)
    for i in range(2):
        d = D + 16 * i
        a('v_cndmask_b32 v%d, v%d, v%d, s[28:29]' % (190 + 2 * i, d, d + 4)); a('v_cndmask_b32 v%d, v%d, v%d, s[30:31]' % (190 + 2 * i, 190 + 2 * i, d + 8))
        a('v_cndmask_b32 v%d, v%d, v%d, vcc' % (190 + 2 * i, 190 + 2 * i, d + 12)); a('v_mul_f32 v%d, v196, v%d' % (190 + 2 * i, 190 + 2 * i))
    if layer == 0:
        a('s_and_b32 s25, %s, %d' % (sB, YR - 1)); a('s_lshl_b32 s25, s25, 11'); a('s_lshl_b32 s26, %s, 9' % sW); a('s_add_u32 s25, s25, s26'); a('s_add_u32 s25, s25, 0x%x' % WS_Y[0])
        a('v_lshlrev_b32 v186, 2, v1')
        a('buffer_atomic_add_f32 v190, v186, %s, s25 offen' % SRD_WS); a('buffer_atomic_add_f32 v192, v186, %s, s25 offen offset:256' % SRD_WS)
    else:
        a('s_lshl_b32 s25, %s, 12' % sFS); a('s_lshl_b32 s26, %s, 10' % sW); a('s_add_u32 s25, s25, s26'); a('s_add_u32 s25, s25, 0x%x' % WS_YT)
        a('v_lshlrev_b32 v186, 3, v1'); a('v_mov_b32 v191, %s' % sT); a('v_mov_b32 v193, %s' % sT)
        a('buffer_store_dwordx2 v[190:191], v186, %s, s25 offen sc1' % SRD_WS); a('buffer_store_dwordx2 v[192:193], v186, %s, s25 offen offset:512 sc1' % SRD_WS)

def ffn_flag(g, layer):
    a = g.a
    a('s_lshl_b32 s25, %s, 7' % sB); a('s_lshl_b32 s26, %s, 2' % sW); a('s_add_u32 s25, s25, s26'); a('s_add_u32 s25, s25, 0x%x' % FL(FL_Y + layer))
    a('v_mov_b32 v220, %s' % sT); a('s_mov_b64 exec, 1'); a('buffer_store_dword v220, off, %s, s25 sc1' % SRD_WS); a('s_mov_b64 exec, -1')

def ffn(g, layer):
    a = g.a
    L = a.newlabel('NOFFN'); if_ffn(a, L, False)
    ffn_sel(g, layer, pre=False)
    ffn_flags_issue(g, layer); ffn_flags_check(g, layer); ffn_row_issue(g, layer)
    a('s_waitcnt vmcnt(0)')
    ffn_gateup(g); a('s_barrier'); ffn_down(g, layer)
    a.label(L)

SELB = HBUF

def final_phase(g):
    a = g.a
    a('s_barrier')
    OUT = 152
    a('v_lshlrev_b32 v186, 4, %s' % vTOK); a('v_add_u32 v186, %d, v186' % LT)
    for tt in range(4): a('ds_read_b64 v[%d:%d], v186 offset:%d' % (188 + 2 * tt, 189 + 2 * tt, tt * 256))
    for tt in range(4):
        for k in range(2): unpack2(a, OUT + 4 * tt + 2 * k, XT + 2 * tt + k)
    a('s_waitcnt lgkmcnt(0)')
    for tt in range(4):
        m, s_ = 188 + 2 * tt, 189 + 2 * tt
        a('v_mul_f32 v%d, v%d, v%d' % (m, m, s_)); a('v_add_f32 v%d, 1.0, v%d' % (s_, s_))
        for r in range(4): a('v_fma_f32 v%d, v%d, v%d, -v%d' % (OUT + 4 * tt + r, OUT + 4 * tt + r, s_, m))
    for tt in range(4):
        for k in range(2): a('v_cvt_pk_bf16_f32 v%d, v%d, v%d' % (168 + 2 * tt + k, OUT + 4 * tt + 2 * k, OUT + 4 * tt + 2 * k + 1))
    tile_image_write(g, 168)
    a('s_waitcnt lgkmcnt(0)'); a('s_barrier')
    a('v_lshrrev_b32 v186, 3, v0'); a('v_and_b32 v187, 7, v0')
    a('v_and_b32 v188, 15, v186'); a('v_lshrrev_b32 v188, 1, v188'); a('v_xor_b32 v188, v187, v188'); a('v_lshlrev_b32 v188, 4, v188'); a('v_lshl_add_u32 v188, v186, 7, v188'); a('v_add_u32 v188, %d, v188' % IMG_Q)
    a('ds_read_b128 v[192:195], v188'); a('ds_read_b128 v[196:199], v188 offset:4096')
    a('v_lshlrev_b32 v187, 4, v187'); a('v_lshl_add_u32 v187, v186, 10, v187')
    g.srd(16, P_OUT, 2048 * 1024)
    a('s_lshl_b32 s25, %s, 8' % sJ); a('s_lshr_b32 s26, %s, 3' % sI); a('s_lshl_b32 s26, s26, 6'); a('s_add_u32 s25, s25, s26'); a('s_lshl_b32 s25, s25, 10')
    a('s_and_b32 s26, %s, 7' % sI); a('s_lshl_b32 s26, s26, 7'); a('s_add_u32 %s, s25, s26' % sXB); a('s_add_u32 s26, %s, 32768' % sXB)
    a('s_waitcnt lgkmcnt(0)')
    a('buffer_store_dwordx4 v[192:195], v187, %s, %s offen sc1' % (SRD_XS, sXB)); a('buffer_store_dwordx4 v[196:199], v187, %s, s26 offen sc1' % SRD_XS)
    Lw = a.newlabel('FSEL')
    a('s_cmp_lg_u32 %s, 0' % sW); a('s_cbranch_scc1 %s' % Lw)
    ffn_sel(g, 1, pre=False)
    a('v_mov_b32 v186, %d' % SELB); a('v_mov_b32 v188, %s' % sSEL); a('v_mov_b32 v189, %s' % sRSEL); a('ds_write_b64 v186, v[188:189]')
    Lr = a.newlabel('FROW'); if_ffn(a, Lr, False)
    ffn_flags_issue(g, 1); ffn_flags_check(g, 1); ffn_row_issue(g, 1); a('s_waitcnt vmcnt(0)')
    for k in range(4): unpack2(a, 188 + 2 * k, 200 + k)
    row_stats(g); norm_row_to_lds(g)
    a.label(Lr)
    Le = a.newlabel('NOE'); a('s_cmp_lg_u32 %s, 0' % sB); a('s_cbranch_scc1 %s' % Le)
    a('v_mov_b32 v220, %s' % sT); a('s_mov_b64 exec, 1'); a('buffer_store_dword v220, off, %s, 0 sc1' % SRD_WS); a('s_mov_b64 exec, -1')
    a.label(Le)
    a('s_waitcnt lgkmcnt(0)')
    a.label(Lw)
    a('s_waitcnt vmcnt(0)')
    a('s_barrier')
    a('v_mov_b32 v186, %d' % SELB); a('ds_read_b64 v[188:189], v186'); a('s_waitcnt lgkmcnt(0)')
    a('v_readfirstlane_b32 %s, v188' % sSEL); a('v_readfirstlane_b32 %s, v189' % sRSEL)
    Lf = a.newlabel('NOFFN'); if_ffn(a, Lf, False)
    a('v_lshlrev_b32 v186, 4, %s' % vG); a('v_add_u32 v186, %d, v186' % XROW)
    F = 40
    for q in range(16): a('ds_read_b128 v[%d:%d], v186 offset:%d' % (F + 4 * q, F + 4 * q + 3, q * 64))
    for q in range(16):
        a('s_waitcnt lgkmcnt(%d)' % min(15, 15 - q))
        a('v_mfma_f32_16x16x32_bf16 v[188:191], a[%d:%d], v[%d:%d], %s' % (192 + 4 * q, 195 + 4 * q, F + 4 * q, F + 4 * q + 3, '0' if q == 0 else 'v[188:191]'))
    a('s_lshl_b32 s25, %s, 6' % sW); a('s_add_u32 s25, s25, %d' % HBUF2); a('v_lshlrev_b32 v186, 4, %s' % vG); a('v_add_u32 v186, s25, v186')
    a('s_mov_b32 s28, 0x00010001'); a('s_mov_b32 s29, 0x00010001'); a('s_mov_b64 exec, s[28:29]')
    a('ds_write_b128 v186, v[188:191]'); a('s_mov_b64 exec, -1')
    a('s_waitcnt lgkmcnt(0)'); a('s_barrier')
    ffn_down(g, 1, hb=HBUF2, D=40, T=104)
    a.label(Lf)
    Lo = a.newlabel('NOOWN')
    y_fetch(g, 1, 13, Lo)
    a('s_lshr_b32 s25, %s, 4' % sSEL); a('s_and_b32 s25, s25, 3')
    for r in range(4): a('v_mov_b32 v%d, v%d' % (188 + r, OUT + r))
    for tt in range(1, 4):
        a('s_cmp_eq_u32 s25, %d' % tt); a('s_cselect_b64 vcc, -1, 0')
        for r in range(4): a('v_cndmask_b32 v%d, v%d, v%d, vcc' % (188 + r, 188 + r, OUT + 4 * tt + r))
    for r in range(4): a('v_add_f32 v%d, v%d, v%d' % (188 + r, 188 + r, 196 + r))
    a('v_cvt_pk_bf16_f32 v192, v188, v189'); a('v_cvt_pk_bf16_f32 v193, v190, v191')
    a('s_and_b32 s25, %s, 63' % sSEL); a('s_lshl_b32 s25, s25, 10'); a('s_add_u32 s25, s25, %s' % sXB); a('s_lshl_b32 s26, %s, 5' % sW); a('s_add_u32 s25, s25, s26')
    a('v_lshlrev_b32 v186, 3, %s' % vG); a('s_and_b32 s26, %s, 15' % sSEL); a('v_cmp_eq_u32 vcc, s26, %s' % vTOK)
    a('s_and_saveexec_b64 s[28:29], vcc')
    a('buffer_store_dwordx2 v[192:193], v186, %s, s25 offen sc1' % SRD_XS)
    a('s_mov_b64 exec, -1')
    a.label(Lo)
    g.ts(15)

def dump_lds(g, base, nbytes):
    a = g.a
    a('s_lshl_b32 s25, %s, 15' % sB); a('s_add_u32 s25, s25, 0x%x' % WS_DUMP); a('v_add_u32 v60, %d, %s' % (base, vT16))
    for i in range(nbytes // 4096):
        a('ds_read_b128 v[64:67], v60 offset:%d' % (i * 4096)); a('s_waitcnt lgkmcnt(0)'); a('v_add_u32 v61, %d, %s' % (i * 4096, vT16))
        a('buffer_store_dwordx4 v[64:67], v61, %s, s25 offen' % SRD_WS); a('s_waitcnt vmcnt(0)')

def build(opt):
    g = G(opt); a = g.a
    prologue(g)
    a('s_mov_b32 %s, 0' % sL)
    a.label('LAYER')
    gemm(g)
    if opt.stop == 'qkv':
        dump_lds(g, IMG_Q, 24576); a('s_branch K_END')
    attention(g)
    if opt.stop == 'attn': a('s_branch K_END')
    outproj(g)
    Lfin = a.newlabel('FINAL')
    a('s_cmp_lg_u32 %s, 0' % sL); a('s_cbranch_scc1 %s' % Lfin)
    a('s_and_b32 s25, %s, 1' % sI); a('s_lshl_b32 s27, s25, 14'); a('s_lshl_b32 s28, %s, 7' % sJ); a('s_add_u32 s27, s27, s28'); a('s_add_u32 s27, s27, 0x%x' % FL(FL_X))
    a('v_and_b32 v186, 31, v1'); a('v_lshrrev_b32 v187, 1, v186'); a('v_and_b32 v186, 1, v186'); a('v_lshlrev_b32 v186, 2, v186'); a('v_lshl_add_u32 v186, v187, 10, v186')
    poll_leader(g, [('v186', 's27', 'f', 216)], 14)
    g.ts(11)
    xsrc(g, 1)
    g.vm = []
    for k in range(4): x_dma(g, 0, k)
    a('s_mov_b32 %s, 1' % sL)
    a('s_branch LAYER')
    a.label(Lfin)
    final_phase(g)
    a.label('K_END'); a('s_endpgm')
    return g

def emit(opt):
    g = build(opt)
    nops = g.a.fix_hazards()
    head = open('cdna_kernels/%s.s.ref' % NAME).read().split('\n')
    out = []
    for l in head:
        if l.startswith('; @launch'):
            out.append('; @launch grid=(256,1,1) block=(256,1,1) lds=%d' % LDS_BYTES); continue
        out.append(l)
        if l.startswith(NAME + '_kernel:'): break
    out.append(g.a.text())
    out.append('''.section .rodata,"a"
.p2align 6
.amdhsa_kernel %s_kernel
  .amdhsa_next_free_vgpr 512
  .amdhsa_next_free_sgpr 100
  .amdhsa_accum_offset 256
  .amdhsa_group_segment_fixed_size 0
  .amdhsa_kernarg_size 88
  .amdhsa_user_sgpr_count 2
  .amdhsa_user_sgpr_kernarg_segment_ptr 1
  .amdhsa_system_sgpr_workgroup_id_x 1
  .amdhsa_float_denorm_mode_32 3
.end_amdhsa_kernel
''' % NAME)
    open(opt.o, 'w').write('\n'.join(out))
    print('instructions', len(g.a.ins), 'nops inserted', nops, file=sys.stderr)

if __name__ == '__main__':
    p = argparse.ArgumentParser()
    p.add_argument('-o', default='cdna_kernels/%s.s' % NAME)
    p.add_argument('--stop', default=''); p.add_argument('--ts', action='store_true'); p.add_argument('--tsd', action='store_true')
    p.add_argument('--hpx', type=int, default=0)
    p.add_argument('--sleep', type=int, default=4)
    p.add_argument('--tsf', action='store_true')
    p.add_argument('--tsz', action='store_true')
    p.add_argument('--wpf', type=int, default=1)
    p.add_argument('--pfpos', type=int, default=4)
    p.add_argument('--tsp', action='store_true')
    p.add_argument('--budget', type=int, default=6)
    p.add_argument('--bar23', type=int, default=1)
    p.add_argument('--rot', type=int, default=0)
    p.add_argument('--dbg', action='store_true'); p.add_argument('--force_slow', action='store_true')
    emit(p.parse_args())
```
